```python
import torch

def _softmax(x, axis=-1):
    return torch.softmax(x, dim=axis)

def _gelu(x):
    return torch.nn.functional.gelu(x, approximate='tanh')

def _silu(x):
    return torch.nn.functional.silu(x)

def _sigmoid(x):
    return torch.sigmoid(x)

def _layernorm(x, axis=-1, eps=1e-05):
    m = x.mean(dim=axis, keepdim=True)
    v = x.var(dim=axis, keepdim=True, unbiased=False)
    return (x - m) / torch.sqrt(v + eps)

def _scatter_add(tgt, idx, src, axis=0):
    return tgt.clone().index_add_(axis, idx, src)

def _segment_sum(src, seg, n):
    out = torch.zeros((n,) + src.shape[1:], dtype=src.dtype)
    return out.index_add_(0, seg, src)

def _pad(x, pw):
    flat = tuple((v for pair in reversed(pw) for v in pair))
    return torch.nn.functional.pad(x, flat)
kernel_name = 'concat_heads__ssm_conv_s4__memory_aug_recurrent_mem_tr__prompt'

def setup_inputs():

    _w = lambda a: (lambda t: t.to(torch.bfloat16) if t.is_floating_point() else t)(torch.as_tensor(a))

    def _A_setup():
        B, L, D, N = (1, 2048, 640, 128)
        A_re = -(lambda _x: torch.exp(torch.as_tensor(_x)))((lambda *s: torch.randn(*s, dtype=torch.bfloat16) * 6.4)(D, N))
        A_im = torch.pi * (lambda *s: torch.randn(*s, dtype=torch.bfloat16) * 0.05)(D, N)
        B_re = (lambda *s: torch.randn(*s, dtype=torch.bfloat16) * 0.1)(D, N)
        B_im = (lambda *s: torch.randn(*s, dtype=torch.bfloat16) * 0.1)(D, N)
        C_re = (lambda *s: torch.randn(*s, dtype=torch.bfloat16) * 0.1)(D, N)
        C_im = (lambda *s: torch.randn(*s, dtype=torch.bfloat16) * 0.1)(D, N)
        log_dt = (lambda *s: torch.randn(*s, dtype=torch.bfloat16) * 0.05)(D) * 0.5 - 4.0
        Dskip = (lambda *s: torch.randn(*s, dtype=torch.bfloat16) * 0.05)(D)
        return {'u': _w((lambda *s: torch.randn(*s, dtype=torch.bfloat16) * 0.05)(B, L, D)), 'A_re': _w(A_re), 'A_im': _w(A_im), 'B_re': _w(B_re), 'B_im': _w(B_im), 'C_re': _w(C_re), 'C_im': _w(C_im), 'log_dt': _w(log_dt), 'Dskip': _w(Dskip)}
    _A_in = _A_setup()

    def _B_setup():
        B, S, Dm = (1, 2048, 640)
        H, Dh = (32, 128)
        M, seg = (8, 32)
        seg = min(seg, S)
        S = S // seg * seg
        return {'x': _w((lambda *s: torch.randn(*s, dtype=torch.bfloat16) * 0.05)(B, S, Dm)), 'mem0': _w((lambda *s: torch.randn(*s, dtype=torch.bfloat16) * 0.4)(B, M, Dm)), 'Wq': _w((lambda *s: torch.randn(*s, dtype=torch.bfloat16) * 6.4)(Dm, H, Dh) * Dm ** (-0.5)), 'Wk': _w((lambda *s: torch.randn(*s, dtype=torch.bfloat16) * 6.4)(Dm, H, Dh) * Dm ** (-0.5)), 'Wv': _w((lambda *s: torch.randn(*s, dtype=torch.bfloat16) * 0.4)(Dm, H, Dh) * Dm ** (-0.5)), 'Wo': _w((lambda *s: torch.randn(*s, dtype=torch.bfloat16) * 0.4)(H, Dh, Dm) * (H * Dh) ** (-0.5)), 'seg_len': seg}
    _B_in = _B_setup()
    return {'A_u': _A_in['u'], 'A_A_re': _A_in['A_re'], 'A_A_im': _A_in['A_im'], 'A_B_re': _A_in['B_re'], 'A_B_im': _A_in['B_im'], 'A_C_re': _A_in['C_re'], 'A_C_im': _A_in['C_im'], 'A_log_dt': _A_in['log_dt'], 'A_Dskip': _A_in['Dskip'], 'B_x': _B_in['x'], 'B_mem0': _B_in['mem0'], 'B_Wq': _B_in['Wq'], 'B_Wk': _B_in['Wk'], 'B_Wv': _B_in['Wv'], 'B_Wo': _B_in['Wo'], 'B_seg_len': _B_in['seg_len']}

def reference(A_u, A_A_re, A_A_im, A_B_re, A_B_im, A_C_re, A_C_im, A_log_dt, A_Dskip, B_x, B_mem0, B_Wq, B_Wk, B_Wv, B_Wo, B_seg_len):

    def _A_ref(u, A_re, A_im, B_re, B_im, C_re, C_im, log_dt, Dskip):
        Bsz, L, D = u.shape
        dt = torch.exp(log_dt)[:, None]
        A = A_re + 1j * A_im
        Bc = B_re + 1j * B_im
        Cc = C_re + 1j * C_im
        logdA = dt * A
        dB = dt * Bc
        l = (lambda x, dt: x.to(dt))(torch.arange(L), A_re.dtype)
        P = torch.exp(logdA[:, :, None] * l[None, None, :])
        K = torch.einsum('dn,dnl,dn->dl', Cc, P, dB).real
        L2 = 2 * L
        Kp = _pad(K, ((0, 0), (0, L)))
        up = (lambda x, *d: x.permute(*d))(u, 0, 2, 1)
        up = _pad(up, ((0, 0), (0, 0), (0, L)))
        Kf = (lambda x, axes=(-2, -1): torch.fft.rfft2(x.float(), dim=axes))(Kp[:, None, :], axes=(-2, -1))
        Uf = (lambda x, axes=(-2, -1): torch.fft.rfft2(x.float(), dim=axes))(up[:, :, None, :], axes=(-2, -1))
        Yf = Uf * Kf[None, :, :, :]
        y = (lambda x, s, axes=(-2, -1): torch.fft.irfft2(x, s=s, dim=axes).to(torch.bfloat16))(Yf, (1, L2), axes=(-2, -1))[:, :, 0, :L]
        y = (lambda x, *d: x.permute(*d))(y, 0, 2, 1) + u * Dskip[None, None, :]
        return y

    def _B_ref(x, mem0, Wq, Wk, Wv, Wo, seg_len):
        B, S, Dm = x.shape
        H, Dh = (Wq.shape[1], Wq.shape[2])
        M = mem0.shape[1]
        scale = Dh ** (-0.5)
        n_seg = S // seg_len
        L = M + seg_len
        idx = torch.arange(L)
        mask = (idx[:, None] < M) | (idx[:, None] >= idx[None, :])
        mem = mem0
        outs = []
        for s in range(n_seg):
            xs = x[:, s * seg_len:(s + 1) * seg_len, :].clone()
            h = torch.concatenate([mem, xs], axis=1)
            q = torch.einsum('btd,dhe->bhte', h, Wq)
            k = torch.einsum('btd,dhe->bhte', h, Wk)
            v = torch.einsum('btd,dhe->bhte', h, Wv)
            scores = torch.einsum('bhqe,bhke->bhqk', q, k) * scale
            scores = torch.where(mask[None, None], scores, -1000000000.0)
            p = _softmax(scores, axis=-1)
            o = torch.einsum('bhqk,bhke->bhqe', p, v)
            o = torch.einsum('bhte,hed->btd', o, Wo)
            mem = o[:, :M, :].clone()
            outs.append(o[:, M:, :])
        return torch.concatenate(outs, axis=1)
    a = _A_ref(A_u, A_A_re, A_A_im, A_B_re, A_B_im, A_C_re, A_C_im, A_log_dt, A_Dskip)
    b = _B_ref(B_x, B_mem0, B_Wq, B_Wk, B_Wv, B_Wo, B_seg_len)
    return torch.concatenate([a, b], axis=-1)
```

```python
class Asm:
    def __init__(self):
        self.lines=[]; self._n=0
    def __call__(self, s=''):
        for l in s.split('\n'):
            self.lines.append(l)
    def c(self, s): self.lines.append('; '+s)
    def lab(self, name): self.lines.append(name+':')
    def nl(self, p='L'):
        self._n+=1; return f'{p}_{self._n}'
    def retry(self, br, label):
        inv={'s_cbranch_vccnz':'s_cbranch_vccz','s_cbranch_vccz':'s_cbranch_vccnz','s_cbranch_scc1':'s_cbranch_scc0','s_cbranch_scc0':'s_cbranch_scc1'}[br]
        ok=self.nl('ok')
        self(f'{inv} {ok}')
        self('s_add_u32 s100, s100, 1'); self('s_cmp_lt_u32 s100, 0x1000000'); self(f's_cbranch_scc1 {label}')
        self('s_endpgm')
        self.lab(ok)
    def text(self): return '\n'.join(self.lines)+'\n'

def vr(b,n=1): return f'v{b}' if n==1 else f'v[{b}:{b+n-1}]'
def ar(b,n=1): return f'a{b}' if n==1 else f'a[{b}:{b+n-1}]'
def sr(b,n=1): return f's{b}' if n==1 else f's[{b}:{b+n-1}]'

def kernel_header(name):
    return f'''.text
.globl {name}
.p2align 8
.type {name},@function
{name}:
'''
def kernel_desc(name, vgpr=512, sgpr=102, accum=256, kernarg=152):
    return f'''.section .rodata,"a"
.p2align 6
.amdhsa_kernel {name}
  .amdhsa_next_free_vgpr {vgpr}
  .amdhsa_next_free_sgpr {sgpr}
  .amdhsa_accum_offset {accum}
  .amdhsa_group_segment_fixed_size 0
  .amdhsa_kernarg_size {kernarg}
  .amdhsa_user_sgpr_count 2
  .amdhsa_user_sgpr_kernarg_segment_ptr 1
  .amdhsa_system_sgpr_workgroup_id_x 1
.end_amdhsa_kernel
'''
```

```python
from asmgen import *
from layout import *
SCALE=0x3db504f3
L2E=0x3fb8aa3b
LDS_A=0
LDS_F=10240
LDS_ML=14336
LDS_R=14848
STG_BLK=1088; STG_BUF=32*STG_BLK

def wr(idx,n):
    if idx<256:
        assert idx+n<=256
        return f'a[{idx}:{idx+n-1}]'
    b=192+idx-256
    return f'v[{b}:{b+n-1}]'
def V(b,n=1): return f'v{b}' if n==1 else f'v[{b}:{b+n-1}]'

def interleave(a, mains, fillers, per=2, start=0):
    f=list(fillers)
    for i,m in enumerate(mains):
        a(m)
        if i>=start and not m.startswith('s_waitcnt'):
            for _ in range(per):
                if f: a(f.pop(0))
    for x in f: a(x)

T0,T1,T2,T3,T4,T5=30,31,32,33,34,35
vG=2; vAW=3; vAR=4; vIDX=5; vSEL=6
GL=36; AF=56; GD=56; ACC=96

def masks(a):
    a('s_mov_b32 s60, 0x00ff00ff'); a('s_mov_b32 s61, 0x00ff00ff')
    a('s_mov_b32 s62, 0'); a('s_mov_b32 s63, 0x00ff00ff')
    a('s_mov_b32 s64, -1'); a('s_mov_b32 s65, 0')
    a('s_mov_b32 s72, 0xff00ff00'); a('s_mov_b32 s73, 0xff00ff00')
    a(f's_mov_b32 s66, {SCALE}'); a(f's_mov_b32 s67, {SCALE}'); a(f's_mov_b32 s68, {L2E}'); a(f's_mov_b32 s69, {L2E}')
    a('s_mov_b32 s70, 0xfffffffe')

def load_weights(a, srcs, trs, NR=10):
    def issue(r):
        srcs(r)
        a(f's_mul_i32 s44, s3, {8*STG_BLK}')
        a(f's_add_u32 s44, s44, {(r%4)*STG_BUF}')
        a(f'v_mov_b32 v{T5}, v{T4}')
        for i in range(8):
            a(f's_add_u32 m0, s44, {i*STG_BLK}')
            a(f'global_load_lds_dwordx4 v{T5}, s[40:41]')
            if i<7: a(f'v_add_u32 v{T5}, s43, v{T5}')
    for r in range(3): issue(r)
    for r in range(NR):
        a(f's_waitcnt vmcnt({8*min(NR-1-r,2)})')
        a('s_barrier')
        if r+3<NR: issue(r+3)
        trs(r,(r%4)*STG_BUF)
        a('s_waitcnt lgkmcnt(0)')
    a('s_barrier')

def tr_addr16(a, dst):
    a(f'v_lshrrev_b32 v{T0}, 4, v1'); a(f'v_mul_u32_u24 v{dst}, {2*STG_BLK}, v{T0}')
    a(f'v_bfe_u32 v{T0}, v1, 2, 2'); a(f'v_lshl_add_u32 v{dst}, v{T0}, 8, v{dst}')
    a(f'v_and_b32 v{T0}, 3, v1'); a(f'v_lshl_add_u32 v{dst}, v{T0}, 3, v{dst}')
    a('s_lshl_b32 s40, s3, 6'); a(f'v_add_u32 v{dst}, s40, v{dst}')
def tr_B16(a, vaddr, bufoff, blocks):
    a(f'v_add_u32 v{T3}, {bufoff}, v{vaddr}')
    for (m,tp,idx) in blocks:
        for hB in range(2):
            for half in range(2):
                off=(m*16+8*hB+half)*STG_BLK+32*tp
                a(f'ds_read_b64_tr_b16 {wr(idx+hB*4+half*2,2)}, v{T3} offset:{off}')

def common_consts(a):
    n,g,x,y=T0,T1,T2,T3
    a(f'v_and_b32 v{n}, 15, v1'); a(f'v_lshrrev_b32 v{g}, 4, v1')
    a(f'v_lshrrev_b32 v{x}, 2, v{n}'); a(f'v_lshlrev_b32 v{x}, 4, v{x}')
    a(f'v_bfe_u32 v{y}, v{n}, 1, 1'); a(f'v_lshl_add_u32 v{x}, v{y}, 2, v{x}')
    a(f'v_and_b32 v{y}, 1, v{n}'); a(f'v_add_u32 v{x}, v{x}, v{y}')
    a(f'v_lshrrev_b32 v{y}, 1, v{g}'); a(f'v_lshl_add_u32 v{x}, v{y}, 1, v{x}')
    a(f'v_lshlrev_b32 v{x}, 4, v{x}')
    a('s_mul_i32 s40, s15, 10240')
    a('s_sub_u32 s41, 1, s15'); a('s_mul_i32 s41, s41, 10240'); a('s_add_u32 s41, s41, 20480')
    a(f'v_and_b32 v{y}, 1, v{g}'); a(f'v_cmp_eq_u32 vcc, 1, v{y}')
    a(f'v_mov_b32 v{T4}, s40'); a(f'v_mov_b32 v{T5}, s41'); a(f'v_cndmask_b32 v{T4}, v{T4}, v{T5}, vcc')
    a(f'v_add_u32 v{x}, v{x}, v{T4}')
    a('s_and_b32 s40, s3, 1'); a('s_lshl_b32 s41, s40, 7'); a('s_lshr_b32 s42, s3, 1'); a('s_mul_i32 s43, s42, 5120')
    a('s_add_u32 s41, s41, s43'); a('s_add_u32 s41, s41, 2048')
    a(f'v_add_u32 v{vG}, s41, v{x}')
    a('s_lshl_b32 s41, s40, 3'); a('s_add_u32 s41, s41, s43'); a(f's_add_u32 s41, s41, {LDS_A}')
    a(f'v_lshlrev_b32 v{vAR}, 4, v1'); a(f'v_add_u32 v{vAW}, s41, v{vAR}')
    if LDS_A: a(f'v_add_u32 v{vAR}, {LDS_A}, v{vAR}')
    a(f'v_mov_b32 v{vIDX}, 0x4444'); a(f'v_mov_b32 v{x}, 0xeeee'); a(f'v_cmp_lt_u32 vcc, 7, v{n}'); a(f'v_cndmask_b32 v{vIDX}, v{vIDX}, v{x}, vcc')
    a(f'v_lshrrev_b32 v{x}, 3, v{n}'); a(f'v_lshrrev_b32 v{y}, 1, v{g}'); a(f'v_cmp_eq_u32 s[40:41], v{x}, v{y}')
    a(f'v_and_b32 v{x}, 1, v{n}'); a(f'v_lshlrev_b32 v{x}, 4, v{x}'); a(f'v_mov_b32 v{y}, 0x3f80'); a(f'v_lshlrev_b32 v{x}, v{x}, v{y}')
    a(f'v_cndmask_b32 v{x}, 0, v{x}, s[40:41]')
    a(f'v_bfe_u32 v{y}, v{n}, 1, 2')
    for d in range(4):
        a(f'v_cmp_eq_u32 vcc, {d}, v{y}'); a(f'v_cndmask_b32 v{vSEL+d}, 0, v{x}, vcc')

def G_phase(a):
    Lp=a.nl('Gp')
    a.lab(Lp)
    if STAMPS==True: a('s_add_u32 s96, s96, 1')
    for i in range(5):
        a(f'global_load_dwordx4 {V(GL+4*i,4)}, v{vG}, s[36:37] offset:{i*1024-2048} sc1')
    if STAMPS=='ev':
        L=a.nl('e2'); a(f's_cmp_lg_u32 s30, {EVSTEP+1}'); a(f's_cbranch_scc1 {L} ; @fwd'); a('s_cmp_lg_u32 s96, 0'); a(f's_cbranch_scc1 {L} ; @in')
        a('s_waitcnt vmcnt(5)'); a('s_memrealtime s[82:83]'); a('s_waitcnt lgkmcnt(0)'); a('s_mov_b32 s96, s82')
        a('s_waitcnt vmcnt(0)'); a('s_memrealtime s[82:83]'); a('s_waitcnt lgkmcnt(0)'); a('s_mov_b32 s97, s82')
        a(f'{L}: ; @end')
    for i in range(5):
        a(f's_waitcnt vmcnt({4-i})')
        a(f'v_mfma_f32_16x16x32_bf16 {V(GD+4*i,4)}, {V(GL+4*i,4)}, {V(vSEL,4)}, 0')
    a(f'v_max3_u32 v{T0}, v{GL}, v{GL+2}, v{GL+4}')
    a(f'v_max3_u32 v{T0}, v{T0}, v{GL+6}, v{GL+8}')
    a(f'v_max3_u32 v{T0}, v{T0}, v{GL+10}, v{GL+12}')
    a(f'v_max3_u32 v{T0}, v{T0}, v{GL+14}, v{GL+16}')
    a(f'v_max_u32 v{T0}, v{T0}, v{GL+18}')
    a(f'v_cmp_eq_u32 vcc, -1, v{T0}')
    a.retry('s_cbranch_vccnz',Lp)
    stamp(a,0)
    if STAMPS=='ev':
        L=a.nl('e3'); a(f's_cmp_lg_u32 s30, {EVSTEP+1}'); a(f's_cbranch_scc1 {L} ; @fwd')
        a('s_memrealtime s[82:83]'); a('s_waitcnt lgkmcnt(0)'); a('s_mov_b32 s81, s82')
        a(f'{L}: ; @end')
    for i in range(5):
        a(f'v_cvt_pk_bf16_f32 v{GL+2*i}, v{GD+4*i}, v{GD+4*i+1}')
        a(f'v_cvt_pk_bf16_f32 v{GL+2*i+1}, v{GD+4*i+2}, v{GD+4*i+3}')
        a(f'ds_write_b64 v{vAW}, {V(GL+2*i,2)} offset:{i*1024}')
    a('s_waitcnt lgkmcnt(0)')
    a('s_barrier')
    stamp(a,1)
    for t in range(10):
        a(f'ds_read_b128 {V(AF+4*t,4)}, v{vAR} offset:{t*1024}')

def half_sum_pack(t0, t1, out):
    L=[]
    for i in range(4): L.append(f'v_permlane32_swap_b32 v{t0+i}, v{t1+i}')
    L.append(f'v_pk_add_f32 {V(t0,2)}, {V(t0,2)}, {V(t1,2)}')
    L.append(f'v_pk_add_f32 {V(t0+2,2)}, {V(t0+2,2)}, {V(t1+2,2)}')
    if out is not None:
        L.append(f'v_cvt_pk_bf16_f32 v{out}, v{t0}, v{t0+1}')
        L.append(f'v_cvt_pk_bf16_f32 v{out+1}, v{t0+2}, v{t0+3}')
    return L

def slot_base(dst, off, slotsz, stepreg, add=0, tmp='s44'):
    L=[]
    if add: L+= [f's_add_u32 {tmp}, {stepreg}, {add&0xffffffff}', f's_and_b32 {tmp}, {tmp}, 3']
    else: L.append(f's_and_b32 {tmp}, {stepreg}, 3')
    L+=[f's_mul_i32 {tmp}, {tmp}, {slotsz}', f's_add_u32 {tmp}, {tmp}, {off}', f's_add_u32 s{dst}, s4, {tmp}', f's_addc_u32 s{dst+1}, s5, 0']
    return L
def poll_flag(a, offreg_s):
    Lw=a.nl('pf')
    a(f'v_mov_b32 v{T0}, {offreg_s}')
    a.lab(Lw)
    a(f'global_load_dword v{T1}, v{T0}, s[4:5] sc1'); a('s_waitcnt vmcnt(0)')
    a(f'v_cmp_eq_u32 vcc, 0, v{T1}')
    a.retry('s_cbranch_vccnz',Lw)
def emit(a,L):
    for x in L: a(x)

STAMPS=False
SYNC=None
EVSTEP=30
def stamp(a,i):
    if not STAMPS: return
    if STAMPS=='ev':
        L=a.nl('ev')
        a(f's_cmp_lg_u32 s30, {EVSTEP}'); a(f's_cbranch_scc1 {L} ; @fwd')
        a('s_memrealtime s[82:83]'); a('s_waitcnt lgkmcnt(0)'); a(f's_mov_b32 s{84+i}, s82')
        a(f'{L}: ; @end')
        return
    a('s_memtime s[82:83]'); a('s_waitcnt lgkmcnt(0)'); a('s_sub_u32 s99, s82, s98'); a(f's_add_u32 s{84+i}, s{84+i}, s99'); a('s_mov_b32 s98, s82')
def stamp_init(a):
    if not STAMPS: return
    for i in range(14): a(f's_mov_b32 s{84+i}, 0')
    a('s_memtime s[82:83]'); a('s_waitcnt lgkmcnt(0)'); a('s_mov_b32 s98, s82')
def stamp_dump(a, cond_regs, base):
    if not STAMPS: return
    L=a.nl('sd')
    if STAMPS=='ev':
        a('s_lshl_b32 s40, s15, 4'); a('s_add_u32 s40, s40, s14'); a('s_lshl_b32 s40, s40, 2'); a('s_add_u32 s40, s40, s3'); a('s_lshl_b32 s40, s40, 6')
        a(f's_add_u32 s40, s40, {base if base==FL_END else FL_END+8192}')
    else:
        a('s_or_b32 s40, s15, s14'); a('s_cmp_lg_u32 s40, 0'); a(f's_cbranch_scc1 {L}')
        a('s_lshl_b32 s40, s3, 6'); a(f's_add_u32 s40, s40, {base}')
    a('v_mov_b32 v30, s40')
    for i in range(14):
        a(f'v_mov_b32 v31, s{84+i}'); a(f'global_store_dword v30, v31, s[4:5] offset:{4*i}')
    if STAMPS=='ev': a('v_mov_b32 v31, s81'); a('global_store_dword v30, v31, s[4:5] offset:56')
    a.lab(L)

def softmax_part1(a, D, S, vSL, vSH, vNI, vMW):
    c0,c1=T0,T1
    a(f'v_cvt_pk_bf16_f32 v{c0}, v{D}, v{D+1}'); a(f'v_cvt_pk_bf16_f32 v{c1}, v{D+2}, v{D+3}')
    a(f'v_lshlrev_b32 v{S}, 16, v{c0}'); a(f'v_and_b32 v{S+1}, 0xffff0000, v{c0}')
    a(f'v_lshlrev_b32 v{S+2}, 16, v{c1}'); a(f'v_and_b32 v{S+3}, 0xffff0000, v{c1}')
    a(f'v_pk_mul_f32 {V(S,2)}, {V(S,2)}, s[66:67]'); a(f'v_pk_mul_f32 {V(S+2,2)}, {V(S+2,2)}, s[66:67]')
    a(f'v_cvt_pk_bf16_f32 v{c0}, v{S}, v{S+1}'); a(f'v_cvt_pk_bf16_f32 v{c1}, v{S+2}, v{S+3}')
    a(f'v_perm_b32 v{S}, v{c0}, v{vNI}, v{vSL}'); a(f'v_perm_b32 v{S+1}, v{c0}, v{vNI}, v{vSH}')
    a(f'v_perm_b32 v{S+2}, v{c1}, v{vNI}, v{vSL}'); a(f'v_perm_b32 v{S+3}, v{c1}, v{vNI}, v{vSH}')
    m,u=T2,T4
    a(f'v_max3_f32 v{m}, v{S}, v{S+1}, v{S+2}'); a(f'v_max_f32 v{m}, v{m}, v{S+3}')
    a(f'v_mov_b32 v{u}, v{m}'); a(f'v_permlane16_swap_b32 v{m}, v{u}'); a(f'v_max_f32 v{m}, v{m}, v{u}')
    a(f'v_mov_b32 v{u}, v{m}'); a(f'v_permlane32_swap_b32 v{m}, v{u}'); a(f'v_max_f32 v{m}, v{m}, v{u}')
    nm=T5
    a(f'v_mul_f32 v{nm}, s68, v{m}')
    for i in range(4): a(f'v_fma_f32 v{S+i}, v{S+i}, s68, -v{nm}')
    for i in range(4): a(f'v_exp_f32 v{S+i}, v{S+i}')
    l=T3
    a(f'v_add_f32 v{l}, v{S}, v{S+1}'); a(f'v_add_f32 v{u}, v{S+2}, v{S+3}'); a(f'v_add_f32 v{l}, v{l}, v{u}')
    a(f'v_mov_b32 v{u}, v{l}'); a(f'v_permlane16_swap_b32 v{l}, v{u}'); a(f'v_add_f32 v{l}, v{l}, v{u}')
    a(f'v_mov_b32 v{u}, v{l}'); a(f'v_permlane32_swap_b32 v{l}, v{u}'); a(f'v_add_f32 v{l}, v{l}, v{u}')
    a(f'ds_write_b64 v{vMW}, {V(T2,2)}')

def gen_QK(a, safe=False, nsteps=NSTEP, prof=None):
    ST=' sc1' if safe else ''
    vFW=10; vFR=11; vKX=12; vPS=13; vPX=14; vPM=15; vZ=16; vZ2=17; vU0=18; vU1=19; vRW=20; vRR=21; vP=22; vKM=23; vMW=24; vMR=25
    vSL=26; vSH=27; vNI=28; vPR=29
    KX=112; UF=128; PMF=176
    FF=56; PXF=72; ZF=80
    SD=36; SE=40; ML=44
    RA=96
    n,g,x,y=T0,T1,T2,T3
    a.c('================ QK role ================')
    masks(a)
    a('s_load_dwordx2 s[8:9], s[0:1], %d'%KA['Wq']); a('s_load_dwordx2 s[10:11], s[0:1], %d'%KA['Wk'])
    a('s_waitcnt lgkmcnt(0)')
    a(f'v_lshrrev_b32 v{T4}, 4, v1'); a(f'v_lshlrev_b32 v{T4}, 13, v{T4}'); a(f'v_and_b32 v{T5}, 15, v1'); a(f'v_lshl_add_u32 v{T4}, v{T5}, 4, v{T4}')
    a('s_cmp_lt_u32 s3, 2'); a('s_cselect_b32 s12, s8, s10'); a('s_cselect_b32 s13, s9, s11')
    a('s_and_b32 s40, s3, 1'); a('s_lshl_b32 s40, s40, 18')
    a('s_lshl_b32 s41, s16, 8'); a('s_add_u32 s40, s40, s41')
    a('s_add_u32 s12, s12, s40'); a('s_addc_u32 s13, s13, 0')
    a('s_mov_b32 s43, 32768')
    def srcs(r):
        a(f's_add_u32 s40, s12, {r*64*8192}'); a('s_addc_u32 s41, s13, 0')
    tr_addr16(a,vFW)
    def trs(r,bufoff):
        tr_B16(a,vFW,bufoff,[(0,0,(0*10+r)*8),(0,1,(1*10+r)*8),(1,0,(2*10+r)*8),(1,1,(3*10+r)*8)])
    load_weights(a,srcs,trs)
    if SYNC: SYNC(a)
    common_consts(a)
    a(f'v_and_b32 v{n}, 15, v1'); a(f'v_lshrrev_b32 v{g}, 4, v1')
    a(f'v_lshrrev_b32 v{x}, 5, v1'); a(f'v_lshlrev_b32 v{x}, 4, v{x}'); a(f'v_add_u32 v{x}, v{x}, v{n}')
    a('s_lshl_b32 s40, s3, 5'); a(f'v_add_u32 v{x}, s40, v{x}'); a(f'v_lshlrev_b32 v{x}, 5, v{x}')
    a(f'v_and_b32 v{y}, 1, v{g}'); a(f'v_lshl_add_u32 v{x}, v{y}, 3, v{x}'); a(f'v_add_u32 v{vFW}, {LDS_F}, v{x}')
    a(f'v_bfe_u32 v{x}, v1, 2, 2'); a(f'v_lshl_add_u32 v{x}, v{g}, 3, v{x}'); a(f'v_lshlrev_b32 v{x}, 5, v{x}')
    a(f'v_and_b32 v{y}, 3, v1'); a(f'v_lshl_add_u32 v{x}, v{y}, 3, v{x}'); a(f'v_add_u32 v{vFR}, {LDS_F}, v{x}')
    a('s_sub_u32 s40, s3, 1'); a('s_and_b32 s40, s40, 1'); a('s_lshl_b32 s40, s40, 8'); a('s_add_u32 s40, s40, 4096')
    a(f'v_lshlrev_b32 v{x}, 9, v{g}'); a(f'v_lshl_add_u32 v{x}, v{n}, 4, v{x}'); a(f'v_add_u32 v{vKX}, s40, v{x}')
    a(f'v_lshlrev_b32 v{x}, 3, v{g}'); a(f'v_add_u32 v{x}, v{x}, v{n}'); a(f'v_lshlrev_b32 v{x}, 4, v{x}')
    a('s_sub_u32 s40, s3, 1'); a('s_and_b32 s40, s40, 1'); a('s_lshl_b32 s40, s40, 3')
    a('s_lshl_b32 s41, s14, 9'); a('s_add_u32 s40, s40, s41'); a('s_lshl_b32 s41, s15, 13'); a('s_add_u32 s40, s40, s41')
    a(f'v_add_u32 v{vPS}, s40, v{x}')
    a(f'v_and_b32 v{x}, 1, v{g}'); a(f'v_lshlrev_b32 v{x}, 3, v{x}'); a(f'v_lshl_add_u32 v{x}, v{n}, 4, v{x}')
    a('s_lshl_b32 s41, s14, 7'); a('s_lshl_b32 s42, s15, 11'); a('s_add_u32 s41, s41, s42'); a(f's_add_u32 s41, s41, {PM_REL}')
    a(f'v_add_u32 v{x}, s41, v{x}')
    a('s_cmp_eq_u32 s3, 0'); a('s_cselect_b64 vcc, -1, 0'); a(f'v_cndmask_b32 v{vPS}, v{vPS}, v{x}, vcc')
    Lr0=a.nl('r0'); Lr1=a.nl('r1'); Lrd=a.nl('rd')
    a('s_cmp_ge_u32 s3, 2'); a(f's_cbranch_scc1 {Lr1}')
    a('s_cmp_eq_u32 s3, 0'); a(f's_cbranch_scc1 {Lr0}')
    a('s_lshl_b32 s40, s14, 9'); a('s_lshl_b32 s42, s15, 13'); a('s_add_u32 s40, s40, s42'); a(f'v_and_b32 v{y}, 31, v1'); a(f'v_lshlrev_b32 v{y}, 4, v{y}'); a(f'v_add_u32 v{vPR}, s40, v{y}')
    a(f's_branch {Lrd}')
    a.lab(Lr0)
    a('s_lshl_b32 s40, s14, 7'); a('s_lshl_b32 s42, s15, 11'); a('s_add_u32 s40, s40, s42'); a(f's_add_u32 s40, s40, {PM_REL}'); a(f'v_and_b32 v{y}, 7, v1'); a(f'v_lshlrev_b32 v{y}, 4, v{y}'); a(f'v_add_u32 v{vPR}, s40, v{y}')
    a(f's_branch {Lrd}')
    a.lab(Lr1)
    a('s_cmp_lt_u32 s14, 8'); a('s_cselect_b32 s40, 3, 2'); a(f'v_cmp_gt_u32 vcc, s40, v{g}'); a(f'v_cndmask_b32 v{y}, 0, v{g}, vcc')
    a(f'v_lshlrev_b32 v{y}, 4, v{y}'); a(f'v_add_u32 v{y}, s14, v{y}'); a(f'v_lshlrev_b32 v{y}, 4, v{y}'); a(f'v_add_u32 v{y}, v{y}, v{n}'); a(f'v_lshlrev_b32 v{y}, 4, v{y}')
    a('s_mul_i32 s40, s15, 10240'); a('s_cmp_eq_u32 s3, 2'); a('s_cselect_b32 s41, 20480, 0'); a('s_add_u32 s40, s40, s41'); a(f'v_add_u32 v{vPR}, s40, v{y}')
    a.lab(Lrd)
    a('s_lshl_b32 s40, s15, 13'); a('s_lshl_b32 s41, s3, 11'); a('s_add_u32 s40, s40, s41')
    a(f'v_lshlrev_b32 v{x}, 4, v1'); a(f'v_add_u32 v{vPX}, s40, v{x}')
    a('s_lshl_b32 s40, s15, 11'); a('s_lshl_b32 s41, s3, 9'); a('s_add_u32 s40, s40, s41'); a(f's_add_u32 s40, s40, {PM_REL}')
    a(f'v_lshlrev_b32 v{x}, 7, v{g}'); a(f'v_lshl_add_u32 v{x}, v{n}, 4, v{x}'); a(f'v_add_u32 v{vPM}, s40, v{x}')
    a('s_mul_i32 s40, s15, 196608'); a('s_mul_i32 s41, s14, 12288'); a('s_add_u32 s40, s40, s41'); a('s_mul_i32 s41, s3, 3072'); a('s_add_u32 s40, s40, s41')
    a(f'v_mul_u32_u24 v{x}, 768, v{g}'); a(f'v_lshl_add_u32 v{x}, v{n}, 4, v{x}'); a(f'v_add_u32 v{vZ}, s40, v{x}')
    a('s_movk_i32 s41, 256'); a('s_cmp_lt_u32 s14, 8'); a('s_cselect_b32 s40, 512, s41'); a(f'v_add_u32 v{vZ2}, s40, v{vZ}')
    a('s_mul_i32 s40, s15, 786432'); a('s_mul_i32 s41, s14, 49152'); a('s_add_u32 s40, s40, s41'); a('s_mul_i32 s41, s3, 12288'); a('s_add_u32 s40, s40, s41')
    a('s_add_u32 s40, s40, 4096')
    a(f'v_lshlrev_b32 v{x}, 4, v1'); a(f'v_add_u32 v{vU0}, s40, v{x}'); a(f'v_add_u32 v{vU1}, 8192, v{vU0}')
    a('s_mul_i32 s40, s3, 1536'); a(f's_add_u32 s40, s40, {LDS_R}'); a(f'v_lshlrev_b32 v{x}, 4, v1'); a(f'v_add_u32 v{vRW}, s40, v{x}')
    a('s_lshl_b32 s40, s3, 2'); a(f'v_add_u32 v{x}, s40, v{g}'); a(f'v_lshlrev_b32 v{x}, 3, v{x}'); a(f'v_add_u32 v{x}, v{x}, v{n}'); a(f'v_subrev_u32 v{x}, 8, v{x}'); a(f'v_lshlrev_b32 v{vKM}, 4, v{x}')
    a(f'v_lshlrev_b32 v{x}, 3, v{n}'); a(f'v_add_u32 v{vMR}, {LDS_ML}, v{x}'); a('s_lshl_b32 s40, s3, 7'); a(f'v_add_u32 v{vMW}, s40, v{vMR}')
    a(f'v_lshrrev_b32 v{n}, 5, v0'); a(f'v_bfe_u32 v{g}, v0, 1, 4'); a(f'v_and_b32 v{x}, 1, v0')
    a(f'v_lshlrev_b32 v{y}, 5, v{n}'); a(f'v_lshl_add_u32 v{y}, v{x}, 4, v{y}'); a(f'v_add_u32 v{y}, v{y}, v{g}'); a(f'v_lshlrev_b32 v{y}, 4, v{y}'); a(f'v_add_u32 v{vRR}, {LDS_R}, v{y}')
    a(f'v_lshlrev_b32 v{y}, 4, v{n}'); a(f'v_add_u32 v{y}, s14, v{y}'); a(f'v_lshlrev_b32 v{y}, 4, v{y}'); a(f'v_add_u32 v{y}, v{y}, v{g}'); a(f'v_lshlrev_b32 v{y}, 4, v{y}')
    a(f'v_lshl_add_u32 v{y}, v{x}, 3, v{y}'); a('s_mul_i32 s40, s15, 10240'); a(f'v_add_u32 v{vP}, s40, v{y}')
    a(f'v_mov_b32 v{vSL}, 0x05040c0c'); a(f'v_mov_b32 v{vSH}, 0x07060c0c'); a(f'v_mov_b32 v{vNI}, 0xff800000')
    a('s_cmp_eq_u32 s3, 0'); a('s_cselect_b32 s40, -1, 0'); a('s_mov_b32 s41, 0')
    a(f'v_mov_b32 v{x}, 0x03020100'); a(f'v_cndmask_b32 v{vSL}, v{vSL}, v{x}, s[40:41]'); a(f'v_cndmask_b32 v{vSH}, v{vSH}, v{x}, s[40:41]')
    for i in range(4): a(f'v_mov_b32 v{PMF+i}, 0')
    for i in range(4): a(f'v_mov_b32 v{188+i}, -1')
    for i in range(16): a(f'v_mov_b32 v{ACC+i}, 0')
    a('s_cmp_eq_u32 s3, 0'); a('s_cselect_b32 s74, -1, 0'); a('s_cselect_b32 s75, -1, 0')
    a('s_cmp_eq_u32 s3, 1'); a('s_cselect_b32 s40, 1, 0'); a('s_cmp_lt_u32 s14, 8'); a('s_cselect_b32 s41, 1, 0'); a('s_and_b32 s40, s40, s41')
    a('s_cmp_eq_u32 s40, 1'); a('s_cselect_b32 s74, -1, s74')
    a('s_or_b32 s76, s74, s75')
    a('s_cmp_eq_u32 s3, 0'); a('s_cselect_b32 s78, s62, s60'); a('s_cselect_b32 s79, s63, s61')
    a('s_load_dwordx2 s[8:9], s[0:1], %d'%KA['mem0'])
    a(f's_add_u32 s36, s4, {P_OFF+3*P_SLOT}'); a('s_addc_u32 s37, s5, 0')
    a('s_waitcnt lgkmcnt(0)')
    Lskip=a.nl('Pinit'); Lz=a.nl('Pz')
    a('s_cmp_eq_u32 s76, 0'); a(f's_cbranch_scc1 {Lskip}')
    a('s_mov_b64 exec, s[74:75]')
    a('s_mul_i32 s40, s15, 10240'); a(f'v_subrev_u32 v{T0}, s40, v{vP}'); a(f'v_lshrrev_b32 v{T0}, 4, v{T0}'); a(f'v_lshlrev_b32 v{T0}, 1, v{T0}')
    a(f'v_and_b32 v{T1}, 1, v0'); a(f'v_mul_u32_u24 v{T1}, 5120, v{T1}'); a(f'v_add_u32 v{T0}, v{T0}, v{T1}')
    a(f'v_mov_b32 v{T2}, 0'); a(f'v_mov_b32 v{T3}, 0')
    a('s_cmp_lg_u32 s15, 0'); a(f's_cbranch_scc1 {Lz}')
    a(f'global_load_ushort v{T2}, v{T0}, s[8:9]'); a(f'global_load_ushort v{T4}, v{T0}, s[8:9] offset:1280')
    a(f'global_load_ushort v{T3}, v{T0}, s[8:9] offset:2560'); a(f'global_load_ushort v{T5}, v{T0}, s[8:9] offset:3840')
    a('s_waitcnt vmcnt(0)')
    a(f'v_lshl_or_b32 v{T2}, v{T4}, 16, v{T2}'); a(f'v_lshl_or_b32 v{T3}, v{T5}, 16, v{T3}')
    a(f'v_min_u32 v{T2}, s70, v{T2}'); a(f'v_min_u32 v{T3}, s70, v{T3}')
    a.lab(Lz)
    a(f'global_store_dwordx2 v{vP}, {V(T2,2)}, s[36:37]{ST}')
    a(f'v_add_u32 v{T0}, 20480, v{vP}')
    a(f'global_store_dwordx2 v{T0}, {V(T2,2)}, s[36:37] sc1')
    a('s_mov_b64 exec, -1')
    a.lab(Lskip)
    def kflag_off(add):
        return [f's_add_u32 s46, s30, {add}', 's_lshl_b32 s46, s46, 8','s_lshr_b32 s47, s16, 1','s_add_u32 s47, s47, 16','s_lshl_b32 s47, s47, 2','s_add_u32 s46, s46, s47',f's_add_u32 s46, s46, {QKF_OFF}']
    def kx_load(add):
        L=[f's_add_u32 s46, s30, {add}','s_lshl_b32 s46, s46, 5','s_add_u32 s46, s46, s16','s_lshl_b32 s46, s46, 13',f's_add_u32 s46, s46, {WS_K}','s_add_u32 s48, s4, s46','s_addc_u32 s49, s5, 0']
        for t in range(4): L.append(f'global_load_dwordx4 {V(KX+4*t,4)}, v{vKX}, s[48:49] offset:{t*2048-4096} sc1')
        return L
    def uflag_wait(add):
        Lw=a.nl('uf')
        a(f's_add_u32 s46, s30, {add}'); a('s_lshl_b32 s46, s46, 7'); a('s_lshl_b32 s47, s15, 6'); a('s_add_u32 s46, s46, s47'); a(f's_add_u32 s46, s46, {UF_OFF}')
        a(f'v_and_b32 v{T0}, 15, v1'); a(f'v_lshlrev_b32 v{T0}, 2, v{T0}'); a(f'v_add_u32 v{T0}, s46, v{T0}')
        a.lab(Lw)
        a(f'global_load_dword v{T1}, v{T0}, s[4:5] sc1'); a('s_waitcnt vmcnt(0)'); a(f'v_cmp_eq_u32 vcc, 0, v{T1}'); a.retry('s_cbranch_vccnz',Lw)
    def km_store():
        a('s_lshl_b32 s46, s3, 10'); a(f'v_add_u32 v{T0}, s46, v{vFR}')
        a(f'ds_read_b64_tr_b16 {V(T2,2)}, v{T0}'); a(f'ds_read_b64_tr_b16 {V(T4,2)}, v{T0} offset:128')
        a('s_lshl_b32 s46, s30, 5'); a('s_add_u32 s46, s46, s16'); a('s_lshl_b32 s46, s46, 11'); a(f's_add_u32 s46, s46, {WS_KM}')
        a('s_add_u32 s48, s4, s46'); a('s_addc_u32 s49, s5, 0')
        a('s_waitcnt lgkmcnt(0)')
        a('s_mov_b64 exec, s[72:73]')
        a(f'global_store_dwordx4 v{vKM}, {V(T2,4)}, s[48:49] sc1')
        a('s_mov_b64 exec, -1')
    def km_flag(add):
        a(f's_add_u32 s46, s30, {add&0xffffffff}'); a('s_lshl_b32 s46, s46, 5'); a('s_add_u32 s46, s46, s16'); a('s_lshl_b32 s46, s46, 2'); a(f's_add_u32 s46, s46, {KMF_OFF}')
        a(f'v_mov_b32 v{T0}, s46'); a(f'v_mov_b32 v{T1}, 1')
        a(f'global_store_dword v{T0}, v{T1}, s[4:5] sc1')
    FLK=184; FLU=185; FA=186
    def u_base(add):
        return [f's_add_u32 s44, s30, {add}', f's_mul_i32 s44, s44, {U_SEG}', 's_add_u32 s50, s4, s44', 's_addc_u32 s51, s5, 0', f's_add_u32 s50, s50, {WS_U}', 's_addc_u32 s51, s51, 0']
    def u_load(j,k):
        lin=(j*3+k)*1024
        vo,off=(vU0,lin-4096) if lin<8192 else (vU1,lin-8192-4096)
        return f'global_load_dwordx4 {V(UF+(k*4+j)*4,4)}, v{vo}, s[50:51] offset:{off} sc1'
    def uflag_addr(add):
        return [f's_add_u32 s46, s30, {add}','s_lshl_b32 s46, s46, 7','s_lshl_b32 s47, s15, 6','s_add_u32 s46, s46, s47',f's_add_u32 s46, s46, {UF_OFF}',
                f'v_and_b32 v{FA+1}, 15, v1',f'v_lshlrev_b32 v{FA+1}, 2, v{FA+1}',f'v_add_u32 v{FA+1}, s46, v{FA+1}']
    a('s_mov_b32 s30, 0')
    emit(a,kflag_off(0)); poll_flag(a,'s46'); uflag_wait(0)
    emit(a,kx_load(0)); emit(a,u_base(0))
    for j in range(4):
        for k in range(2): a(u_load(j,k))
    if prof: a('s_memtime s[80:81]'); a('s_waitcnt lgkmcnt(0)')
    stamp_init(a)
    Lstep=a.nl('QKstep'); Lend=a.nl('QKend'); Llast=a.nl('QKlast')
    a.lab(Lstep)
    G_phase(a)
    KMR=180
    a('s_lshl_b32 s46, s3, 10'); a(f'v_add_u32 v{T0}, s46, v{vFR}')
    a(f'ds_read_b64_tr_b16 {V(KMR,2)}, v{T0}'); a(f'ds_read_b64_tr_b16 {V(KMR+2,2)}, v{T0} offset:128')
    Lnf=a.nl('nf'); a('s_cmp_lg_u32 s3, 3'); a(f's_cbranch_scc1 {Lnf} ; @fwd')
    a('s_cmp_lt_u32 s30, 2'); a(f's_cbranch_scc1 {Lnf} ; @in'); km_flag(-2)
    a(f'{Lnf}: ; @end')
    qm=[]
    for t in range(10):
        qm.append(f's_waitcnt lgkmcnt({9-t+2})')
        for tl in (0,1): qm.append(f'v_smfmac_f32_16x16x64_bf16 {V(ACC+4*tl,4)}, {V(AF+4*t,4)}, {wr((tl*10+t)*8,8)}, v{vIDX}')
    km=[]
    for t in range(10):
        for tl in (2,3): km.append(f'v_smfmac_f32_16x16x64_bf16 {V(ACC+4*tl,4)}, {V(AF+4*t,4)}, {wr((tl*10+t)*8,8)}, v{vIDX}')
    fill=slot_base(52,PP_OFF,PP_SLOT,'s30')+slot_base(54,Z_OFF,Z_SLOT,'s30')+slot_base(36,P_OFF,P_SLOT,'s30')
    fill+=['s_add_u32 s40, s30, -1','s_and_b32 s40, s40, 3',f's_mul_i32 s40, s40, {PP_SLOT}',f's_add_u32 s40, s40, {PP_OFF}',
           's_add_u32 s41, s30, -2','s_and_b32 s41, s41, 3',f's_mul_i32 s41, s41, {P_SLOT}',f's_add_u32 s41, s41, {P_OFF}',
           's_cmp_lt_u32 s3, 2','s_cselect_b32 s40, s40, s41','s_add_u32 s38, s4, s40','s_addc_u32 s39, s5, 0']
    fill+=['s_add_u32 s46, s30, -1','s_lshl_b32 s46, s46, 5','s_add_u32 s46, s46, s16','s_lshl_b32 s46, s46, 11',f's_add_u32 s46, s46, {WS_KM}','s_add_u32 s48, s4, s46','s_addc_u32 s49, s5, 0']
    nm=0; ul=[u_load(j,2) for j in range(4)]
    for m in qm:
        a(m)
        if m.startswith('v_smfmac'):
            nm+=1
            for _ in range(2):
                if fill: a(fill.pop(0))
            if nm in (6,14) : a(ul.pop(0))
    emit(a,fill)
    ep=half_sum_pack(ACC,ACC+4,GL)+[f'ds_write_b64 v{vFW}, {V(GL,2)}']
    RST=' sc1'
    for i,m in enumerate(km):
        a(m)
        if i>=3 and ep: a(ep.pop(0))
        elif i in (13,17) : a(ul.pop(0))
        if i==0:
            Lk0=a.nl('k0'); a('s_waitcnt lgkmcnt(0)'); a('s_cmp_eq_u32 s30, 0'); a(f's_cbranch_scc1 {Lk0} ; @fwd')
            a('s_mov_b64 exec, s[72:73]'); a(f'global_store_dwordx4 v{vKM}, {V(KMR,4)}, s[48:49] sc1'); a('s_mov_b64 exec, -1'); a(f'{Lk0}: ; @end')
        if i==15:
            if safe: a(f'global_store_dwordx4 v{vPR}, v[188:191], s[38:39] sc1')
            else:
                Ls=a.nl('rs'); Le=a.nl('re')
                a('s_cmp_eq_u32 s3, 2'); a(f's_cbranch_scc1 {Ls} ; @fwd'); a(f'global_store_dwordx4 v{vPR}, v[188:191], s[38:39]'); a(f's_branch {Le} ; @in')
                a.lab(Ls); a(f'global_store_dwordx4 v{vPR}, v[188:191], s[38:39] sc1'); a(f'{Le}: ; @end')
    emit(a,ep)
    emit(a,half_sum_pack(ACC+8,ACC+12,GL+2)); a(f'ds_write_b64 v{vFW}, {V(GL+2,2)} offset:16')
    a('s_waitcnt lgkmcnt(0)'); stamp(a,2); a('s_barrier'); stamp(a,3)
    a(f's_cmp_eq_u32 s30, {nsteps-1}'); a(f's_cbranch_scc1 {Llast}')
    Lw3=a.nl('w3'); Lb3=a.nl('b3'); Lx=a.nl('xs'); Lsm=a.nl('sm')
    a('s_cmp_eq_u32 s3, 3'); a(f's_cbranch_scc1 {Lw3}')
    for t in range(4):
        a(f'ds_read_b64_tr_b16 {V(FF+4*t,2)}, v{vFR} offset:{t*1024}'); a(f'ds_read_b64_tr_b16 {V(FF+4*t+2,2)}, v{vFR} offset:{t*1024+128}')
    a('s_cmp_lg_u32 s3, 0'); a(f's_cbranch_scc1 {Lx}')
    for t in range(4):
        a(f's_waitcnt lgkmcnt({6-2*t})')
        a(f'v_mfma_f32_16x16x32_bf16 {V(SD,4)}, {V(FF+4*t,4)}, {V(FF+4*t,4)}, {"0" if t==0 else V(SD,4)}')
    a(f's_branch {Lsm}')
    a.lab(Lx)
    for t in range(4):
        a(f's_waitcnt lgkmcnt({6-2*t})')
        a(f'v_mfma_f32_16x16x32_bf16 {V(SD,4)}, {V(KX+4*t,4)}, {V(FF+4*t,4)}, {"0" if t==0 else V(SD,4)}')
    a.lab(Lsm)
    softmax_part1(a,SD,SE,vSL,vSH,vNI,vMW)
    a('s_waitcnt lgkmcnt(0)')
    a(f's_branch {Lb3}')
    a.lab(Lw3)
    a.lab(Lb3)
    stamp(a,4)
    a('s_barrier')
    stamp(a,5)
    Lsh=a.nl('sh')
    a('s_cmp_eq_u32 s3, 3'); a(f's_cbranch_scc1 {Lsh}')
    for k in range(3): a(f'ds_read_b64 {V(ML+2*k,2)}, v{vMR} offset:{k*128}')
    a('s_waitcnt lgkmcnt(0)')
    m,nm,l=T0,T1,T4
    a(f'v_max3_f32 v{m}, v{ML}, v{ML+2}, v{ML+4}')
    a(f'v_mul_f32 v{nm}, s68, v{m}')
    for k in range(3): a(f'v_fma_f32 v{ML+2*k}, v{ML+2*k}, s68, -v{nm}')
    a(f'v_fma_f32 v{T2}, v{T2}, s68, -v{nm}')
    for k in range(3): a(f'v_exp_f32 v{ML+2*k}, v{ML+2*k}')
    a(f'v_exp_f32 v{T2}, v{T2}')
    a(f'v_mul_f32 v{l}, v{ML}, v{ML+1}'); a(f'v_fmac_f32 v{l}, v{ML+2}, v{ML+3}'); a(f'v_fmac_f32 v{l}, v{ML+4}, v{ML+5}')
    a(f'v_rcp_f32 v{l}, v{l}')
    a(f'v_mul_f32 v{T2}, v{T2}, v{l}'); a(f'v_mov_b32 v{T3}, v{T2}')
    a(f'v_pk_mul_f32 {V(SE,2)}, {V(SE,2)}, {V(T2,2)}'); a(f'v_pk_mul_f32 {V(SE+2,2)}, {V(SE+2,2)}, {V(T2,2)}')
    a(f'v_cvt_pk_bf16_f32 v{T0}, v{SE}, v{SE+1}'); a(f'v_cvt_pk_bf16_f32 v{T1}, v{SE+2}, v{SE+3}')
    a(f'v_min_u32 v{T0}, s70, v{T0}'); a(f'v_min_u32 v{T1}, s70, v{T1}')
    a('s_mov_b64 exec, s[78:79]')
    a(f'global_store_dwordx2 v{vPS}, {V(T0,2)}, s[52:53]{ST}')
    a('s_mov_b64 exec, -1')
    a.lab(Lsh)
    stamp(a,6)
    zl=[f'global_load_dwordx4 {V(ZF,4)}, v{vZ}, s[54:55] sc1', f'global_load_dwordx4 {V(ZF+4,4)}, v{vZ}, s[54:55] offset:256 sc1', f'global_load_dwordx4 {V(ZF+8,4)}, v{vZ2}, s[54:55] sc1']
    emit(a,zl)
    Lp=a.nl('Sp')
    a.lab(Lp)
    if STAMPS==True: a('s_add_u32 s97, s97, 1')
    a(f'global_load_dwordx4 {V(PXF,4)}, v{vPX}, s[52:53] sc1')
    a(f'global_load_dwordx4 {V(PXF+4,4)}, v{vPX}, s[52:53] offset:1024 sc1')
    a('s_mov_b64 exec, s[60:61]')
    a(f'global_load_dwordx4 {V(PMF,4)}, v{vPM}, s[52:53] sc1')
    a('s_mov_b64 exec, -1')
    a('s_waitcnt vmcnt(0)')
    a(f'v_max3_u32 v{T0}, v{PXF}, v{PXF+2}, v{PXF+4}'); a(f'v_max3_u32 v{T0}, v{T0}, v{PXF+6}, v{PMF}'); a(f'v_max_u32 v{T0}, v{T0}, v{PMF+2}')
    a(f'v_cmp_eq_u32 vcc, -1, v{T0}'); a.retry('s_cbranch_vccnz',Lp)
    Lzp=a.nl('Zp'); Lzo=a.nl('Zo')
    a.lab(Lzp)
    a(f'v_max3_u32 v{T0}, v{ZF}, v{ZF+2}, v{ZF+4}'); a(f'v_max3_u32 v{T0}, v{T0}, v{ZF+6}, v{ZF+8}'); a(f'v_max_u32 v{T0}, v{T0}, v{ZF+10}')
    a(f'v_cmp_eq_u32 vcc, -1, v{T0}'); a(f's_cbranch_vccz {Lzo}')
    emit(a,zl); a('s_waitcnt vmcnt(0)'); a('s_add_u32 s100, s100, 1'); a('s_cmp_lt_u32 s100, 0x1000000'); a(f's_cbranch_scc1 {Lzp}'); a('s_endpgm')
    a.lab(Lzo)
    stamp(a,7)
    for k in range(3): a(f'v_mfma_f32_16x16x32_bf16 {V(RA+4*k,4)}, {V(PMF,4)}, {V(ZF+4*k,4)}, 0')
    for q in range(2):
        for k in range(3): a(f'v_smfmac_f32_16x16x64_bf16 {V(RA+4*k,4)}, {V(PXF+4*q,4)}, {V(UF+(k*4+2*q)*4,8)}, v{vIDX}')
    emit(a,half_sum_pack(RA,RA+4,None))
    a(f'ds_write_b128 v{vRW}, {V(RA,4)}')
    for i in range(4): a(f'v_mov_b32 v{RA+4+i}, v{RA+8+i}')
    emit(a,half_sum_pack(RA+8,RA+4,None))
    a('s_mov_b64 exec, s[64:65]'); a(f'ds_write_b128 v{vRW}, {V(RA+8,4)} offset:1024'); a('s_mov_b64 exec, -1')
    a('s_waitcnt lgkmcnt(0)'); stamp(a,8); a('s_barrier'); stamp(a,9)
    Lnf2=a.nl('nfin')
    a('s_cmp_eq_u32 s76, 0'); a(f's_cbranch_scc1 {Lnf2}')
    a('s_mov_b64 exec, s[74:75]')
    for w in range(4): a(f'ds_read_b128 {V(GL+4*w,4)}, v{vRR} offset:{w*1536}')
    a(f'v_add_u32 v{T2}, 20480, v{vP}')
    a('s_waitcnt lgkmcnt(2)')
    a(f'v_pk_add_f32 {V(GL,2)}, {V(GL,2)}, {V(GL+4,2)}'); a(f'v_pk_add_f32 {V(GL+2,2)}, {V(GL+2,2)}, {V(GL+6,2)}')
    a('s_waitcnt lgkmcnt(0)')
    a(f'v_pk_add_f32 {V(GL+8,2)}, {V(GL+8,2)}, {V(GL+12,2)}'); a(f'v_pk_add_f32 {V(GL+10,2)}, {V(GL+10,2)}, {V(GL+14,2)}')
    a(f'v_pk_add_f32 {V(GL,2)}, {V(GL,2)}, {V(GL+8,2)}'); a(f'v_pk_add_f32 {V(GL+2,2)}, {V(GL+2,2)}, {V(GL+10,2)}')
    a(f'v_cvt_pk_bf16_f32 v{T0}, v{GL}, v{GL+1}'); a(f'v_cvt_pk_bf16_f32 v{T1}, v{GL+2}, v{GL+3}')
    a(f'v_min_u32 v{T0}, s70, v{T0}'); a(f'v_min_u32 v{T1}, s70, v{T1}')
    a(f'global_store_dwordx2 v{T2}, {V(T0,2)}, s[36:37] sc1')
    a(f'global_store_dwordx2 v{vP}, {V(T0,2)}, s[36:37]{ST}')
    stamp(a,10)
    a('s_mov_b64 exec, -1')
    a.lab(Lnf2)
    Lnkx=a.nl('nkx')
    a('s_sub_u32 s46, s3, 1'); a('s_cmp_gt_u32 s46, 1'); a(f's_cbranch_scc1 {Lnkx}')
    emit(a,kx_load(1))
    a.lab(Lnkx)
    emit(a,u_base(1))
    for j in range(4):
        for k in range(2): a(u_load(j,k))
    for i in range(16): a(f'v_mov_b32 v{ACC+i}, 0')
    stamp(a,11)
    a('s_add_u32 s30, s30, 1')
    a(f's_branch {Lstep}')
    a.lab(Llast)
    km_store()
    a('s_waitcnt vmcnt(0)'); a('s_barrier')
    Ld=a.nl('d'); a('s_cmp_lg_u32 s3, 3'); a(f's_cbranch_scc1 {Ld}'); km_flag(-1); km_flag(0); a.lab(Ld)
    if prof: prof(a)
    stamp_dump(a,None,FL_END)
    a('s_waitcnt vmcnt(0)')
    a('s_endpgm')

def vo_weight_load(a, vtmp, perm_e=False):
    a('s_load_dwordx2 s[8:9], s[0:1], %d'%KA['Wv']); a('s_load_dwordx2 s[10:11], s[0:1], %d'%KA['Wo'])
    a('s_waitcnt lgkmcnt(0)')
    a('s_lshl_b32 s40, s3, 18'); a('s_lshl_b32 s41, s16, 8'); a('s_add_u32 s40, s40, s41')
    a('s_add_u32 s8, s8, s40'); a('s_addc_u32 s9, s9, 0')
    a('s_mul_i32 s40, s16, 163840'); a('s_mul_i32 s41, s3, 40960'); a('s_add_u32 s40, s40, s41')
    a('s_add_u32 s10, s10, s40'); a('s_addc_u32 s11, s11, 0')
    def srcs(r):
        if r<5:
            a(f's_add_u32 s40, s8, {r*128*8192}'); a('s_addc_u32 s41, s9, 0'); a('s_mov_b32 s43, 32768')
            a(f'v_lshrrev_b32 v{T4}, 4, v1'); a(f'v_lshlrev_b32 v{T4}, 13, v{T4}')
        else:
            a(f's_add_u32 s40, s10, {(r-5)*256}'); a('s_addc_u32 s41, s11, 0'); a('s_mov_b32 s43, 5120')
            a(f'v_lshrrev_b32 v{T4}, 4, v1'); a(f'v_mul_u32_u24 v{T4}, 1280, v{T4}')
        a(f'v_and_b32 v{T5}, 15, v1'); a(f'v_lshl_add_u32 v{T4}, v{T5}, 4, v{T4}')
    tr_addr16(a,vtmp)
    def trs(r,bufoff):
        if r<5: bl=[(m,tp,(tp*10+2*r+m)*8) for m in range(2) for tp in range(2)]
        else:
            cb=r-5; bl=[(m,tp,160+((2*cb+tp)*2+m)*8) for m in range(2) for tp in range(2)]
        tr_B16(a,vtmp,bufoff,bl)
    load_weights(a,srcs,trs)

def gen_VO(a, safe=False, nsteps=NSTEP, prof=None):
    ST=' sc1' if safe else ''
    vTW=10; vTR=11; vZS=13; vZS2=14
    LDS_T=LDS_F
    A2=36
    ZA=128
    ZP=112
    n,g,x,y=T0,T1,T2,T3
    a.c('================ VO role ================')
    masks(a)
    vo_weight_load(a,vTW)
    if SYNC: SYNC(a)
    common_consts(a)
    a(f'v_and_b32 v{n}, 15, v1'); a(f'v_lshrrev_b32 v{g}, 4, v1')
    a('s_lshr_b32 s40, s3, 1'); a('s_lshl_b32 s40, s40, 5'); a('s_and_b32 s41, s3, 1'); a('s_lshl_b32 s41, s41, 4'); a('s_add_u32 s40, s40, s41')
    a(f'v_lshrrev_b32 v{x}, 5, v1'); a(f'v_lshlrev_b32 v{x}, 3, v{x}'); a(f'v_add_u32 v{x}, s40, v{x}')
    a(f'v_lshrrev_b32 v{y}, 2, v{n}'); a(f'v_lshl_add_u32 v{x}, v{y}, 1, v{x}'); a(f'v_and_b32 v{y}, 1, v{n}'); a(f'v_add_u32 v{x}, v{x}, v{y}')
    a(f'v_lshlrev_b32 v{x}, 5, v{x}'); a(f'v_bfe_u32 v{y}, v{n}, 1, 1'); a(f'v_lshl_add_u32 v{x}, v{y}, 4, v{x}')
    a(f'v_and_b32 v{y}, 1, v{g}'); a(f'v_lshl_add_u32 v{x}, v{y}, 3, v{x}'); a(f'v_add_u32 v{vTW}, {LDS_T}, v{x}')
    a(f'v_bfe_u32 v{x}, v1, 2, 2'); a(f'v_lshl_add_u32 v{x}, v{g}, 3, v{x}'); a(f'v_lshlrev_b32 v{x}, 5, v{x}')
    a(f'v_and_b32 v{y}, 3, v1'); a(f'v_lshl_add_u32 v{x}, v{y}, 3, v{x}'); a(f'v_add_u32 v{vTR}, {LDS_T}, v{x}')
    a(f'v_lshrrev_b32 v{x}, 5, v1'); a('s_lshl_b32 s40, s3, 1'); a(f'v_add_u32 v{x}, s40, v{x}'); a(f'v_mul_u32_u24 v{x}, 12288, v{x}')
    a('s_mul_i32 s40, s15, 196608'); a('s_mul_i32 s41, s14, 768'); a('s_add_u32 s40, s40, s41'); a(f'v_add_u32 v{x}, s40, v{x}')
    a(f'v_lshl_add_u32 v{x}, v{n}, 4, v{x}'); a(f'v_and_b32 v{y}, 1, v{g}'); a(f'v_lshl_add_u32 v{vZS}, v{y}, 3, v{x}'); a(f'v_add_u32 v{vZS2}, 98304, v{vZS}')
    for i in range(8): a(f'v_mov_b32 v{ACC+i}, 0')
    for i in range(40): a(f'v_mov_b32 v{ZA+i}, 0')
    vPF=15; DUM=120
    a(f'v_lshlrev_b32 v{vPF}, 7, v1')
    def flags_and_prefetch():
        a('s_lshl_b32 s46, s45, 8'); a('s_lshr_b32 s47, s16, 1'); a('s_add_u32 s47, s47, 16'); a('s_lshl_b32 s47, s47, 2'); a('s_add_u32 s46, s46, s47'); a(f's_add_u32 s46, s46, {QKF_OFF}')
        a(f'v_mov_b32 v{T2}, s46')
        a('s_lshl_b32 s46, s45, 7'); a('s_lshl_b32 s47, s15, 6'); a('s_add_u32 s46, s46, s47'); a(f's_add_u32 s46, s46, {UF_OFF}')
        a(f'v_and_b32 v{T0}, 15, v1'); a(f'v_lshlrev_b32 v{T0}, 2, v{T0}'); a(f'v_add_u32 v{T0}, s46, v{T0}')
        Lw=a.nl('vf'); a.lab(Lw)
        a(f'global_load_dword v{T1}, v{T0}, s[4:5] sc1'); a(f'global_load_dword v{T3}, v{T2}, s[4:5] sc1'); a('s_waitcnt vmcnt(0)')
        a(f'v_min_u32 v{T1}, v{T1}, v{T3}'); a(f'v_cmp_eq_u32 vcc, 0, v{T1}'); a.retry('s_cbranch_vccnz',Lw)
        a(f's_mul_i32 s44, s45, {U_SEG}'); a('s_mul_i32 s46, s15, 786432'); a('s_add_u32 s44, s44, s46'); a('s_mul_i32 s46, s14, 49152'); a('s_add_u32 s44, s44, s46')
        a('s_lshl_b32 s46, s3, 13'); a('s_add_u32 s44, s44, s46')
        a('s_add_u32 s48, s4, s44'); a('s_addc_u32 s49, s5, 0'); a(f's_add_u32 s48, s48, {WS_U}'); a('s_addc_u32 s49, s49, 0')
        a(f'global_load_dword v{DUM}, v{vPF}, s[48:49] sc1')
        Lk=a.nl('pk'); Le=a.nl('pe')
        a('s_cmp_ge_u32 s3, 2'); a(f's_cbranch_scc1 {Lk}')
        a('s_add_u32 s48, s48, 32768'); a('s_addc_u32 s49, s49, 0')
        a(f'global_load_dword v{DUM+1}, v{vPF}, s[48:49] sc1'); a(f's_branch {Le}')
        a.lab(Lk)
        a('s_cmp_lg_u32 s3, 2'); a(f's_cbranch_scc1 {Le}')
        a('s_lshl_b32 s46, s45, 5'); a('s_add_u32 s46, s46, s16'); a('s_lshl_b32 s46, s46, 13'); a(f's_add_u32 s46, s46, {WS_K}')
        a('s_add_u32 s48, s4, s46'); a('s_addc_u32 s49, s5, 0')
        a(f'global_load_dword v{DUM+1}, v{vPF}, s[48:49] sc1')
        a.lab(Le)
    a('s_mov_b32 s45, 1'); flags_and_prefetch()
    def z_flag(add):
        a(f's_add_u32 s46, s30, {add&0xffffffff}'); a('s_lshl_b32 s46, s46, 5'); a('s_add_u32 s46, s46, s16'); a('s_lshl_b32 s46, s46, 2'); a(f's_add_u32 s46, s46, {ZF_OFF}')
        a(f'v_mov_b32 v{T0}, s46'); a(f'v_mov_b32 v{T1}, 1')
        a(f'global_store_dword v{T0}, v{T1}, s[4:5] sc1')
    a(f's_add_u32 s36, s4, {P_OFF+3*P_SLOT}'); a('s_addc_u32 s37, s5, 0')
    a('s_mov_b32 s30, 0')
    stamp_init(a)
    Lstep=a.nl('VOstep'); Llast=a.nl('VOlast')
    a.lab(Lstep)
    G_phase(a)
    Lnf=a.nl('nf'); a('s_cmp_lg_u32 s3, 3'); a(f's_cbranch_scc1 {Lnf}'); a('s_cmp_eq_u32 s30, 0'); a(f's_cbranch_scc1 {Lnf}'); z_flag(-1); a.lab(Lnf)
    vm=[]
    for t in range(10):
        vm.append(f's_waitcnt lgkmcnt({9-t})')
        for tl in (0,1): vm.append(f'v_smfmac_f32_16x16x64_bf16 {V(ACC+4*tl,4)}, {V(AF+4*t,4)}, {wr((tl*10+t)*8,8)}, v{vIDX}')
    fill=slot_base(54,Z_OFF,Z_SLOT,'s30')+slot_base(36,P_OFF,P_SLOT,'s30')
    fill+=[f's_mul_i32 s44, s30, {ZG_STEP}','s_add_u32 s48, s4, s44','s_addc_u32 s49, s5, 0',f's_add_u32 s48, s48, {WS_ZG}','s_addc_u32 s49, s49, 0']
    interleave(a,vm,fill,per=1)
    emit(a,half_sum_pack(ACC,ACC+4,GL+8))
    a(f'ds_write_b64 v{vTW}, {V(GL+8,2)}')
    a('s_waitcnt lgkmcnt(0)'); stamp(a,2); a('s_barrier'); stamp(a,3)
    for t2 in range(2):
        a(f'ds_read_b64_tr_b16 {V(A2+4*t2,2)}, v{vTR} offset:{t2*1024}'); a(f'ds_read_b64_tr_b16 {V(A2+4*t2+2,2)}, v{vTR} offset:{t2*1024+128}')
    a('s_waitcnt lgkmcnt(0)')
    def zfin(cb):
        L=half_sum_pack(ZA+8*cb,ZA+8*cb+4,ZP+2*cb)
        L+=[f'v_min_u32 v{ZP+2*cb}, s70, v{ZP+2*cb}',f'v_min_u32 v{ZP+2*cb+1}, s70, v{ZP+2*cb+1}']
        L+=[f'global_store_dwordx2 v{vZS2 if cb%2 else vZS}, {V(ZP+2*cb,2)}, s[54:55] offset:{256*(cb//2)}{ST}']
        return L
    for cb in range(5):
        for t2 in range(2):
            for dl in range(2):
                u=2*cb+dl
                a(f'v_smfmac_f32_16x16x64_bf16 {V(ZA+4*u,4)}, {V(A2+4*t2,4)}, {wr(160+(u*2+t2)*8,8)}, v{vIDX}')
        if cb>0: emit(a,zfin(cb-1))
    emit(a,zfin(4))
    stamp(a,4)
    for cb in range(5):
        a(f'global_store_dwordx2 v{vZS2 if cb%2 else vZS}, {V(ZP+2*cb,2)}, s[48:49] offset:{256*(cb//2)} sc1')
    a(f's_cmp_eq_u32 s30, {nsteps-1}'); a(f's_cbranch_scc1 {Llast}')
    emit(a,slot_base(38,Z_OFF,Z_SLOT,'s30',-1))
    a(f'v_mov_b32 v{T4}, -1'); a(f'v_mov_b32 v{T5}, -1')
    for cb in range(5):
        a(f'global_store_dwordx2 v{vZS2 if cb%2 else vZS}, {V(T4,2)}, s[38:39] offset:{256*(cb//2)}{ST}')
    for i in range(40): a(f'v_mov_b32 v{ZA+i}, 0')
    for i in range(8): a(f'v_mov_b32 v{ACC+i}, 0')
    Lnp=a.nl('np')
    a('s_add_u32 s45, s30, 2'); a(f's_cmp_ge_u32 s45, {nsteps}'); a(f's_cbranch_scc1 {Lnp}')
    flags_and_prefetch()
    a.lab(Lnp)
    stamp(a,5)
    a('s_add_u32 s30, s30, 1')
    a(f's_branch {Lstep}')
    a.lab(Llast)
    a('s_waitcnt vmcnt(0)'); a('s_barrier')
    Ld=a.nl('d'); a('s_cmp_lg_u32 s3, 3'); a(f's_cbranch_scc1 {Ld}'); z_flag(0); a.lab(Ld)
    stamp_dump(a,None,FL_END+1024)
    a('s_waitcnt vmcnt(0)')
    a('s_endpgm')
```

```python
from asmgen import *
from layout import *
from chain import wr,V,load_weights,STG_BLK,STG_BUF,T0,T1,T2,T3,T4,T5,emit,poll_flag,masks,vo_weight_load,SCALE,L2E,interleave
PROF=False
SYNC=None
END=None
def prof_mark(a,r):
    if PROF: a(f's_memtime s[{r}:{r+1}]'); a(f's_memrealtime s[{r+8}:{r+9}]'); a('s_waitcnt lgkmcnt(0)')
def prof_dump(a):
    if not PROF: return
    L=a.nl('pd')
    prof_mark(a,84)
    a('s_cmp_lg_u32 s22, 0'); a(f's_cbranch_scc1 {L}'); a('s_cmp_lg_u32 s3, 0'); a(f's_cbranch_scc1 {L}')
    a('s_sub_u32 s86, s82, s80'); a('s_sub_u32 s87, s84, s82'); a('s_sub_u32 s94, s92, s88')
    a('v_mov_b32 v30, 64'); a('v_mov_b32 v31, s86'); a('global_store_dword v30, v31, s[6:7]'); a('v_mov_b32 v32, s87'); a('global_store_dword v30, v32, s[6:7] offset:4'); a('v_mov_b32 v33, s94'); a('global_store_dword v30, v33, s[6:7] offset:8')
    a.lab(L)
XB_SZ=40960

def x_dma_consts(a, vXD):
    a(f'v_lshrrev_b32 v{T0}, 3, v1'); a('s_lshl_b32 s40, s3, 3'); a(f'v_add_u32 v{T0}, s40, v{T0}')
    a(f'v_bfe_u32 v{T1}, v{T0}, 1, 3'); a(f'v_and_b32 v{T2}, 7, v1'); a(f'v_xor_b32 v{T1}, v{T1}, v{T2}')
    a(f'v_mul_u32_u24 v{T0}, 1280, v{T0}'); a(f'v_lshl_add_u32 v{vXD}, v{T1}, 4, v{T0}')
def x_dma(a, vXD, sbase, ldsbuf_s, g):
    return [f's_add_u32 m0, {ldsbuf_s}, {g*4096-g*128}', f'global_load_lds_dwordx4 v{vXD}, s[{sbase}:{sbase+1}] offset:{g*128}']

def gen_E1(a):
    vXD=2; vXR=4
    vOUT=8; vTR=9
    ACC=36
    BF=100
    PK=116
    LX0=0; LX1=XB_SZ
    a.c('================ E1 role ================')
    a('s_load_dwordx2 s[8:9], s[0:1], %d'%KA['Wq']); a('s_load_dwordx2 s[10:11], s[0:1], %d'%KA['Wk']); a('s_load_dwordx2 s[18:19], s[0:1], %d'%KA['x'])
    a('s_waitcnt lgkmcnt(0)')
    a('s_cmp_lt_u32 s14, 16'); a('s_cselect_b32 s12, s8, s10'); a('s_cselect_b32 s13, s9, s11')
    a('s_and_b32 s40, s14, 15'); a('s_lshl_b32 s40, s40, 9')
    a('s_lshr_b32 s41, s3, 1'); a('s_lshl_b32 s41, s41, 8'); a('s_add_u32 s40, s40, s41')
    a('s_and_b32 s41, s3, 1'); a('s_lshl_b32 s41, s41, 18'); a('s_add_u32 s40, s40, s41')
    a('s_add_u32 s12, s12, s40'); a('s_addc_u32 s13, s13, 0')
    a(f'v_lshrrev_b32 v{T4}, 4, v1'); a(f'v_lshlrev_b32 v{T4}, 13, v{T4}'); a(f'v_and_b32 v{T5}, 15, v1'); a(f'v_lshl_add_u32 v{T4}, v{T5}, 4, v{T4}')
    a('s_mov_b32 s43, 32768')
    def srcs(r):
        a(f's_add_u32 s40, s12, {r*64*8192}'); a('s_addc_u32 s41, s13, 0')
    a(f'v_lshrrev_b32 v{T0}, 5, v1'); a(f'v_lshlrev_b32 v{T0}, 1, v{T0}'); a('s_lshr_b32 s40, s3, 1'); a('s_lshl_b32 s40, s40, 4'); a(f'v_add_u32 v{T0}, s40, v{T0}')
    a(f'v_mul_u32_u24 v{vTR}, {STG_BLK}, v{T0}')
    a(f'v_bfe_u32 v{T0}, v1, 2, 2'); a(f'v_lshl_add_u32 v{vTR}, v{T0}, 8, v{vTR}')
    a(f'v_bfe_u32 v{T0}, v1, 4, 1'); a(f'v_lshl_add_u32 v{vTR}, v{T0}, 5, v{vTR}')
    a(f'v_and_b32 v{T0}, 3, v1'); a(f'v_lshl_add_u32 v{vTR}, v{T0}, 3, v{vTR}')
    a('s_and_b32 s40, s3, 1'); a('s_lshl_b32 s40, s40, 7'); a(f'v_add_u32 v{vTR}, s40, v{vTR}')
    def trs(r,bufoff):
        a(f'v_add_u32 v{T3}, {bufoff}, v{vTR}')
        for ct in range(2):
            for kk in range(4):
                for half in range(2):
                    idx=(ct*40+4*r+kk)*4+2*half
                    a(f'ds_read_b64_tr_b16 {wr(idx,2)}, v{T3} offset:{(4*kk+half)*STG_BLK+ct*64}')
    load_weights(a,srcs,trs)
    prof_mark(a,82)
    if SYNC: SYNC(a)
    x_dma_consts(a,vXD)
    a(f'v_and_b32 v{T0}, 31, v1'); a(f'v_lshrrev_b32 v{T1}, 5, v1'); a(f'v_bfe_u32 v{T2}, v{T0}, 1, 3')
    for q in range(4):
        a(f'v_add_u32 v{T3}, {2*q}, v{T1}'); a(f'v_xor_b32 v{T3}, v{T3}, v{T2}'); a(f'v_lshlrev_b32 v{T3}, 4, v{T3}'); a(f'v_lshl_add_u32 v{vXR+q}, v{T0}, 7, v{T3}'); a(f'v_add_u32 v{vXR+8+q}, {XB_SZ}, v{vXR+q}')
    a('s_lshr_b32 s40, s3, 1'); a('s_lshl_b32 s40, s40, 13'); a('s_and_b32 s41, s3, 1'); a('s_lshl_b32 s41, s41, 12'); a('s_add_u32 s40, s40, s41')
    a(f'v_lshlrev_b32 v{T3}, 9, v{T1}'); a(f'v_lshl_add_u32 v{T3}, v{T0}, 4, v{T3}'); a(f'v_add_u32 v{vOUT}, s40, v{T3}')
    a('s_cmp_lt_u32 s14, 16'); a(f's_mov_b32 s41, {WS_K}'); a(f's_cselect_b32 s20, {WS_Q}, s41'); a('s_and_b32 s40, s14, 15'); a('s_lshl_b32 s40, s40, 14'); a('s_add_u32 s20, s20, s40')
    a('s_lshl_b32 s21, s3, 10')
    def issue_x(segreg, buf):
        L=[f's_mul_i32 s44, {segreg}, 40960','s_add_u32 s46, s18, s44','s_addc_u32 s47, s19, 0', f's_add_u32 s45, s21, {buf}']
        for g in range(10): L+=x_dma(a,vXD,46,'s45',g)
        return L
    def epilogue(acc):
        L=[]
        for ct in range(2):
            for b in range(4):
                L.append(f'v_cvt_pk_bf16_f32 v{PK+8*ct+2*b}, v{acc+16*ct+4*b}, v{acc+16*ct+4*b+1}')
                L.append(f'v_cvt_pk_bf16_f32 v{PK+8*ct+2*b+1}, v{acc+16*ct+4*b+2}, v{acc+16*ct+4*b+3}')
            for b in (0,2):
                L.append(f'v_permlane32_swap_b32 v{PK+8*ct+2*b}, v{PK+8*ct+2*b+2}')
                L.append(f'v_permlane32_swap_b32 v{PK+8*ct+2*b+1}, v{PK+8*ct+2*b+3}')
            for b in (0,2):
                L.append(f'global_store_dwordx4 v{vOUT}, {V(PK+8*ct+2*b,4)}, s[48:49] offset:{(4*ct+b)*512} sc1')
        return L
    def out_base(segreg):
        return [f's_lshl_b32 s44, {segreg}, 18','s_add_u32 s44, s44, s20','s_add_u32 s48, s4, s44','s_addc_u32 s49, s5, 0']
    def flag(segreg):
        L=a.nl('ef')
        a('s_cmp_lg_u32 s3, 0'); a(f's_cbranch_scc1 {L}')
        a(f's_lshl_b32 s44, {segreg}, 8'); a('s_lshl_b32 s45, s14, 2'); a('s_add_u32 s44, s44, s45'); a(f's_add_u32 s44, s44, {QKF_OFF}')
        a(f'v_mov_b32 v{T0}, s44'); a(f'v_mov_b32 v{T1}, 1'); a(f'global_store_dword v{T0}, v{T1}, s[4:5] sc1')
        a.lab(L)
    def seg_compute(acc, buf, fillers):
        mains=[]
        PD=3
        def rd(k): return f'ds_read_b128 {V(BF+4*(k%4),4)}, v{vXR+(8 if buf else 0)+(k%4)} offset:{(k//4)*4096}'
        for k in range(PD): a(rd(k))
        f=list(fillers)
        for k in range(40):
            if k+PD<40: a(rd(k+PD))
            a(f's_waitcnt lgkmcnt({min(PD,39-k)})')
            for ct in range(2):
                a(f'v_mfma_f32_32x32x16_bf16 {V(acc+16*ct,16)}, {wr((ct*40+k)*4,4)}, {V(BF+4*(k%4),4)}, {"0" if k==0 else V(acc+16*ct,16)}')
                for _ in range(1 if ct==0 else 1):
                    if f and k>=1: a(f.pop(0))
        emit(a,f)
    a('s_mov_b32 s30, s15')
    emit(a,issue_x('s30',LX0))
    a('s_waitcnt vmcnt(0)'); a('s_barrier')
    Lloop=a.nl('E1l'); Lend=a.nl('E1e')
    a('s_add_u32 s31, s30, 2')
    seg_compute(ACC,LX0,issue_x('s31',LX1))
    a('s_waitcnt vmcnt(0)'); a('s_barrier')
    a.lab(Lloop)
    for ph in range(2):
        accC,accP=(ACC+32,ACC) if ph==0 else (ACC,ACC+32)
        bufC,bufN=(LX1,LX0) if ph==0 else (LX0,LX1)
        a('s_add_u32 s32, s31, 2'); a('s_min_u32 s32, s32, 63')
        f=out_base('s30')+epilogue(accP)+issue_x('s32',bufN)
        seg_compute(accC,bufC,f)
        a('s_waitcnt vmcnt(0)'); a('s_barrier')
        flag('s30')
        a('s_mov_b32 s30, s31'); a('s_add_u32 s31, s31, 2')
        Lfin=a.nl('E1f')
        a('s_cmp_ge_u32 s31, 64'); a(f's_cbranch_scc1 {Lend}_{ph}')
    a(f's_branch {Lloop}')
    for ph in range(2):
        accC=(ACC+32) if ph==0 else ACC
        a.lab(f'{Lend}_{ph}')
        emit(a,out_base('s30')); emit(a,epilogue(accC))
        a('s_waitcnt vmcnt(0)'); a('s_barrier'); flag('s30')
        prof_dump(a)
        if END: END(a)
        a('s_waitcnt vmcnt(0)'); a('s_endpgm')


def gen_VU(a):
    vXD=2; vXR=4
    vAW=8; vAR=9; vUS=10; vTMP=11
    VA=36
    BF=52
    AFR=68
    UA=100
    UP=116
    LX0=0; LX1=XB_SZ; LA=2*XB_SZ
    a.c('================ VU role ================')
    vo_weight_load(a,vTMP)
    prof_mark(a,82)
    if SYNC: SYNC(a)
    a('s_load_dwordx2 s[18:19], s[0:1], %d'%KA['x'])
    x_dma_consts(a,vXD)
    n,g=T0,T1
    a(f'v_and_b32 v{n}, 15, v1'); a(f'v_lshrrev_b32 v{g}, 4, v1')
    a(f'v_bfe_u32 v{T2}, v{n}, 2, 1'); a(f'v_lshlrev_b32 v{T2}, 4, v{T2}'); a(f'v_lshrrev_b32 v{T3}, 3, v{n}'); a(f'v_lshl_add_u32 v{T2}, v{T3}, 3, v{T2}')
    a(f'v_bfe_u32 v{T3}, v{n}, 1, 1'); a(f'v_lshl_add_u32 v{T2}, v{T3}, 2, v{T2}'); a(f'v_and_b32 v{T3}, 1, v{n}'); a(f'v_add_u32 v{T2}, v{T2}, v{T3}')
    for tau in range(2):
        for kp in range(2):
            r=vXR+tau*2+kp
            a(f'v_add_u32 v{T3}, {2*tau}, v{T2}'); a(f'v_bfe_u32 v{T4}, v{T3}, 1, 3'); a(f'v_add_u32 v{T5}, {4*kp}, v{g}'); a(f'v_xor_b32 v{T4}, v{T4}, v{T5}')
            a(f'v_lshlrev_b32 v{T4}, 4, v{T4}'); a(f'v_lshl_add_u32 v{r}, v{T3}, 7, v{T4}'); a(f'v_add_u32 v{r+8}, {XB_SZ}, v{r}')
    a(f'v_lshrrev_b32 v{T2}, 1, v{g}'); a(f'v_lshl_add_u32 v{T2}, v{T2}, 4, v{n}'); a(f'v_lshlrev_b32 v{T2}, 4, v{T2}'); a(f'v_and_b32 v{T3}, 1, v{g}'); a(f'v_lshl_add_u32 v{T2}, v{T3}, 3, v{T2}')
    a('s_lshl_b32 s40, s3, 11'); a(f's_add_u32 s40, s40, {LA}'); a(f'v_add_u32 v{vAW}, s40, v{T2}')
    a(f'v_lshlrev_b32 v{T2}, 4, v1'); a(f'v_add_u32 v{vAR}, {LA}, v{T2}')
    a('s_mul_i32 s40, s15, 786432'); a('s_mul_i32 s41, s3, 98304'); a('s_add_u32 s40, s40, s41'); a('s_mul_i32 s41, s14, 3072'); a('s_add_u32 s40, s40, s41')
    a(f'v_add_u32 v{vUS}, s40, v{T2}')
    a('s_lshl_b32 s21, s3, 10')
    a('s_waitcnt lgkmcnt(0)')
    def issue_x(segreg, buf):
        L=[f's_mul_i32 s44, {segreg}, 40960','s_add_u32 s46, s18, s44','s_addc_u32 s47, s19, 0', f's_add_u32 s45, s21, {buf}']
        for gg in range(10): L+=x_dma(a,vXD,46,'s45',gg)
        return L
    def flag(segreg):
        L=a.nl('uf')
        a('s_cmp_lg_u32 s3, 0'); a(f's_cbranch_scc1 {L}')
        a(f's_lshl_b32 s44, {segreg}, 7'); a('s_lshl_b32 s45, s16, 2'); a('s_add_u32 s44, s44, s45'); a(f's_add_u32 s44, s44, {UF_OFF}')
        a(f'v_mov_b32 v{T0}, s44'); a(f'v_mov_b32 v{T1}, 1'); a(f'global_store_dword v{T0}, v{T1}, s[4:5] sc1')
        a.lab(L)
    def seg(buf, fillers):
        def rd(k):
            return [f'ds_read_b128 {V(BF+8*(k%2)+4*tau,4)}, v{vXR+(8 if buf else 0)+tau*2+(k%2)} offset:{(k//2)*4096}' for tau in range(2)]
        emit(a,rd(0))
        f=list(fillers)
        for k in range(20):
            if k+1<20: emit(a,rd(k+1))
            a(f's_waitcnt lgkmcnt({2 if k+1<20 else 0})')
            t,hB=k//2,k%2
            for dl in range(2):
                for tau in range(2):
                    acc=VA+(dl*2+tau)*4
                    a(f'v_mfma_f32_16x16x32_bf16 {V(acc,4)}, {wr((dl*10+t)*8+4*hB,4)}, {V(BF+8*(k%2)+4*tau,4)}, {"0" if k==0 else V(acc,4)}')
                if f: a(f.pop(0))
                if f: a(f.pop(0))
        emit(a,f)
        for dl in range(2):
            for tau in range(2):
                acc=VA+(dl*2+tau)*4
                a(f'v_cvt_pk_bf16_f32 v{T0+0}, v{acc}, v{acc+1}'); a(f'v_cvt_pk_bf16_f32 v{T1}, v{acc+2}, v{acc+3}')
                a(f'ds_write_b64 v{vAW}, {V(T0,2)} offset:{dl*512+tau*1024}')
        a('s_waitcnt lgkmcnt(0)'); a('s_barrier')
        for t in range(4):
            for tau in range(2): a(f'ds_read_b128 {V(AFR+(t*2+tau)*4,4)}, v{vAR} offset:{(t*2+tau)*1024}')
        a(f's_mul_i32 s44, s30, {U_SEG}'); a('s_add_u32 s50, s4, s44'); a('s_addc_u32 s51, s5, 0'); a(f's_add_u32 s50, s50, {WS_U}'); a('s_addc_u32 s51, s51, 0')
        a('s_waitcnt lgkmcnt(0)')
        def fin(u):
            cb,dl=u//2,u%2
            acc=UA+8*(u%2); pk=UP+4*(u%2)
            for tau in range(2):
                a(f'v_cvt_pk_bf16_f32 v{pk+2*tau}, v{acc+4*tau}, v{acc+4*tau+1}'); a(f'v_cvt_pk_bf16_f32 v{pk+2*tau+1}, v{acc+4*tau+2}, v{acc+4*tau+3}')
            c=(8*(cb%2)+dl)*49152+(cb//2)*1024
            a(f's_add_u32 s52, s50, {c}'); a('s_addc_u32 s53, s51, 0')
            a(f'global_store_dwordx4 v{vUS}, {V(pk,4)}, s[52:53] sc1')
        for u in range(10):
            acc=UA+8*(u%2)
            for t in range(4):
                for tau in range(2):
                    widx=160+(u*2+t//2)*8+4*(t%2)
                    a(f'v_mfma_f32_16x16x32_bf16 {V(acc+4*tau,4)}, {V(AFR+(t*2+tau)*4,4)}, {wr(widx,4)}, {"0" if t==0 else V(acc+4*tau,4)}')
                if t==1 and u>0: fin(u-1)
        fin(9)
    a('s_mov_b32 s30, s17')
    emit(a,issue_x('s30',LX0))
    a('s_waitcnt vmcnt(0)'); a('s_barrier')
    Ll=a.nl('VUl'); Le=a.nl('VUe')
    a.lab(Ll)
    for ph in range(2):
        bufC,bufN=(LX0,LX1) if ph==0 else (LX1,LX0)
        a('s_add_u32 s32, s30, 2'); a('s_min_u32 s32, s32, 63')
        seg(bufC,issue_x('s32',bufN))
        a('s_waitcnt vmcnt(0)'); a('s_barrier')
        flag('s30')
        a('s_add_u32 s30, s30, 2'); a('s_cmp_ge_u32 s30, 64'); a(f's_cbranch_scc1 {Le}')
    a(f's_branch {Ll}')
    a.lab(Le)
    prof_dump(a)
    if END: END(a)
    a('s_waitcnt vmcnt(0)'); a('s_endpgm')

def gen_E2(a, ngroups, loop=True):
    vQ=2; vK=3; vKM=4; vD=5; vPX=6; vPM=7; vSL=8; vSH=9; vNI=10
    QF=36
    KF=68
    SD=116
    S=140
    a.c('================ E2 role ================')
    n,g=T0,T1
    a(f'v_and_b32 v{n}, 15, v1'); a(f'v_lshrrev_b32 v{g}, 4, v1')
    a(f'v_lshlrev_b32 v{T2}, 9, v{g}'); a(f'v_lshl_add_u32 v{vQ}, v{n}, 4, v{T2}'); a(f'v_add_u32 v{vQ}, 4096, v{vQ}')
    a(f'v_bfe_u32 v{T2}, v{n}, 2, 1'); a(f'v_lshlrev_b32 v{T2}, 4, v{T2}'); a(f'v_lshrrev_b32 v{T3}, 3, v{n}'); a(f'v_lshl_add_u32 v{T2}, v{T3}, 3, v{T2}')
    a(f'v_bfe_u32 v{T3}, v{n}, 1, 1'); a(f'v_lshl_add_u32 v{T2}, v{T3}, 2, v{T2}'); a(f'v_and_b32 v{T3}, 1, v{n}'); a(f'v_add_u32 v{T2}, v{T2}, v{T3}')
    a(f'v_lshlrev_b32 v{T2}, 4, v{T2}'); a(f'v_lshl_add_u32 v{vK}, v{g}, 9, v{T2}'); a(f'v_add_u32 v{vK}, 4096, v{vK}')
    a(f'v_and_b32 v{T2}, 7, v{n}'); a(f'v_lshlrev_b32 v{T2}, 4, v{T2}'); a(f'v_lshl_add_u32 v{vKM}, v{g}, 7, v{T2}')
    a(f'v_and_b32 v{T2}, 1, v{g}'); a(f'v_lshlrev_b32 v{T2}, 4, v{T2}'); a(f'v_lshrrev_b32 v{T3}, 1, v{g}'); a(f'v_lshl_add_u32 v{T2}, v{T3}, 3, v{T2}'); a(f'v_sub_u32 v{vD}, v{n}, v{T2}')
    a(f'v_lshlrev_b32 v{vPX}, 4, v1')
    a(f'v_lshlrev_b32 v{T2}, 4, v{n}'); a(f'v_and_b32 v{T3}, 1, v{g}'); a(f'v_lshl_add_u32 v{T2}, v{T3}, 3, v{T2}'); a(f'v_add_u32 v{vPM}, 2048, v{T2}')
    a(f'v_mov_b32 v{vSL}, 0x05040c0c'); a(f'v_mov_b32 v{vSH}, 0x07060c0c'); a(f'v_mov_b32 v{vNI}, 0xff800000')
    a('s_mov_b32 s40, 0'); a('s_mov_b32 s41, -1'); a(f'v_mov_b32 v{T2}, 0x03020100'); a(f'v_cndmask_b32 v{vSL}, v{vSL}, v{T2}, s[40:41]'); a(f'v_cndmask_b32 v{vSH}, v{vSH}, v{T2}, s[40:41]')
    a(f's_mov_b32 s66, {SCALE}'); a(f's_mov_b32 s67, {SCALE}'); a(f's_mov_b32 s68, {L2E}')
    a('s_mov_b32 s64, -1'); a('s_mov_b32 s65, 0')
    a('s_lshl_b32 s16, s24, 2'); a('s_add_u32 s16, s16, s3')
    a('s_mov_b32 s30, s23')
    Ll=a.nl('E2l'); Le=a.nl('E2e')
    a.lab(Ll)
    a('s_lshl_b32 s44, s30, 5'); a('s_add_u32 s44, s44, s16'); a('s_lshl_b32 s44, s44, 2'); a(f's_add_u32 s44, s44, {KMF_OFF}'); a(f'v_mov_b32 v{T0}, s44')
    a('s_lshl_b32 s44, s30, 8'); a('s_lshr_b32 s45, s16, 1'); a('s_lshl_b32 s45, s45, 2'); a('s_add_u32 s44, s44, s45'); a(f's_add_u32 s44, s44, {QKF_OFF}'); a(f'v_mov_b32 v{T1}, s44')
    Lw=a.nl('e2w'); a.lab(Lw)
    a(f'global_load_dword v{T2}, v{T0}, s[4:5] sc1'); a(f'global_load_dword v{T3}, v{T1}, s[4:5] sc1'); a(f'global_load_dword v{T4}, v{T1}, s[4:5] offset:64 sc1')
    a('s_waitcnt vmcnt(0)'); a(f'v_min_u32 v{T2}, v{T2}, v{T3}'); a(f'v_min_u32 v{T2}, v{T2}, v{T4}'); a(f'v_cmp_eq_u32 vcc, 0, v{T2}')
    Lgo=a.nl('e2g'); a(f's_cbranch_vccz {Lgo}'); a('s_sleep 8'); a('s_add_u32 s100, s100, 64'); a('s_cmp_lt_u32 s100, 0x1000000'); a(f's_cbranch_scc1 {Lw}'); a('s_endpgm'); a.lab(Lgo)
    a('s_lshl_b32 s44, s30, 5'); a('s_add_u32 s44, s44, s16')
    a('s_lshl_b32 s45, s44, 13'); a('s_add_u32 s46, s4, s45'); a('s_addc_u32 s47, s5, 0')
    a(f's_add_u32 s48, s46, {WS_K}'); a('s_addc_u32 s49, s47, 0')
    a('s_lshl_b32 s45, s44, 11'); a(f's_add_u32 s45, s45, {WS_KM}'); a('s_add_u32 s50, s4, s45'); a('s_addc_u32 s51, s5, 0')
    a('s_mul_i32 s45, s44, 2560'); a(f's_add_u32 s45, s45, {WS_PR}'); a('s_add_u32 s52, s4, s45'); a('s_addc_u32 s53, s5, 0')
    for t in range(4):
        a(f'global_load_dwordx4 {V(KF+4*t,4)}, v{vKM}, s[50:51] offset:{t*512} sc1')
        for tau in range(2): a(f'global_load_dwordx4 {V(KF+((1+tau)*4+t)*4,4)}, v{vK}, s[48:49] offset:{t*2048-4096+tau*32} sc1')
        for rho in range(2): a(f'global_load_dwordx4 {V(QF+(rho*4+t)*4,4)}, v{vQ}, s[46:47] offset:{t*2048-4096+rho*256} sc1')
    for t in range(4):
        a(f's_waitcnt vmcnt({5*(3-t)})')
        for rho in range(2):
            for tl in range(3):
                d=SD+(rho*3+tl)*4
                a(f'v_mfma_f32_16x16x32_bf16 {V(d,4)}, {V(KF+(tl*4+t)*4,4)}, {V(QF+(rho*4+t)*4,4)}, {"0" if t==0 else V(d,4)}')
    for rho in range(2):
        D=SD+rho*12
        for p in range(6):
            a(f'v_cvt_pk_bf16_f32 v{T0}, v{D+2*p}, v{D+2*p+1}')
            a(f'v_lshlrev_b32 v{S+2*p}, 16, v{T0}'); a(f'v_and_b32 v{S+2*p+1}, 0xffff0000, v{T0}')
            a(f'v_pk_mul_f32 {V(S+2*p,2)}, {V(S+2*p,2)}, s[66:67]')
            a(f'v_cvt_pk_bf16_f32 v{T0}, v{S+2*p}, v{S+2*p+1}')
            if p<2:
                a(f'v_perm_b32 v{S+2*p}, v{T0}, v{vNI}, v{vSL}'); a(f'v_perm_b32 v{S+2*p+1}, v{T0}, v{vNI}, v{vSH}')
            else:
                a(f'v_lshlrev_b32 v{S+2*p}, 16, v{T0}'); a(f'v_and_b32 v{S+2*p+1}, 0xffff0000, v{T0}')
        a(f'v_add_u32 v{T1}, {16*rho}, v{vD}')
        for tau in range(2):
            for i in range(4):
                c=4*(i>>1)+2*tau+(i&1)
                a(f'v_cmp_le_i32 vcc, {c}, v{T1}'); a(f'v_cndmask_b32 v{S+4+4*tau+i}, v{vNI}, v{S+4+4*tau+i}, vcc')
        m,u,l=T2,T3,T4
        a(f'v_max3_f32 v{m}, v{S}, v{S+1}, v{S+2}')
        for p in range(4): a(f'v_max3_f32 v{m}, v{m}, v{S+3+2*p}, v{S+4+2*p}')
        a(f'v_max_f32 v{m}, v{m}, v{S+11}')
        a(f'v_mov_b32 v{u}, v{m}'); a(f'v_permlane16_swap_b32 v{m}, v{u}'); a(f'v_max_f32 v{m}, v{m}, v{u}')
        a(f'v_mov_b32 v{u}, v{m}'); a(f'v_permlane32_swap_b32 v{m}, v{u}'); a(f'v_max_f32 v{m}, v{m}, v{u}')
        a(f'v_mul_f32 v{m}, s68, v{m}')
        for i in range(12): a(f'v_fma_f32 v{S+i}, v{S+i}, s68, -v{m}')
        for i in range(12): a(f'v_exp_f32 v{S+i}, v{S+i}')
        a(f'v_add_f32 v{l}, v{S}, v{S+1}')
        for i in range(2,12): a(f'v_add_f32 v{l}, v{l}, v{S+i}')
        a(f'v_mov_b32 v{u}, v{l}'); a(f'v_permlane16_swap_b32 v{l}, v{u}'); a(f'v_add_f32 v{l}, v{l}, v{u}')
        a(f'v_mov_b32 v{u}, v{l}'); a(f'v_permlane32_swap_b32 v{l}, v{u}'); a(f'v_add_f32 v{l}, v{l}, v{u}')
        a(f'v_rcp_f32 v{l}, v{l}')
        for i in range(12): a(f'v_mul_f32 v{S+i}, v{S+i}, v{l}')
        a(f'v_cvt_pk_bf16_f32 v{D}, v{S}, v{S+1}'); a(f'v_cvt_pk_bf16_f32 v{D+1}, v{S+2}, v{S+3}')
        for p in range(4): a(f'v_cvt_pk_bf16_f32 v{D+4+p}, v{S+4+2*p}, v{S+5+2*p}')
        a(f'global_store_dwordx4 v{vPX}, {V(D+4,4)}, s[52:53] offset:{rho*1024} sc1')
        a('s_mov_b64 exec, s[64:65]')
        a(f'global_store_dwordx2 v{vPM}, {V(D,2)}, s[52:53] offset:{rho*256} sc1')
        a('s_mov_b64 exec, -1')
    a('s_waitcnt vmcnt(0)')
    a('s_lshl_b32 s44, s30, 5'); a('s_add_u32 s44, s44, s16'); a('s_lshl_b32 s44, s44, 2'); a(f's_add_u32 s44, s44, {PRF_OFF}')
    a(f'v_mov_b32 v{T0}, s44'); a(f'v_mov_b32 v{T1}, 1'); a(f'global_store_dword v{T0}, v{T1}, s[4:5] sc1')
    a(f's_add_u32 s30, s30, {ngroups}'); a('s_cmp_lt_u32 s30, 64'); a(f's_cbranch_scc1 {Ll}')

def gen_E3(a, ngroups):
    vU=2; vZ=3; vPX=4; vPM=5; vO=6; vDM=7
    AF=36
    BF=68
    ACC=84
    NA=8
    a.c('================ E3 role ================')
    a('s_load_dwordx2 s[18:19], s[0:1], %d'%KA['out'])
    n,g=T0,T1
    a(f'v_and_b32 v{n}, 15, v1'); a(f'v_lshrrev_b32 v{g}, 4, v1')
    a('s_lshl_b32 s25, s24, 2'); a('s_add_u32 s25, s25, s3')
    a('s_and_b32 s26, s25, 15'); a('s_lshr_b32 s27, s25, 4')
    a('s_mul_i32 s40, s26, 49152'); a('s_lshl_b32 s41, s27, 10'); a('s_add_u32 s40, s40, s41'); a(f'v_lshlrev_b32 v{vDM}, 4, v1'); a(f'v_add_u32 v{vU}, s40, v{vDM}')
    a('s_mul_i32 s40, s26, 12288'); a('s_lshl_b32 s41, s27, 8'); a('s_add_u32 s40, s40, s41')
    a(f'v_mul_u32_u24 v{T2}, 768, v{g}'); a(f'v_lshl_add_u32 v{T2}, v{n}, 4, v{T2}'); a(f'v_add_u32 v{vZ}, s40, v{T2}')
    a(f'v_mov_b32 v{vPX}, v{vDM}')
    a(f'v_mul_u32_u24 v{T2}, 2560, v{g}'); a(f'v_lshl_add_u32 v{T2}, v{n}, 4, v{T2}'); a(f'v_add_u32 v{vPM}, 2048, v{T2}')
    a(f'v_mul_u32_u24 v{T2}, 2560, v{n}'); a(f'v_lshl_add_u32 v{T2}, v{g}, 3, v{T2}'); a('s_lshl_b32 s40, s25, 5'); a('s_add_u32 s40, s40, 1280'); a(f'v_add_u32 v{vO}, s40, v{T2}')
    a('s_waitcnt lgkmcnt(0)')
    a('s_mov_b32 s30, s23')
    Ll=a.nl('E3l')
    a.lab(Ll)
    a('s_lshl_b32 s44, s30, 7'); a(f'v_and_b32 v{T0}, 31, v1'); a(f'v_lshlrev_b32 v{T0}, 2, v{T0}'); a(f'v_add_u32 v{T0}, s44, v{T0}')
    a(f'v_add_u32 v{T1}, {PRF_OFF}, v{T0}'); a(f'v_add_u32 v{T2}, {ZF_OFF}, v{T0}'); a(f'v_add_u32 v{T3}, {UF_OFF}, v{T0}')
    Lw=a.nl('e3w'); a.lab(Lw)
    a(f'global_load_dword v{T4}, v{T1}, s[4:5] sc1'); a(f'global_load_dword v{T5}, v{T2}, s[4:5] sc1'); a(f'global_load_dword v{T0}, v{T3}, s[4:5] sc1')
    a('s_waitcnt vmcnt(0)'); a(f'v_min_u32 v{T4}, v{T4}, v{T5}'); a(f'v_min_u32 v{T4}, v{T4}, v{T0}'); a(f'v_cmp_eq_u32 vcc, 0, v{T4}')
    Lgo=a.nl('e3g'); a(f's_cbranch_vccz {Lgo}'); a('s_sleep 8'); a('s_add_u32 s100, s100, 64'); a('s_cmp_lt_u32 s100, 0x1000000'); a(f's_cbranch_scc1 {Lw}'); a('s_endpgm'); a.lab(Lgo)
    a('s_barrier')
    a('s_mul_i32 s44, s30, 81920'); a(f's_add_u32 s44, s44, {WS_PR}'); a('s_mul_i32 s45, s3, 20480'); a('s_add_u32 s44, s44, s45'); a('s_add_u32 s46, s4, s44'); a('s_addc_u32 s47, s5, 0')
    for i in range(20):
        if i%4==0 and i>0: a('s_add_u32 s46, s46, 4096'); a('s_addc_u32 s47, s47, 0')
        a(f's_add_u32 m0, s45, {i*1024-(i%4)*1024}'); a(f'global_load_lds_dwordx4 v{vDM}, s[46:47] offset:{(i%4)*1024} sc1')
    a(f's_mul_i32 s44, s30, {U_SEG}'); a('s_add_u32 s48, s4, s44'); a('s_addc_u32 s49, s5, 0'); a(f's_add_u32 s48, s48, {WS_U}'); a('s_addc_u32 s49, s49, 0')
    a(f's_mul_i32 s44, s30, {ZG_STEP}'); a('s_add_u32 s50, s4, s44'); a('s_addc_u32 s51, s5, 0'); a(f's_add_u32 s50, s50, {WS_ZG}'); a('s_addc_u32 s51, s51, 0')
    def aload(i):
        r=V(AF+4*(i%NA),4)
        if i<32:
            off=(i//16)*786432+(i%16)*3072
            return [f's_add_u32 s52, s48, {off}','s_addc_u32 s53, s49, 0',f'global_load_dwordx4 {r}, v{vU}, s[52:53] sc1']
        t=i-32; off=(t//4)*196608+(t%4)*4*768
        return [f's_add_u32 s52, s50, {off}','s_addc_u32 s53, s51, 0',f'global_load_dwordx4 {r}, v{vZ}, s[52:53] sc1']
    for i in range(NA-1): emit(a,aload(i))
    a(f's_waitcnt vmcnt({NA-1})'); a('s_barrier')
    def bread(i,rho):
        r=V(BF+4*((2*i+rho)%4),4)
        if i<32:
            off=i*2560+rho*1024
            return (f'ds_read_b128 {r}, v{vPX} offset:{off}' if off<65536 else f'ds_read_b128 {r}, v{T5} offset:{off-65536}')
        t=i-32; off=t*4*2560+rho*256
        return (f'ds_read_b128 {r}, v{vPM} offset:{off}' if off<65536-7680 else f'ds_read_b128 {r}, v{T4} offset:{off-57344}')
    a(f'v_add_u32 v{T5}, 65536, v{vPX}'); a(f'v_add_u32 v{T4}, 57344, v{vPM}')
    a(bread(0,0)); a(bread(0,1))
    for i in range(40):
        if i+NA-1<40: emit(a,aload(i+NA-1))
        if i+1<40: a(bread(i+1,0)); a(bread(i+1,1))
        a(f's_waitcnt vmcnt({min(NA-1,39-i)}) lgkmcnt({2 if i+1<40 else 0})')
        for rho in range(2):
            a(f'v_mfma_f32_16x16x32_bf16 {V(ACC+4*rho,4)}, {V(AF+4*(i%NA),4)}, {V(BF+4*((2*i+rho)%4),4)}, {"0" if i==0 else V(ACC+4*rho,4)}')
    a('s_mul_i32 s44, s30, 81920'); a('s_add_u32 s52, s18, s44'); a('s_addc_u32 s53, s19, 0')
    for rho in range(2):
        a(f'v_cvt_pk_bf16_f32 v{T0+2*rho}, v{ACC+4*rho}, v{ACC+4*rho+1}'); a(f'v_cvt_pk_bf16_f32 v{T0+2*rho+1}, v{ACC+4*rho+2}, v{ACC+4*rho+3}')
    a(f'global_store_dwordx2 v{vO}, {V(T0,2)}, s[52:53]')
    a(f'v_add_u32 v{T4}, 40960, v{vO}')
    a(f'global_store_dwordx2 v{T4}, {V(T2,2)}, s[52:53]')
    a(f's_add_u32 s30, s30, {ngroups}'); a('s_cmp_lt_u32 s30, 64'); a(f's_cbranch_scc1 {Ll}')
```

```python
import re
TRANS=('v_exp_f32','v_log_f32','v_rcp_f32','v_rsq_f32','v_sqrt_f32','v_sin_f32','v_cos_f32','v_rcp_iflag_f32')
def regs_of(tok):
    tok=tok.strip()
    neg=tok.lstrip('-')
    m=re.fullmatch(r'(?:abs\()?([vas])(\d+)\)?',neg)
    if m: return {(m.group(1),int(m.group(2)))}
    m=re.fullmatch(r'([vas])\[(\d+):(\d+)\]',neg)
    if m: return {(m.group(1),i) for i in range(int(m.group(2)),int(m.group(3))+1)}
    if tok in('vcc','vcc_lo','vcc_hi'): return {('vcc',0)}
    if tok in('exec','exec_lo','exec_hi'): return {('exec',0)}
    if tok=='m0': return {('m0',0)}
    return set()
def split_ops(s):
    out=[];depth=0;cur=''
    for ch in s:
        if ch=='[' or ch=='(': depth+=1
        if ch==']' or ch==')': depth-=1
        if ch==',' and depth==0: out.append(cur.strip());cur=''
        else: cur+=ch
    if cur.strip(): out.append(cur.strip())
    return out
def mfma_passes(mn):
    if 'f32_16x16x4_f32' in mn: return ('sg',8)
    if 'f32_32x32x2_f32' in mn: return ('sg',16)
    if '32x32' in mn: return ('xdl',8)
    if '16x16' in mn: return ('xdl',4)
    raise ValueError(mn)
class I:
    def __init__(s,line):
        s.line=line
        t=line.split(';')[0].strip()
        s.text=t
        s.label=t.endswith(':') and ' ' not in t
        s.dir=t.startswith('.')
        s.empty=(t=='')
        s.mn='' ; s.ops=[]; s.mods=''
        s.kind=None; s.w=set(); s.r=set(); s.dpp=False; s.trans=False
        if s.label or s.dir or s.empty: return
        p=t.split(None,1); s.mn=p[0]; rest=p[1] if len(p)>1 else ''
        ops=split_ops(rest)
        if ops:
            last=ops[-1].split()
            if len(last)>1 and not ops[-1].startswith('hwreg'):
                ops[-1]=last[0]; s.mods=' '.join(last[1:])
        s.ops=ops
        mn=s.mn
        R=[regs_of(o) for o in ops]
        if mn.startswith('v_mfma') or mn.startswith('v_smfmac'):
            s.kind='mfma'; s.cls,s.passes=mfma_passes(mn)
            s.D=R[0]; s.A=R[1]; s.B=R[2]
            if mn.startswith('v_smfmac'): s.C=R[0]; s.idx=R[3]
            else: s.C=R[3]; s.idx=set()
            s.w=set(s.D); s.r=s.A|s.B|s.C|s.idx
        elif mn.startswith('v_'):
            s.kind='valu'
            base=mn.replace('_e32','').replace('_e64','').replace('_dpp','').replace('_sdwa','')
            s.base=base
            s.dpp=('_dpp' in mn) or ('row_' in s.mods) or ('quad_perm' in s.mods) or ('wave_' in s.mods)
            s.trans=base in TRANS
            if base.startswith('v_cmp'):
                s.w=set(R[0]); s.r=set().union(*R[1:]) if len(R)>1 else set()
                if base.startswith('v_cmpx'): s.w|={('exec',0)}
            elif base in('v_add_co_u32','v_sub_co_u32','v_subrev_co_u32'):
                s.w=R[0]|R[1]; s.r=set().union(*R[2:])
            elif base in('v_addc_co_u32','v_subb_co_u32'):
                s.w=R[0]|R[1]; s.r=set().union(*R[2:])
            elif base.startswith('v_permlane') and 'swap' in base:
                s.w=R[0]|R[1]; s.r=R[0]|R[1]
            else:
                s.w=set(R[0]); s.r=set().union(*R[1:]) if len(R)>1 else set()
                if base in('v_fmac_f32','v_dot2c_f32_bf16','v_pk_fmac_f16','v_writelane_b32') or s.dpp or 'dst_unused:UNUSED_PRESERVE' in s.mods: s.r|=R[0]
                if base=='v_cndmask_b32' and len(ops)==3: s.r|={('vcc',0)}
        elif mn.startswith('global_') or mn.startswith('buffer_') or mn.startswith('flat_'):
            s.kind='vmem'
            allr=set().union(*R) if R else set()
            if 'lds' in s.mods.split() or '_lds_' in mn:
                s.r=allr|{('m0',0)}; s.ldsdma=True
            elif '_load' in mn:
                s.w=set(R[0]); s.r=set().union(*R[1:])
            elif '_atomic' in mn:
                if 'sc0' in s.mods.split() and mn.startswith('global_') and len(ops)==4: s.w=set(R[0]); s.r=set().union(*R[1:])
                else: s.r=allr
            elif mn in('buffer_inv','buffer_wbl2'): pass
            else:
                s.r=allr
                if mn.startswith('global_store'): s.data=R[1]
                elif mn.startswith('buffer_store'): s.data=R[0]
                s.wide=('x3' in mn or 'x4' in mn)
        elif mn.startswith('ds_'):
            s.kind='ds'
            if mn.startswith('ds_read') or mn.startswith('ds_bpermute') or mn.startswith('ds_swizzle') or mn.startswith('ds_permute'):
                s.w=set(R[0]); s.r=set().union(*R[1:])
            else: s.r=set().union(*R)
        elif mn.startswith('s_'):
            s.kind='salu'
            if mn in('s_nop',): s.kind='nop'
            elif mn.startswith('s_cbranch') or mn in('s_branch','s_endpgm','s_setpc_b64','s_swappc_b64'): s.kind='branch'
            elif mn.startswith('s_cmp') or mn.startswith('s_bitcmp') or mn in('s_waitcnt','s_barrier','s_sleep','s_setprio'):
                s.r=set().union(*R) if R else set()
            else:
                s.w=set(R[0]) if R else set(); s.r=set().union(*R[1:]) if len(R)>1 else set()
                if 'saveexec' in mn: s.w|={('exec',0)}
        else:
            raise ValueError('unknown instr: '+line)
def slots(ins):
    if ins.kind=='nop': return int(ins.ops[0],0)+1
    return 1
def need(prev,cur):
    n=0
    vw=lambda st:{x for x in st if x[0] in('v','a')}
    sw=lambda st:{x for x in st if x[0] in('s','vcc')}
    if prev.kind=='valu':
        pv=vw(prev.w); ps=sw(prev.w)
        if cur.kind=='mfma' and pv&cur.r: n=max(n,2)
        if cur.kind=='mfma' and ('exec',0) in prev.w: n=max(n,4)
        if cur.kind=='valu':
            if cur.dpp and pv&cur.r: n=max(n,2)
            if cur.dpp and ('exec',0) in prev.w: n=max(n,5)
            if cur.base.startswith('v_permlane') and pv&cur.r: n=max(n,2)
            if cur.base.startswith('v_permlane') and ('exec',0) in prev.w: n=max(n,4)
            if cur.base in('v_readlane_b32','v_readfirstlane_b32'):
                if pv&cur.r: n=max(n,1)
                if ('exec',0) in prev.w: n=max(n,4)
            if prev.trans and not cur.trans and pv&(cur.r|cur.w): n=max(n,1)
            if ps&cur.r:
                n=max(n,4 if cur.base in('v_readlane_b32','v_writelane_b32') else 2)
            if 'sdwa' in prev.mn or 'op_sel' in prev.mods:
                if pv&(cur.r|cur.w): n=max(n,1)
        if cur.kind=='vmem' and ps&cur.r: n=max(n,5)
    if prev.kind=='mfma':
        P=prev.passes; xdl=prev.cls=='xdl'
        tbl_valu={('xdl',4):8,('xdl',8):12,('sg',8):10,('sg',16):18}[(prev.cls,P)]
        tbl_ab=tbl_valu
        tbl_cpart={('xdl',4):6,('xdl',8):10,('sg',8):8,('sg',16):16}[(prev.cls,P)]
        if cur.kind=='mfma':
            if prev.D&(cur.A|cur.B|cur.idx): n=max(n,tbl_ab)
            if prev.D&cur.C:
                same=(prev.D==cur.C and prev.passes==cur.passes and prev.cls==cur.cls)
                if not same: n=max(n,tbl_cpart if not(prev.cls=='xdl' and cur.cls=='sg') else tbl_cpart)
            if prev.D&cur.D and not prev.D&cur.C: n=max(n,tbl_cpart)
        elif cur.kind in('valu','vmem','ds'):
            if prev.D&(cur.r|cur.w): n=max(n,tbl_valu)
            if cur.kind=='valu' and xdl and prev.C&cur.w: n=max(n,{4:3,8:7}[P])
            if cur.kind in('vmem','ds') and xdl and prev.C&cur.w: n=max(n,{4:3,8:7}[P])
    if prev.kind=='vmem' and getattr(prev,'wide',False):
        if cur.kind=='valu' and prev.data&cur.w: n=max(n,2)
        elif cur.kind in('vmem','ds','mfma') and prev.data&cur.w: n=max(n,2)
    if prev.kind=='salu' and ('m0',0) in prev.w and cur.kind=='vmem' and getattr(cur,'ldsdma',False): n=max(n,1)
    return n
MAXD=20
def fix(text):
    lines=text.split('\n'); out=[]; hist=[]
    ins=[I(l) for l in lines]
    total=0; skip=0
    for k,i in enumerate(ins):
        if i.empty or i.dir:
            out.append(i.line); continue
        if i.label:
            if '@end' in i.line: skip-=1
            out.append(i.line); continue
        req=0
        fwd='@fwd' in i.line
        if i.kind=='branch' and i.mn!='s_endpgm' and not fwd and not ('@in' in i.line):
            for (p,d) in hist:
                worst=0
                if p.kind=='mfma': worst={('xdl',4):8,('xdl',8):12,('sg',8):10,('sg',16):18}[(p.cls,p.passes)]
                elif p.kind=='valu':
                    if any(x[0] in('s','vcc') for x in p.w): worst=5
                    elif ('exec',0) in p.w: worst=5
                    else: worst=2
                elif p.kind=='vmem' and getattr(p,'wide',False): worst=2
                elif p.kind=='salu' and ('m0',0) in p.w: worst=1
                req=max(req,worst-d-1)
        for (p,d) in hist:
            req=max(req,need(p,i)-d)
        while req>0:
            n=min(req,16); out.append(f's_nop {n-1}'); total+=n
            hist=[(p,d+n) for (p,d) in hist]; req-=n
        out.append(i.line)
        sl=slots(i)
        if skip>0: sl=0
        hist=[(p,d+sl) for (p,d) in hist if d+sl<MAXD]
        if fwd: skip+=1
        if i.kind in('valu','mfma','vmem','salu'): hist.append((i,0))
        if i.kind=='branch' and i.mn in('s_branch','s_endpgm','s_setpc_b64') and not ('@in' in i.line): hist=[]
    return '\n'.join(out), total
```

```python
KA=dict(u=0,Are=8,Aim=16,Bre=24,Bim=32,Cre=40,Cim=48,logdt=56,Dsk=64,x=72,mem0=80,Wq=88,Wk=96,Wv=104,Wo=112,seg=120,out=128,dbg=136,ws=144)
WS_Q=0x0000000; WS_K=0x1000000
WS_KM=0x2000000
WS_PR=0x2400000
COM=0x2A00000
P_OFF=COM+0x00000;  P_SLOT=40960
PP_OFF=COM+0x30000; PP_SLOT=20480
PM_REL=16384
Z_OFF=COM+0x50000;  Z_SLOT=393216
FL_OFF=COM+0x200000
QKF_OFF=FL_OFF
UF_OFF=FL_OFF+0x4000
KMF_OFF=FL_OFF+0x6000
ZF_OFF=FL_OFF+0x8000
PRF_OFF=FL_OFF+0xA000
GF_OFF=FL_OFF+0xC000
PF_OFF=FL_OFF+0xC100
FL_END=FL_OFF+0xD000
WS_ZG=0x3000000; ZG_STEP=393216
WS_U=0x4800000;  U_SEG=1572864
SENT_BEGIN=P_OFF; SENT_END=Z_OFF+4*Z_SLOT
NSTEP=64
```

```python
from asmgen import *
from layout import *
from chain import V,T0,T1,T2,T3,T4,T5,emit,L2E
CS=4160; WREG=40960
OFF_U=8*CS
OFF_C=OFF_U+6144
INV2PI=0x3e22f983
def gen_A(a, nwg, rounds_reg_note=''):
    vTB=2; vHI=4
    vLO=10; vSH=12
    vCW=14; vAR=15; vBR=16; vUW=17; vUE=18; vST=19; vWB=20; vCPY=21; vL4=22
    SRC=36
    PM=76
    KD=84
    AE=96
    TM=104
    G=120
    W=160
    W1=182; O=204; O1=226
    Y=96
    FA=128
    FB=160
    UL=192
    a.c('================ A role ================')
    for i,k in enumerate(('Are','Aim','Bre','Bim','Cre','Cim')):
        a(f's_load_dwordx2 s[{46+2*i}:{47+2*i}], s[0:1], {KA[k]}')
    a(f's_load_dwordx2 s[58:59], s[0:1], {KA["logdt"]}'); a(f's_load_dwordx2 s[60:61], s[0:1], {KA["Dsk"]}')
    a(f's_load_dwordx2 s[62:63], s[0:1], {KA["u"]}'); a(f's_load_dwordx2 s[64:65], s[0:1], {KA["out"]}')
    a(f's_mul_i32 s26, s3, {WREG}')
    i_,k_=T0,T1
    a(f'v_and_b32 v{i_}, 15, v1'); a(f'v_lshrrev_b32 v{k_}, 4, v1')
    a(f'v_lshlrev_b32 v{vTB}, 4, v{k_}'); a(f'v_add_u32 v{vTB}, s26, v{vTB}')
    a(f'v_lshlrev_b32 v{vL4}, 2, v1')
    x,y=T2,T3
    a(f'v_add_u32 v{x}, 120, v{i_}'); a(f'v_cmp_gt_u32 vcc, 8, v{i_}'); a(f'v_cndmask_b32 v{x}, v{x}, v{i_}, vcc'); a(f'v_cvt_f32_u32 v{vHI}, v{x}')
    a(f'v_lshrrev_b32 v{x}, 2, v{i_}'); a(f'v_lshlrev_b32 v{x}, 7, v{x}'); a(f'v_and_b32 v{y}, 3, v{i_}'); a(f'v_lshl_add_u32 v{x}, v{y}, 1, v{x}'); a(f'v_add_u32 v{x}, 256, v{x}')
    a(f'v_bfe_u32 v{y}, v{i_}, 1, 2'); a(f'v_lshlrev_b32 v{y}, 7, v{y}'); a(f'v_and_b32 v{T4}, 1, v{i_}'); a(f'v_lshl_add_u32 v{y}, v{T4}, 2, v{y}'); a(f'v_add_u32 v{y}, 512, v{y}')
    a(f'v_cndmask_b32 v{x}, v{y}, v{x}, vcc'); a(f'v_cvt_f32_u32 v{vHI+2}, v{x}')
    a(f'v_lshlrev_b32 v{x}, 7, v{i_}'); a(f'v_add_u32 v{x}, 1024, v{x}'); a(f'v_cmp_gt_u32 vcc, 9, v{i_}'); a(f'v_cndmask_b32 v{x}, 0, v{x}, vcc'); a(f'v_cvt_f32_u32 v{vHI+4}, v{x}')
    for t in range(3): a(f'v_mov_b32 v{vHI+2*t+1}, v{vHI+2*t}')
    a(f'v_lshlrev_b32 v{x}, 3, v{i_}'); a(f'v_cvt_f32_u32 v{vLO}, v{x}'); a(f'v_mov_b32 v{vLO+1}, v{vLO}')
    a(f'v_mov_b32 v{vSH}, 0'); a(f'v_and_b32 v{x}, 1, v{k_}'); a(f'v_cmp_eq_u32 vcc, 1, v{x}'); a(f'v_mov_b32 v{y}, 0xbe800000'); a(f'v_cndmask_b32 v{vSH+1}, 0, v{y}, vcc')
    a(f'v_lshlrev_b32 v{x}, 7, v{k_}'); a(f'v_lshl_add_u32 v{x}, v{i_}, 1, v{x}'); a(f'v_add_u32 v{x}, s26, v{x}'); a(f'v_add_u32 v{vCW}, {OFF_C}, v{x}')
    a(f'v_and_b32 v{x}, 7, v1'); a(f'v_mul_u32_u24 v{x}, {CS}, v{x}'); a(f'v_bfe_u32 v{y}, v1, 3, 2'); a(f'v_lshlrev_b32 v{y}, 4, v{y}'); a(f'v_sub_u32 v{x}, v{x}, v{y}')
    a(f'v_lshrrev_b32 v{y}, 5, v1'); a(f'v_lshl_add_u32 v{x}, v{y}, 4, v{x}'); a(f'v_add_u32 v{x}, s26, v{x}'); a(f'v_add_u32 v{vAR}, {4080-64*63}, v{x}')
    a(f'v_and_b32 v{x}, 31, v1'); a(f'v_lshlrev_b32 v{x}, 6, v{x}'); a(f'v_lshl_add_u32 v{x}, v{y}, 4, v{x}'); a(f'v_add_u32 v{x}, s26, v{x}'); a(f'v_add_u32 v{vBR}, {OFF_U+2048-31*64}, v{x}')
    a(f'v_and_b32 v{x}, 31, v1'); a(f'v_lshlrev_b32 v{x}, 6, v{x}'); a(f'v_lshl_add_u32 v{x}, v{y}, 3, v{x}'); a(f'v_add_u32 v{x}, s26, v{x}'); a(f'v_add_u32 v{vUE}, {OFF_U+2048}, v{x}')
    a(f'v_and_b32 v{x}, 31, v1'); a(f'v_lshlrev_b32 v{x}, 8, v{x}'); a(f'v_lshl_add_u32 v{x}, v{y}, 5, v{x}'); a('s_lshl_b32 s40, s3, 1'); a(f'v_add_u32 v{vST}, s40, v{x}')
    a(f'v_lshlrev_b32 v{x}, 1, v0'); a(f'v_add_u32 v{vUW}, {OFF_U+2048}, v{x}')
    a(f'v_lshlrev_b32 v{x}, 6, v1'); a(f'v_add_u32 v{vCPY}, s26, v{x}')
    a(f'v_lshlrev_b32 v{vWB}, 5, v1'); a(f'v_sub_u32 v{vWB}, 2048, v{vWB}')
    ZS=256*16
    for e in range(40):
        idx,lb,tl,r,j=TM,TM+1,TM+2,TM+3,TM+4
        a(f'v_subrev_u32 v{idx}, {e}, v{vWB}')
        a(f'v_max_i32 v{lb}, 0, v{idx}'); a(f'v_min_i32 v{lb}, 2047, v{lb}'); a(f'v_cvt_f32_u32 v{lb}, v{lb}')
        a(f'v_cvt_pk_bf16_f32 v{lb}, v{lb}, v{lb}'); a(f'v_lshlrev_b32 v{lb}, 16, v{lb}'); a(f'v_cvt_u32_f32 v{lb}, v{lb}')
        a(f'v_bfe_u32 v{j}, v{lb}, 3, 4')
        a(f'v_and_b32 v{r}, 7, v{lb}')
        a(f'v_add_u32 v{tl}, 8, v{r}'); a(f'v_cmp_le_u32 vcc, 128, v{lb}'); a(f'v_cndmask_b32 v{r}, v{r}, v{tl}, vcc')
        a(f'v_bfe_u32 v{tl}, v{lb}, 7, 1'); a(f'v_lshlrev_b32 v{tl}, 2, v{tl}'); a(f'v_bfe_u32 v{TM+5}, v{lb}, 1, 2'); a(f'v_add3_u32 v{tl}, v{tl}, v{TM+5}, 16')
        a(f'v_cmp_le_u32 vcc, 256, v{lb}'); a(f'v_cndmask_b32 v{r}, v{r}, v{tl}, vcc')
        a(f'v_bfe_u32 v{tl}, v{lb}, 7, 2'); a(f'v_lshlrev_b32 v{tl}, 1, v{tl}'); a(f'v_bfe_u32 v{TM+5}, v{lb}, 2, 1'); a(f'v_add3_u32 v{tl}, v{tl}, v{TM+5}, 24')
        a(f'v_cmp_le_u32 vcc, 512, v{lb}'); a(f'v_cndmask_b32 v{r}, v{r}, v{tl}, vcc')
        a(f'v_subrev_u32 v{tl}, 1024, v{lb}'); a(f'v_lshrrev_b32 v{tl}, 7, v{tl}'); a(f'v_add_u32 v{tl}, 32, v{tl}')
        a(f'v_cmp_le_u32 vcc, 1024, v{lb}'); a(f'v_cndmask_b32 v{r}, v{r}, v{tl}, vcc')
        a(f'v_lshlrev_b32 v{r}, 5, v{r}'); a(f'v_lshl_add_u32 v{r}, v{j}, 1, v{r}'); a(f'v_add_u32 v{r}, {OFF_C}, v{r}')
        a(f'v_mov_b32 v{tl}, {ZS}'); a(f'v_cmp_gt_i32 vcc, 0, v{idx}'); a(f'v_cndmask_b32 v{r}, v{r}, v{tl}, vcc')
        a(f'v_add_u32 v{SRC+e}, s26, v{r}')
    for i in range(4): a(f'v_mov_b32 v{TM+i}, 0')
    a(f'v_lshlrev_b32 v{x}, 4, v1'); a(f'v_add_u32 v{x}, s26, v{x}')
    a(f'ds_write_b128 v{x}, {V(TM,4)} offset:{OFF_U}'); a(f'ds_write_b128 v{x}, {V(TM,4)} offset:{OFF_U+1024}')
    a(f'v_bfe_u32 v{y}, v1, 2, 3'); a(f'v_mul_u32_u24 v{y}, {CS}, v{y}'); a(f'v_and_b32 v{T4}, 3, v1'); a(f'v_lshl_add_u32 v{y}, v{T4}, 4, v{y}'); a(f'v_add_u32 v{y}, s26, v{y}')
    a(f'ds_write_b128 v{y}, {V(TM,4)} offset:4096')
    a('s_waitcnt lgkmcnt(0)')
    a('s_mov_b32 s30, s23')
    Ll=a.nl('Al'); a.lab(Ll)
    a('s_lshl_b32 s31, s30, 2'); a('s_add_u32 s32, s31, s3')
    a(f'v_mul_u32_u24 v{T4}, 1280, v0'); a('s_lshl_b32 s40, s31, 1'); a(f'v_add_u32 v{T4}, s40, v{T4}')
    a('s_mov_b32 s42, s62'); a('s_mov_b32 s43, s63')
    for i in range(8):
        a(f'global_load_dwordx2 {V(UL+2*i,2)}, v{T4}, s[42:43]')
        if i<7: a(f's_add_u32 s42, s42, {256*1280}'); a('s_addc_u32 s43, s43, 0')
    a('s_lshl_b32 s40, s32, 8'); a(f'v_add_u32 v{T5}, s40, v{vL4}')
    for i in range(6): a(f'global_load_dword v{TM+i}, v{T5}, s[{46+2*i}:{47+2*i}]')
    a('s_lshl_b32 s40, s32, 1'); a(f'v_mov_b32 v{T5}, s40')
    a(f'global_load_ushort v{TM+6}, v{T5}, s[58:59]'); a(f'global_load_ushort v{TM+7}, v{T5}, s[60:61]')
    a('s_waitcnt vmcnt(0)')
    dt=TM+6; dsk=23
    a(f'v_lshlrev_b32 v{dsk}, 16, v{TM+7}')
    a(f'v_lshlrev_b32 v{dt}, 16, v{dt}'); a(f'v_mul_f32 v{dt}, {L2E}, v{dt}'); a(f'v_exp_f32 v{dt}, v{dt}')
    a(f'v_cvt_pk_bf16_f32 v{dt}, v{dt}, v{dt}'); a(f'v_lshlrev_b32 v{dt}, 16, v{dt}')
    for h in range(2):
        u=[TM+8+i for i in range(6)]
        for i in range(6):
            if h==0: a(f'v_lshlrev_b32 v{u[i]}, 16, v{TM+i}')
            else: a(f'v_and_b32 v{u[i]}, 0xffff0000, v{TM+i}')
        P=PM
        a(f'v_mul_f32 v{u[0]}, v{dt}, v{u[0]}'); a(f'v_mul_f32 v{P}, {L2E}, v{u[0]}')
        a(f'v_mul_f32 v{u[1]}, v{dt}, v{u[1]}'); a(f'v_mul_f32 v{P+1}, {INV2PI}, v{u[1]}')
        a(f'v_mul_f32 v{u[2]}, v{dt}, v{u[2]}'); a(f'v_mul_f32 v{u[3]}, v{dt}, v{u[3]}')
        a(f'v_mul_f32 v{P+2}, v{u[4]}, v{u[2]}'); a(f'v_fma_f32 v{P+2}, -v{u[5]}, v{u[3]}, v{P+2}')
        a(f'v_mul_f32 v{P+6}, v{u[4]}, v{u[3]}'); a(f'v_fma_f32 v{P+6}, v{u[5]}, v{u[2]}, v{P+6}')
        a(f'v_sub_f32 v{P+6}, 0, v{P+6}')
        a(f'v_mov_b32 v{P+3}, v{P+6}')
        a(f'v_sub_f32 v{P+7}, 0, v{P+2}')
        a(f'v_mov_b32 v{P+4}, v{P}'); a(f'v_mov_b32 v{P+5}, v{P+1}')
        a(f'ds_write_b128 v{vCPY}, {V(P,4)} offset:{h*32}'); a(f'ds_write_b128 v{vCPY}, {V(P+4,4)} offset:{h*32+16}')
    for i in range(8):
        for ch in range(4):
            src=UL+2*i+(ch>>1)
            op='ds_write_b16' if ch%2==0 else 'ds_write_b16_d16_hi'
            if ch*WREG+i*512<65536-OFF_U-3000 and False: pass
            a(f'v_add_u32 v{T5}, {ch*WREG+i*512}, v{vUW}'); a(f'{op} v{T5}, v{src}')
    a('s_waitcnt lgkmcnt(0)')
    def prm(m): return f'ds_read_b128 {V(PM+4*(m%2),4)}, v{vTB} offset:{m*64}'
    a(prm(0))
    for m in range(64):
        if m+1<64: a(prm(m+1))
        a(f's_waitcnt lgkmcnt({1 if m+1<64 else 0})')
        P=PM+4*(m%2); E=AE+4*(m%2)
        a(f'v_pk_mul_f32 {V(TM,2)}, {V(P,2)}, {V(vLO,2)}')
        for t in range(3): a(f'v_pk_fma_f32 {V(TM+2+2*t,2)}, {V(P,2)}, {V(vHI+2*t,2)}, {V(vSH,2)}')
        a(f'v_fract_f32 v{TM+1}, v{TM+1}')
        for t in range(3): a(f'v_fract_f32 v{TM+3+2*t}, v{TM+3+2*t}')
        a(f'v_exp_f32 v{TM}, v{TM}'); a(f'v_cos_f32 v{TM+8}, v{TM+1}'); a(f'v_sin_f32 v{TM+9}, v{TM+1}')
        for t in range(3): a(f'v_exp_f32 v{TM+2+2*t}, v{TM+2+2*t}'); a(f'v_cos_f32 v{TM+3+2*t}, v{TM+3+2*t}')
        a(f'v_mul_f32 v{TM+8}, v{P+2}, v{TM+8}'); a(f'v_fmac_f32 v{TM+8}, v{P+3}, v{TM+9}'); a(f'v_mul_f32 v{E+3}, v{TM+8}, v{TM}')
        for t in range(3): a(f'v_mul_f32 v{E+t}, v{TM+2+2*t}, v{TM+3+2*t}')
        for t in range(3): a(f'v_mfma_f32_16x16x4_f32 {V(KD+4*t,4)}, v{E+t}, v{E+3}, {"0" if m==0 else V(KD+4*t,4)}')
    for t in range(3):
        for p in range(2):
            a(f'v_cvt_pk_bf16_f32 v{TM+p}, v{KD+4*t+2*p}, v{KD+4*t+2*p+1}')
            a(f'ds_write_b16 v{vCW}, v{TM+p} offset:{t*512+(2*p)*32}'); a(f'ds_write_b16_d16_hi v{vCW}, v{TM+p} offset:{t*512+(2*p+1)*32}')
    a('s_waitcnt lgkmcnt(0)')
    for e in range(40):
        a(f'ds_read_u16 v{G+e}, v{SRC+e}')
        if e%12==11: a('s_waitcnt lgkmcnt(0)')
    a('s_waitcnt lgkmcnt(0)')
    for p in range(20): a(f'v_lshl_or_b32 v{W+p}, v{G+2*p+1}, 16, v{G+2*p}')
    for p in range(19): a(f'v_mov_b32 v{W1+p}, v{W+p+1}')
    for p in range(19): a(f'v_alignbit_b32 v{O+p}, v{W+p+1}, v{W+p}, 16')
    for p in range(18): a(f'v_mov_b32 v{O1+p}, v{O+p+1}')
    for c in range(8):
        for k in range(4):
            e0=8+8*k-c
            if e0%2==0:
                p=e0//2; src=(W+p) if p%2==0 else (W1+p-1)
            else:
                p=(e0-1)//2; src=(O+p) if p%2==0 else (O1+p-1)
            a(f'ds_write_b128 v{vCPY}, {V(src,4)} offset:{c*CS+k*16}')
    a('s_waitcnt lgkmcnt(0)'); a('s_barrier')
    def rdA(dl,kp,dst): return f'ds_read_b128 {V(dst,4)}, v{vAR} offset:{(63-dl)*64+32*kp}'
    def rdB(sh,kp,dst):
        return f'ds_read_b128 {V(dst,4)}, v{vBR} offset:{(31-sh)*64+32*kp}'
    def loads(dp):
        b=dp%2; L=[]
        for kp in range(2):
            L.append(rdA(dp,kp,FA+16*b+4*kp)); L.append(rdA(dp+32,kp,FA+16*b+8+4*kp))
            L.append(rdB(dp,kp,FB+16*b+4*kp)); L.append(rdB(dp-32,kp,FB+16*b+8+4*kp))
        return L
    emit(a,loads(0))
    for dp in range(32):
        if dp+1<32: emit(a,loads(dp+1))
        a(f's_waitcnt lgkmcnt({8 if dp+1<32 else 0})')
        b=dp%2
        for kp in range(2):
            A0=FA+16*b+4*kp; A1=FA+16*b+8+4*kp; B0=FB+16*b+4*kp; B1=FB+16*b+8+4*kp
            first=(dp==0 and kp==0)
            a(f'v_mfma_f32_32x32x16_bf16 {V(Y,16)}, {V(A0,4)}, {V(B0,4)}, {"0" if first else V(Y,16)}')
            a(f'v_mfma_f32_32x32x16_bf16 {V(Y+16,16)}, {V(A1,4)}, {V(B0,4)}, {"0" if first else V(Y+16,16)}')
            a(f'v_mfma_f32_32x32x16_bf16 {V(Y+16,16)}, {V(A0,4)}, {V(B1,4)}, {V(Y+16,16)}')
    for ct in range(2):
        for bq in range(4): a(f'ds_read_b64 {V(FA+(ct*4+bq)*2,2)}, v{vUE} offset:{ct*2048+bq*16}')
    a('s_waitcnt lgkmcnt(0)')
    R=FB
    for ct in range(2):
        for bq in range(4):
            yb=Y+16*ct+4*bq; ub=FA+(ct*4+bq)*2
            for p in range(2):
                t0,t1,t2,t3=244,245,246,247
                a(f'v_cvt_pk_bf16_f32 v{t0}, v{yb+2*p}, v{yb+2*p+1}')
                a(f'v_lshlrev_b32 v{t1}, 16, v{ub+p}'); a(f'v_and_b32 v{t2}, 0xffff0000, v{ub+p}')
                a(f'v_mul_f32 v{t1}, v{t1}, v{dsk}'); a(f'v_mul_f32 v{t2}, v{t2}, v{dsk}')
                a(f'v_cvt_pk_bf16_f32 v{t3}, v{t1}, v{t2}')
                a(f'v_lshlrev_b32 v{t1}, 16, v{t0}'); a(f'v_and_b32 v{t2}, 0xffff0000, v{t0}')
                a(f'v_lshlrev_b32 v{t0}, 16, v{t3}'); a(f'v_and_b32 v{t3}, 0xffff0000, v{t3}')
                a(f'v_add_f32 v{t1}, v{t1}, v{t0}'); a(f'v_add_f32 v{t2}, v{t2}, v{t3}')
                a(f'v_cvt_pk_bf16_f32 v{R+(ct*4+bq)*2+p}, v{t1}, v{t2}')
    a('s_barrier')
    for ct in range(2):
        for bq in range(4):
            for p in range(2):
                r=R+(ct*4+bq)*2+p; l=1024*ct+8*bq+2*p
                a(f'ds_write_b16 v{vST}, v{r} offset:{l*8}'); a(f'ds_write_b16_d16_hi v{vST}, v{r} offset:{l*8+8}')
    a('s_waitcnt lgkmcnt(0)'); a('s_barrier')
    a(f'v_lshlrev_b32 v{T4}, 3, v0')
    for i in range(8): a(f'ds_read_b64 {V(UL+2*i,2)}, v{T4} offset:{i*2048}')
    a(f'v_mul_u32_u24 v{T4}, 2560, v0'); a('s_lshl_b32 s40, s31, 1'); a(f'v_add_u32 v{T4}, s40, v{T4}')
    a('s_mov_b32 s42, s64'); a('s_mov_b32 s43, s65')
    a('s_waitcnt lgkmcnt(0)')
    for i in range(8):
        a(f'global_store_dwordx2 v{T4}, {V(UL+2*i,2)}, s[42:43]')
        if i<7: a(f's_add_u32 s42, s42, {256*2560}'); a('s_addc_u32 s43, s43, 0')
    a('s_barrier')
    for i in range(4): a(f'v_mov_b32 v{TM+i}, 0')
    a(f'v_bfe_u32 v{T3}, v1, 2, 3'); a(f'v_mul_u32_u24 v{T3}, {CS}, v{T3}'); a(f'v_and_b32 v{T4}, 3, v1'); a(f'v_lshl_add_u32 v{T3}, v{T4}, 4, v{T3}'); a(f'v_add_u32 v{T3}, s26, v{T3}')
    a(f'ds_write_b128 v{T3}, {V(TM,4)} offset:4096')
    a(f's_add_u32 s30, s30, {nwg}'); a('s_cmp_lt_u32 s30, 160'); a(f's_cbranch_scc1 {Ll}')
```

```python
import sys
from asmgen import *
from layout import *
import chain, ext, parta, hazard
NAME='concat_heads__ssm_conv_s4__memory_aug_recurrent_mem_tr__prompt'
KN=NAME+'_kernel'
XA,XB=0,1
def sync_check(a):
    L=a.nl('sc'); Lok=a.nl('sco')
    a('v_mov_b32 v30, 64')
    a.lab(L)
    a('global_load_dword v31, v30, s[6:7] sc1'); a('s_waitcnt vmcnt(0)'); a('v_readfirstlane_b32 s40, v31')
    a('s_cmp_ge_u32 s40, 256'); Lg=a.nl('scg'); a(f's_cbranch_scc1 {Lg}'); a('s_sleep 4'); a('s_add_u32 s100, s100, 64'); a('s_cmp_lt_u32 s100, 0x1000000'); a(f's_cbranch_scc1 {L}'); a('s_endpgm')
    a.lab(Lg)
    a('s_cmp_lg_u32 s101, 0'); a(f's_cbranch_scc1 {Lok}')
    a('v_and_b32 v30, 7, v1'); a('v_lshlrev_b32 v30, 2, v30')
    a('global_load_dword v31, v30, s[6:7] sc1'); a('s_waitcnt vmcnt(0)')
    a(f'v_cmp_ne_u32 vcc, {32 if not FORCE_SAFE else 33}, v31'); a(f's_cbranch_vccz {Lok}')
    a('s_mov_b32 s101, 1'); a('s_lshr_b32 s12, s2, 5'); a('s_and_b32 s17, s2, 31'); a('s_barrier'); a('s_branch L_dispatch')
    a.lab(Lok)
FORCE_SAFE=False
def gen(stamps=False, prof=False):
    chain.STAMPS=stamps
    a=Asm()
    hdr=open('cdna_kernels/'+NAME+'.s.ref').read().split('\n')
    for l in hdr:
        if l.startswith('; @launch'): break
        a(l)
    a('; @launch grid=(256,1,1) block=(256,1,1) lds=163840')
    a('.amdgcn_target "amdgcn-amd-amdhsa--gfx950"')
    a(kernel_header(KN))
    a('s_cmp_ge_u32 s2, 256'); a('s_cbranch_scc1 L_exit')
    if prof: a('s_memrealtime s[20:21]')
    a(f's_load_dwordx2 s[4:5], s[0:1], {KA["ws"]}'); a(f's_load_dwordx2 s[6:7], s[0:1], {KA["dbg"]}')
    a('s_getreg_b32 s12, hwreg(HW_REG_XCC_ID, 0, 4)')
    a('v_and_b32 v1, 63, v0'); a('v_lshrrev_b32 v30, 6, v0'); a('v_readfirstlane_b32 s3, v30')
    a('s_mov_b32 s101, 0'); a('s_mov_b32 s100, 0')
    a('s_waitcnt lgkmcnt(0)')
    a('s_cmp_lg_u32 s3, 0'); a('s_cbranch_scc1 L_tk')
    a('s_lshl_b32 s14, s12, 2'); a('v_mov_b32 v30, s14'); a('v_mov_b32 v31, 1')
    a('s_mov_b64 exec, 1')
    a('global_atomic_add v32, v30, v31, s[6:7] sc0')
    a('s_mov_b64 exec, -1')
    a.lab('L_tk')
    nsent=(SENT_END-SENT_BEGIN)//256; assert nsent%16==0 and nsent<=8192
    a(f's_mul_i32 s40, s2, {nsent}'); a(f's_add_u32 s40, s40, {SENT_BEGIN}')
    a('v_lshlrev_b32 v33, 4, v0'); a('v_add_u32 v34, s40, v33')
    for i in range(4): a(f'v_mov_b32 v{36+i}, -1')
    a('global_store_dwordx4 v34, v[36:39], s[4:5] sc1')
    a(f'v_cmp_gt_u32 vcc, {nsent-4096}, v33'); a('s_and_saveexec_b64 s[42:43], vcc'); a('s_cbranch_execz L_i2')
    a('global_store_dwordx4 v34, v[36:39], s[4:5] offset:4095 sc1'.replace('offset:4095','offset:0')) if False else None
    a('v_add_u32 v34, 4096, v34'); a('global_store_dwordx4 v34, v[36:39], s[4:5] sc1')
    a.lab('L_i2'); a('s_mov_b64 exec, s[42:43]')
    nfl=(FL_END-FL_OFF)//256; assert nfl%16==0
    a(f's_mul_i32 s40, s2, {nfl}'); a(f's_add_u32 s40, s40, {FL_OFF}'); a('v_add_u32 v34, s40, v33')
    for i in range(4): a(f'v_mov_b32 v{40+i}, 0')
    a(f'v_cmp_gt_u32 vcc, {nfl}, v33'); a('s_and_saveexec_b64 s[42:43], vcc'); a('s_cbranch_execz L_i3')
    a('global_store_dwordx4 v34, v[40:43], s[4:5] sc1')
    a.lab('L_i3'); a('s_mov_b64 exec, s[42:43]')
    a('s_waitcnt vmcnt(0)')
    a('s_cmp_lg_u32 s3, 0'); a('s_cbranch_scc1 L_tk2')
    a('v_mov_b32 v30, 0'); a('s_mov_b64 exec, 1'); a('ds_write_b32 v30, v32'); a('s_mov_b64 exec, -1'); a('s_waitcnt lgkmcnt(0)')
    a.lab('L_tk2')
    a('s_barrier')
    a('v_mov_b32 v30, 0'); a('ds_read_b32 v32, v30')
    a('s_cmp_lg_u32 s3, 0'); a('s_cbranch_scc1 L_tk3')
    a('v_mov_b32 v30, 64'); a('v_mov_b32 v31, 1'); a('s_mov_b64 exec, 1'); a('global_atomic_add v30, v31, s[6:7]'); a('s_mov_b64 exec, -1')
    a.lab('L_tk3')
    a('s_waitcnt lgkmcnt(0)')
    a('v_readfirstlane_b32 s17, v32')
    a('s_barrier')
    a.lab('L_dispatch')
    a('s_cmp_gt_u32 s12, 7'); a('s_cbranch_scc1 L_odd')
    a('s_cmp_lt_u32 s12, 2'); a('s_cbranch_scc1 L_chain')
    a('s_cmp_lt_u32 s12, 4'); a('s_cbranch_scc1 L_e1')
    a('s_cmp_lt_u32 s12, 6'); a('s_cbranch_scc1 L_vu')
    a('s_sub_u32 s40, s12, 6'); a('s_lshl_b32 s29, s40, 5'); a('s_add_u32 s29, s29, s17'); a('s_and_b32 s29, s29, 63')
    sync_check(a)
    a('s_mov_b32 s23, s29')
    parta.gen_A(a,64)
    if prof: prof_end(a,'s29',0)
    a('s_barrier')
    a('s_cmp_ge_u32 s29, 24'); a('s_cbranch_scc1 L_e3')
    a('s_lshr_b32 s23, s29, 3'); a('s_and_b32 s24, s29, 7')
    ext.gen_E2(a,3); a('s_waitcnt vmcnt(0)')
    if prof: prof_end(a,'s29',64)
    a('s_endpgm')
    a.lab('L_e3')
    a('s_sub_u32 s41, s29, 24'); a('s_mul_hi_u32 s23, s41, 429496730'); a('s_mul_i32 s40, s23, 10'); a('s_sub_u32 s24, s41, s40')
    ext.gen_E3(a,4); a('s_waitcnt vmcnt(0)')
    if prof: prof_end(a,'s29',64)
    a('s_endpgm')
    a.lab('L_odd')
    sync_check(a)
    a('s_endpgm')
    a.lab('L_e1')
    a('s_and_b32 s17, s17, 31')
    a('s_lshr_b32 s14, s17, 1'); a('s_cmp_eq_u32 s12, 2'); a('s_cselect_b32 s40, 16, 0'); a('s_add_u32 s14, s14, s40'); a('s_and_b32 s15, s17, 1')
    ext.SYNC=sync_check
    ext.END=(lambda a: prof_end(a,'s14',128+0)) if prof else None
    ext.gen_E1(a)
    a.lab('L_vu')
    a('s_and_b32 s17, s17, 31')
    a('s_sub_u32 s15, s12, 4'); a('s_lshr_b32 s14, s17, 1'); a('s_lshl_b32 s16, s15, 4'); a('s_add_u32 s16, s16, s14'); a('s_and_b32 s17, s17, 1')
    ext.END=(lambda a: prof_end(a,'s16',160)) if prof else None
    ext.gen_VU(a)
    a.lab('L_chain')
    a('s_and_b32 s17, s17, 31')
    a('s_mov_b32 s15, s12'); a('s_and_b32 s14, s17, 15'); a('s_lshl_b32 s16, s15, 4'); a('s_add_u32 s16, s16, s14')
    chain.SYNC=sync_check
    a('s_cmp_lg_u32 s101, 0'); a('s_cbranch_scc1 L_chain_safe')
    a('s_cmp_ge_u32 s17, 16'); a('s_cbranch_scc1 L_vo')
    chain.gen_QK(a,False,NSTEP,(lambda a: prof_end(a,'s16',192)) if prof else None)
    a.lab('L_vo'); chain.gen_VO(a,False)
    a.lab('L_chain_safe')
    a('s_cmp_ge_u32 s17, 16'); a('s_cbranch_scc1 L_vo_s')
    chain.gen_QK(a,True)
    a.lab('L_vo_s'); chain.gen_VO(a,True)
    a.lab('L_exit')
    a('s_endpgm')
    a(kernel_desc(KN))
    a.lines=[l for l in a.lines if l is not None]
    t,n=hazard.fix(a.text())
    return t
def prof_end(a, idxreg, base):
    L=a.nl('pe')
    a('s_cmp_lg_u32 s3, 0'); a(f's_cbranch_scc1 {L}')
    a('s_memrealtime s[82:83]'); a('s_waitcnt lgkmcnt(0)')
    a(f's_add_u32 s40, {idxreg}, {base}'); a('s_lshl_b32 s40, s40, 3'); a(f's_add_u32 s40, s40, {FL_END+0x8000}')
    a('v_mov_b32 v30, s40'); a('v_mov_b32 v32, s20'); a('v_mov_b32 v33, s82'); a('global_store_dwordx2 v30, v[32:33], s[4:5]')
    a.lab(L)
if __name__=='__main__':
    if len(sys.argv)>2 and sys.argv[2]=='safe': FORCE_SAFE=True
    t=gen(prof=(len(sys.argv)>2 and sys.argv[2]=='prof'))
    out=sys.argv[1] if len(sys.argv)>1 else 'cdna_kernels/'+NAME+'.s'
    open(out,'w').write(t); print(len(t.split('\n')),'lines',len(t),'bytes ->',out)
```

```python
from asmgen import *
from layout import *
SCALE=0x3db504f3
L2E=0x3fb8aa3b
LDS_A=0
LDS_F=10240
LDS_ML=14336
LDS_R=14848
LDS_GO=21504
LDS_ML2=21760
STG_BLK=1088; STG_BUF=32*STG_BLK

def wr(idx,n):
    if idx<256:
        assert idx+n<=256
        return f'a[{idx}:{idx+n-1}]'
    b=192+idx-256
    return f'v[{b}:{b+n-1}]'
def V(b,n=1): return f'v{b}' if n==1 else f'v[{b}:{b+n-1}]'

def interleave(a, mains, fillers, per=2, start=0):
    f=list(fillers)
    for i,m in enumerate(mains):
        a(m)
        if i>=start and not m.startswith('s_waitcnt'):
            for _ in range(per):
                if f: a(f.pop(0))
    for x in f: a(x)

T0,T1,T2,T3,T4,T5=30,31,32,33,34,35
vG=2; vAW=3; vAR=4; vIDX=5; vSEL=6
GL=36; AF=56; GD=56; ACC=96

def masks(a):
    a('s_mov_b32 s60, 0x00ff00ff'); a('s_mov_b32 s61, 0x00ff00ff')
    a('s_mov_b32 s62, 0'); a('s_mov_b32 s63, 0x00ff00ff')
    a('s_mov_b32 s64, -1'); a('s_mov_b32 s65, 0')
    a('s_mov_b32 s72, 0xff00ff00'); a('s_mov_b32 s73, 0xff00ff00')
    a('s_mov_b32 s66, 0x3e0293ee'); a('s_mov_b32 s67, 0x3e0293ee')
    a('s_mov_b32 s70, 0xfffffffe')

def load_weights(a, srcs, trs, NR=10):
    def issue(r):
        srcs(r)
        a(f's_mul_i32 s44, s3, {8*STG_BLK}')
        a(f's_add_u32 s44, s44, {(r%4)*STG_BUF}')
        a(f'v_mov_b32 v{T5}, v{T4}')
        for i in range(8):
            a(f's_add_u32 m0, s44, {i*STG_BLK}')
            a(f'global_load_lds_dwordx4 v{T5}, s[40:41]')
            if i<7: a(f'v_add_u32 v{T5}, s43, v{T5}')
    for r in range(3): issue(r)
    for r in range(NR):
        a(f's_waitcnt vmcnt({8*min(NR-1-r,2)})')
        a('s_barrier')
        if r+3<NR: issue(r+3)
        trs(r,(r%4)*STG_BUF)
        a('s_waitcnt lgkmcnt(0)')
    a('s_barrier')

def tr_addr16(a, dst):
    a(f'v_lshrrev_b32 v{T0}, 4, v1'); a(f'v_mul_u32_u24 v{dst}, {2*STG_BLK}, v{T0}')
    a(f'v_bfe_u32 v{T0}, v1, 2, 2'); a(f'v_lshl_add_u32 v{dst}, v{T0}, 8, v{dst}')
    a(f'v_and_b32 v{T0}, 3, v1'); a(f'v_lshl_add_u32 v{dst}, v{T0}, 3, v{dst}')
    a('s_lshl_b32 s40, s3, 6'); a(f'v_add_u32 v{dst}, s40, v{dst}')
def tr_B16(a, vaddr, bufoff, blocks):
    a(f'v_add_u32 v{T3}, {bufoff}, v{vaddr}')
    for (m,tp,idx) in blocks:
        for hB in range(2):
            for half in range(2):
                off=(m*16+8*hB+half)*STG_BLK+32*tp
                a(f'ds_read_b64_tr_b16 {wr(idx+hB*4+half*2,2)}, v{T3} offset:{off}')

vG3=184; vAW3=185; vSELH=186
SELH=None
DELAY_VO=0; DELAY_QK=0; NU_MID=6
EXP=set(); EW_P=0; EW_G=0; Z_DELAY=5; PF_A=6; PF_PACE=1; W3_DELAY=12
def common_consts(a, selh, nw=4):
    n,g,x,y=T0,T1,T2,T3
    a(f'v_and_b32 v{n}, 15, v1'); a(f'v_lshrrev_b32 v{g}, 4, v1')
    a(f'v_lshrrev_b32 v{x}, 2, v{n}'); a(f'v_lshlrev_b32 v{x}, 4, v{x}')
    a(f'v_lshrrev_b32 v{y}, 1, v{g}'); a(f'v_lshl_add_u32 v{x}, v{y}, 3, v{x}')
    a(f'v_bfe_u32 v{y}, v{n}, 1, 1'); a(f'v_lshl_add_u32 v{x}, v{y}, 2, v{x}')
    a(f'v_and_b32 v{y}, 1, v{g}'); a(f'v_lshl_add_u32 v{x}, v{y}, 1, v{x}')
    a(f'v_and_b32 v{y}, 1, v{n}'); a(f'v_add_u32 v{x}, v{x}, v{y}')
    a(f'v_lshlrev_b32 v{x}, 4, v{x}')
    a('s_lshl_b32 s40, s3, 10'); a('s_add_u32 s41, s40, 4096')
    a(f'v_add_u32 v{vG}, s41, v{x}')
    a(f'v_lshlrev_b32 v{vAR}, 4, v1'); a(f'v_add_u32 v{vAW}, s40, v{vAR}')
    if nw==4:
        a('s_cmp_lt_u32 s3, 2'); a('s_cselect_b32 s42, 4096, 0')
        a(f'v_add_u32 v{vG3}, s42, v{vG}'); a('s_add_u32 s42, s42, 4096'); a(f'v_add_u32 v{vAW3}, s42, v{vAW}')
    else:
        a('s_movk_i32 s43, 2048'); a('s_cmp_eq_u32 s3, 0'); a('s_cselect_b32 s42, 5120, s43')
        a(f'v_add_u32 v{vG3}, s42, v{vG}'); a('s_add_u32 s42, s42, 4096'); a(f'v_add_u32 v{vAW3}, s42, v{vAW}')
    a(f'v_mov_b32 v{vIDX}, 0x4444'); a(f'v_mov_b32 v{x}, 0xeeee'); a(f'v_cmp_lt_u32 vcc, 7, v{n}'); a(f'v_cndmask_b32 v{vIDX}, v{vIDX}, v{x}, vcc')
    a(f'v_lshrrev_b32 v{x}, 3, v{n}'); a(f'v_and_b32 v{y}, 1, v{g}'); a(f'v_cmp_eq_u32 s[40:41], v{x}, v{y}')
    a(f'v_and_b32 v{x}, 1, v{n}'); a(f'v_lshlrev_b32 v{x}, 4, v{x}'); a(f'v_mov_b32 v{y}, 0x3f80'); a(f'v_lshlrev_b32 v{x}, v{x}, v{y}')
    a(f'v_cndmask_b32 v{x}, 0, v{x}, s[40:41]')
    a(f'v_bfe_u32 v{y}, v{n}, 1, 2')
    a(f'v_cmp_gt_u32 s[42:43], 2, v{g}')
    for d in range(4):
        a(f'v_cmp_eq_u32 vcc, {d}, v{y}'); a(f'v_cndmask_b32 v{T4}, 0, v{x}, vcc')
        a(f'v_cndmask_b32 v{vSEL+d}, 0, v{T4}, s[42:43]'); a(f'v_cndmask_b32 v{selh+d}, v{T4}, 0, s[42:43]')

def g_bases(stepadd):
    return [f's_add_u32 s44, s30, {stepadd&0xffffffff}','s_and_b32 s44, s44, 3',f's_mul_i32 s44, s44, {P_SLOT}',f's_add_u32 s44, s44, {P_OFF}',
            's_add_u32 s45, s44, s18','s_add_u32 s36, s4, s45','s_addc_u32 s37, s5, 0','s_add_u32 s45, s44, s19','s_add_u32 s38, s4, s45','s_addc_u32 s39, s5, 0']
vLP=None
def lp_const(a, reg):
    a(f'v_and_b32 v{T0}, 15, v1'); a(f'v_lshlrev_b32 v{T0}, 2, v{T0}')
    a('s_lshl_b32 s40, s15, 7'); a(f's_add_u32 s40, s40, {GF_OFF}'); a(f'v_add_u32 v{reg}, s40, v{T0}')
    a(f'v_mov_b32 v{T0}, {LDS_GO}'); a(f'v_mov_b32 v{T2}, 0'); a(f'v_mov_b32 v{T3}, 0'); a(f'ds_write_b64 v{T0}, {V(T2,2)}')
    a(f'v_mov_b32 v{T4}, 0'); a(f'v_mov_b32 v{T5}, 0'); a(f'v_lshlrev_b32 v{T0}, 4, v1'); a(f'ds_write_b128 v{T0}, {V(T2,4)} offset:{LDS_ML2}')
    a('s_waitcnt lgkmcnt(0)'); a('s_barrier')
def flag_gate(a, vflag, goaddr):
    Lq=a.nl('Fq'); Lw=a.nl('Fw'); Lo=a.nl('Fo')
    a('s_add_u32 s40, s30, 1')
    a(f'v_mov_b32 v{T2}, {goaddr}')
    a('s_cmp_lg_u32 s3, 0'); a(f's_cbranch_scc1 {Lw}')
    a.lab(Lq)
    a(f'global_load_dword v{T1}, v{vflag}, s[4:5] sc1')
    a('s_waitcnt vmcnt(0)'); a(f'v_cmp_gt_u32 vcc, s40, v{T1}'); a.retry('s_cbranch_vccnz',Lq)
    a(f'v_mov_b32 v{T1}, s40'); a(f'ds_write_b32 v{T2}, v{T1}')
    a(f's_branch {Lo}')
    a.lab(Lw)
    a(f'ds_read_b32 v{T1}, v{T2}'); a('s_waitcnt lgkmcnt(0)'); a(f'v_cmp_gt_u32 vcc, s40, v{T1}'); a.retry('s_cbranch_vccnz',Lw)
    a.lab(Lo)

def G_phase(a, selh, delay=0, nw=4, mid=None, L=36, R=80, D=56, lp=None):
    nl=3 if nw==4 else 4
    offs=[-4096,0] if nw==4 else [-4096,-1024,2048]
    lds=[0,4096] if nw==4 else [0,3072,6144]
    Lskip=a.nl('Gs')
    def loads(dst,base):
        for i,o in enumerate(offs): a(f'global_load_dwordx4 {V(dst+4*i,4)}, v{vG}, s[{base}:{base+1}] offset:{o} sc1')
        a(f'global_load_dwordx4 {V(dst+4*(nl-1),4)}, v{vG3}, s[{base}:{base+1}] sc1')
    def check(src):
        regs=[src+2*i for i in range(2*nl)]
        a(f'v_max3_u32 v{T0}, v{regs[0]}, v{regs[1]}, v{regs[2]}'); k=3
        while k+1<len(regs): a(f'v_max3_u32 v{T0}, v{T0}, v{regs[k]}, v{regs[k+1]}'); k+=2
        if k<len(regs): a(f'v_max_u32 v{T0}, v{T0}, v{regs[k]}')
        a(f'v_cmp_eq_u32 vcc, -1, v{T0}')
    if nw==3: a('s_cmp_eq_u32 s3, 3'); a(f's_cbranch_scc1 {Lskip}')
    flag_gate(a,lp,LDS_GO)
    stamp(a,12)
    loads(L,36)
    if mid: emit(a,mid)
    for _ in range(delay): a('s_sleep 1')
    loads(R,38)
    nm=len([m for m in (mid or []) if m.startswith('global_')])
    a(f's_waitcnt vmcnt({nl+nm})')
    Ll=a.nl('Gl'); Llo=a.nl('Glo')
    a.lab(Ll)
    check(L); a(f's_cbranch_vccz {Llo}')
    loads(L,36); a('s_waitcnt vmcnt(0)'); a('s_add_u32 s100, s100, 1'); a('s_cmp_lt_u32 s100, 0x1000000'); a(f's_cbranch_scc1 {Ll}'); a('s_endpgm')
    a.lab(Llo)
    for i in range(nl):
        for nu in range(2): a(f'v_mfma_f32_16x16x32_bf16 {V(D+8*i+4*nu,4)}, {V(L+4*i,4)}, {V(vSEL if nu==0 else selh,4)}, 0')
    a('s_waitcnt vmcnt(0)')
    Lr=a.nl('Gr'); Lro=a.nl('Gro')
    a.lab(Lr)
    if STAMPS==True: a('s_add_u32 s96, s96, 1')
    check(R); a(f's_cbranch_vccz {Lro}')
    loads(R,38); a('s_waitcnt vmcnt(0)'); a('s_add_u32 s100, s100, 1'); a('s_cmp_lt_u32 s100, 0x1000000'); a(f's_cbranch_scc1 {Lr}'); a('s_endpgm')
    a.lab(Lro)
    stamp(a,0)
    for i in range(nl):
        for nu in range(2): a(f'v_mfma_f32_16x16x32_bf16 {V(D+8*i+4*nu,4)}, {V(R+4*i,4)}, {V(vSEL if nu==0 else selh,4)}, {V(D+8*i+4*nu,4)}')
    for i in range(nl):
        for q in range(4): a(f'v_cvt_pk_bf16_f32 v{L+4*i+q}, v{D+8*i+2*q}, v{D+8*i+2*q+1}')
        if i<nl-1: a(f'ds_write_b128 v{vAW}, {V(L+4*i,4)} offset:{lds[i]}')
        else: a(f'ds_write_b128 v{vAW3}, {V(L+4*i,4)}')
    a('s_waitcnt lgkmcnt(0)')
    a.lab(Lskip)
    a('s_barrier')
    stamp(a,1)
    for t in range(10):
        a(f'ds_read_b128 {V(AF+4*t,4)}, v{vAR} offset:{t*1024}')
GREM=80; GDD=56

def half_sum_pack(t0, t1, out):
    L=[]
    for i in range(4): L.append(f'v_permlane32_swap_b32 v{t0+i}, v{t1+i}')
    L.append(f'v_pk_add_f32 {V(t0,2)}, {V(t0,2)}, {V(t1,2)}')
    L.append(f'v_pk_add_f32 {V(t0+2,2)}, {V(t0+2,2)}, {V(t1+2,2)}')
    if out is not None:
        L.append(f'v_cvt_pk_bf16_f32 v{out}, v{t0}, v{t0+1}')
        L.append(f'v_cvt_pk_bf16_f32 v{out+1}, v{t0+2}, v{t0+3}')
    return L

def slot_base(dst, off, slotsz, stepreg, add=0, tmp='s44'):
    L=[]
    if add: L+= [f's_add_u32 {tmp}, {stepreg}, {add&0xffffffff}', f's_and_b32 {tmp}, {tmp}, 3']
    else: L.append(f's_and_b32 {tmp}, {stepreg}, 3')
    L+=[f's_mul_i32 {tmp}, {tmp}, {slotsz}', f's_add_u32 {tmp}, {tmp}, {off}', f's_add_u32 s{dst}, s4, {tmp}', f's_addc_u32 s{dst+1}, s5, 0']
    return L
def poll_flag(a, offreg_s):
    Lw=a.nl('pf')
    a(f'v_mov_b32 v{T0}, {offreg_s}')
    a.lab(Lw)
    a(f'global_load_dword v{T1}, v{T0}, s[4:5] sc1'); a('s_waitcnt vmcnt(0)')
    a(f'v_cmp_eq_u32 vcc, 0, v{T1}')
    a.retry('s_cbranch_vccnz',Lw)
def emit(a,L):
    for x in L: a(x)

STAMPS=False
SYNC=None
EVSTEP=30
def stamp(a,i):
    if not STAMPS: return
    if STAMPS=='ev':
        L=a.nl('ev')
        a(f's_cmp_lg_u32 s30, {EVSTEP}'); a(f's_cbranch_scc1 {L} ; @fwd')
        a('s_memrealtime s[82:83]'); a('s_waitcnt lgkmcnt(0)'); a(f's_mov_b32 s{84+i}, s82')
        a(f'{L}: ; @end')
        return
    a('s_memtime s[82:83]'); a('s_waitcnt lgkmcnt(0)'); a('s_sub_u32 s99, s82, s98'); a(f's_add_u32 s{84+i}, s{84+i}, s99'); a('s_mov_b32 s98, s82')
def stamp_init(a):
    if not STAMPS: return
    for i in range(14): a(f's_mov_b32 s{84+i}, 0')
    a('s_memtime s[82:83]'); a('s_waitcnt lgkmcnt(0)'); a('s_mov_b32 s98, s82')
def stamp_dump(a, cond_regs, base):
    if not STAMPS: return
    L=a.nl('sd')
    if STAMPS=='ev':
        a('s_lshl_b32 s40, s15, 4'); a('s_add_u32 s40, s40, s14'); a('s_lshl_b32 s40, s40, 2'); a('s_add_u32 s40, s40, s3'); a('s_lshl_b32 s40, s40, 6')
        a(f's_add_u32 s40, s40, {base if base==FL_END else FL_END+8192}')
    else:
        a('s_or_b32 s40, s15, s14'); a('s_cmp_lg_u32 s40, 0'); a(f's_cbranch_scc1 {L}')
        a('s_lshl_b32 s40, s3, 6'); a(f's_add_u32 s40, s40, {base}')
    a('v_mov_b32 v30, s40')
    for i in range(14):
        a(f'v_mov_b32 v31, s{84+i}'); a(f'global_store_dword v30, v31, s[4:5] offset:{4*i}')
    if STAMPS=='ev': a('v_mov_b32 v31, s81'); a('global_store_dword v30, v31, s[4:5] offset:56')
    a.lab(L)

CSC=0x3e0293ee
def softmax_part1(a, D, S, vBI, vMW, EX):
    m,l=EX,EX+2; u=T4
    a(f'v_pk_add_f32 {V(D,2)}, {V(D,2)}, {V(vBI,2)}'); a(f'v_pk_add_f32 {V(D+2,2)}, {V(D+2,2)}, {V(vBI,2)}')
    a(f'v_max3_f32 v{m}, v{D}, v{D+1}, v{D+2}'); a(f'v_max_f32 v{m}, v{m}, v{D+3}')
    a(f'v_mov_b32 v{u}, v{m}'); a(f'v_permlane16_swap_b32 v{m}, v{u}'); a(f'v_max_f32 v{m}, v{m}, v{u}')
    a(f'v_mov_b32 v{u}, v{m}'); a(f'v_permlane32_swap_b32 v{m}, v{u}'); a(f'v_max_f32 v{m}, v{m}, v{u}')
    a(f'v_pk_mul_f32 {V(T2,2)}, {V(m,2)}, s[66:67] op_sel_hi:[0,1]')
    a(f'v_pk_fma_f32 {V(S,2)}, {V(D,2)}, s[66:67], {V(T2,2)} neg_lo:[0,0,1] neg_hi:[0,0,1]')
    a(f'v_pk_fma_f32 {V(S+2,2)}, {V(D+2,2)}, s[66:67], {V(T2,2)} neg_lo:[0,0,1] neg_hi:[0,0,1]')
    for i in range(4): a(f'v_exp_f32 v{S+i}, v{S+i}')
    a(f'v_pk_add_f32 {V(T2,2)}, {V(S,2)}, {V(S+2,2)}'); a(f'v_add_f32 v{l}, v{T2}, v{T3}')
    a(f'v_mov_b32 v{u}, v{l}'); a(f'v_permlane16_swap_b32 v{l}, v{u}'); a(f'v_add_f32 v{l}, v{l}, v{u}')
    a(f'v_mov_b32 v{u}, v{l}'); a(f'v_permlane32_swap_b32 v{l}, v{u}'); a(f'v_add_f32 v{l}, v{l}, v{u}')
    a(f'ds_write_b128 v{vMW}, {V(EX,4)}')

def gen_QK(a, safe=False, nsteps=NSTEP, prof=None):
    ST=' sc1' if safe else ''
    vFW=10; vFR=11; vKX=12; vPS=13; vKM=23; vMW=24; vMR=25
    vSL=26; vSH=27; vNI=28; vPF=14; vZC=15; SEN2=132; ZC=136
    KX=112; vR=180; SELH=186; DUM=128
    SEN=112
    FF=56
    SD=36; SE=40; ML=44; EX=160
    GLx=36
    n,g,x,y=T0,T1,T2,T3
    a.c('================ QK role ================')
    masks(a)
    a('s_load_dwordx2 s[8:9], s[0:1], %d'%KA['Wq']); a('s_load_dwordx2 s[10:11], s[0:1], %d'%KA['Wk'])
    a('s_waitcnt lgkmcnt(0)')
    a(f'v_lshrrev_b32 v{T4}, 4, v1'); a(f'v_lshlrev_b32 v{T4}, 13, v{T4}'); a(f'v_and_b32 v{T5}, 15, v1'); a(f'v_lshl_add_u32 v{T4}, v{T5}, 4, v{T4}')
    a('s_cmp_lt_u32 s3, 2'); a('s_cselect_b32 s12, s8, s10'); a('s_cselect_b32 s13, s9, s11')
    a('s_and_b32 s40, s3, 1'); a('s_lshl_b32 s40, s40, 18')
    a('s_lshl_b32 s41, s16, 8'); a('s_add_u32 s40, s40, s41')
    a('s_add_u32 s12, s12, s40'); a('s_addc_u32 s13, s13, 0')
    a('s_mov_b32 s43, 32768')
    def srcs(r):
        a(f's_add_u32 s40, s12, {r*64*8192}'); a('s_addc_u32 s41, s13, 0')
    tr_addr16(a,vFW)
    def trs(r,bufoff):
        tr_B16(a,vFW,bufoff,[(0,0,(0*10+r)*8),(0,1,(1*10+r)*8),(1,0,(2*10+r)*8),(1,1,(3*10+r)*8)])
    load_weights(a,srcs,trs)
    if SYNC: SYNC(a)
    common_consts(a,SELH,3); lp_const(a,29)
    a('s_mul_i32 s18, s15, 10240'); a('s_sub_u32 s19, 1, s15'); a('s_mul_i32 s19, s19, 10240'); a('s_add_u32 s19, s19, 20480')
    a(f'v_and_b32 v{n}, 15, v1'); a(f'v_lshrrev_b32 v{g}, 4, v1')
    a(f'v_lshrrev_b32 v{x}, 5, v1'); a(f'v_lshlrev_b32 v{x}, 4, v{x}'); a(f'v_add_u32 v{x}, v{x}, v{n}')
    a('s_lshl_b32 s40, s3, 5'); a(f'v_add_u32 v{x}, s40, v{x}'); a(f'v_lshlrev_b32 v{x}, 5, v{x}')
    a(f'v_and_b32 v{y}, 1, v{g}'); a(f'v_lshl_add_u32 v{x}, v{y}, 3, v{x}'); a(f'v_add_u32 v{vFW}, {LDS_F}, v{x}')
    a(f'v_bfe_u32 v{x}, v1, 2, 2'); a(f'v_lshl_add_u32 v{x}, v{g}, 3, v{x}'); a(f'v_lshlrev_b32 v{x}, 5, v{x}')
    a(f'v_and_b32 v{y}, 3, v1'); a(f'v_lshl_add_u32 v{x}, v{y}, 3, v{x}'); a(f'v_add_u32 v{vFR}, {LDS_F}, v{x}')
    a('s_sub_u32 s40, s3, 1'); a('s_and_b32 s40, s40, 1'); a('s_lshl_b32 s40, s40, 8'); a('s_add_u32 s40, s40, 4096')
    a(f'v_lshlrev_b32 v{x}, 9, v{g}'); a(f'v_lshl_add_u32 v{x}, v{n}, 4, v{x}'); a(f'v_add_u32 v{vKX}, s40, v{x}')
    a(f'v_lshlrev_b32 v{x}, 3, v{g}'); a(f'v_add_u32 v{x}, v{x}, v{n}'); a(f'v_lshlrev_b32 v{x}, 4, v{x}')
    a('s_sub_u32 s40, s3, 1'); a('s_and_b32 s40, s40, 1'); a('s_lshl_b32 s40, s40, 3')
    a('s_lshl_b32 s41, s14, 9'); a('s_add_u32 s40, s40, s41'); a('s_lshl_b32 s41, s15, 13'); a('s_add_u32 s40, s40, s41')
    a(f'v_add_u32 v{vPS}, s40, v{x}')
    a(f'v_and_b32 v{x}, 1, v{g}'); a(f'v_lshlrev_b32 v{x}, 3, v{x}'); a(f'v_lshl_add_u32 v{x}, v{n}, 4, v{x}')
    a('s_lshl_b32 s41, s14, 7'); a('s_lshl_b32 s42, s15, 11'); a('s_add_u32 s41, s41, s42'); a(f's_add_u32 s41, s41, {PM_REL}')
    a(f'v_add_u32 v{x}, s41, v{x}')
    a('s_cmp_eq_u32 s3, 0'); a('s_cselect_b64 vcc, -1, 0'); a(f'v_cndmask_b32 v{vPS}, v{vPS}, v{x}, vcc')
    a('s_lshl_b32 s40, s14, 7'); a('s_lshl_b32 s42, s15, 11'); a('s_add_u32 s40, s40, s42'); a(f's_add_u32 s40, s40, {PM_REL}'); a(f'v_and_b32 v{y}, 7, v1'); a(f'v_lshlrev_b32 v{y}, 4, v{y}'); a(f'v_add_u32 v{vR}, s40, v{y}')
    a('s_lshl_b32 s40, s14, 9'); a('s_lshl_b32 s42, s15, 13'); a('s_add_u32 s40, s40, s42'); a(f'v_and_b32 v{y}, 31, v1'); a(f'v_lshlrev_b32 v{y}, 4, v{y}'); a(f'v_add_u32 v{vR+1}, s40, v{y}')
    a(f'v_lshlrev_b32 v{x}, 7, v{g}'); a(f'v_lshl_add_u32 v{x}, v{n}, 4, v{x}'); a(f'v_subrev_u32 v{vKM}, 128, v{x}')
    a(f'v_lshlrev_b32 v{x}, 4, v{n}'); a(f'v_add_u32 v{vMR}, {LDS_ML2}, v{x}'); a('s_lshl_b32 s40, s3, 8'); a(f'v_add_u32 v{vMW}, s40, v{vMR}')
    a(f'v_lshlrev_b32 v{vPF}, 6, v1')
    a('s_lshl_b32 s40, s15, 8'); a('s_lshl_b32 s41, s14, 2'); a('s_add_u32 s40, s40, s41'); a(f's_add_u32 s40, s40, {PF_OFF}'); a('v_mov_b32 v21, s40')
    a(f'v_mul_u32_u24 v{x}, 12288, v{g}'); a(f'v_lshl_add_u32 v{x}, v{n}, 4, v{x}')
    a('s_mul_i32 s40, s15, 196608'); a('s_mul_i32 s41, s14, 768'); a('s_add_u32 s40, s40, s41')
    a(f'v_add_u32 v{vZC}, s40, v{x}')
    for i in range(4): a(f'v_mov_b32 v{SEN2+i}, -1')
    a('s_cmp_eq_u32 s3, 0'); a('s_cselect_b32 s40, -1, 0'); a('s_mov_b32 s41, 0')
    a(f'v_mov_b32 v{x}, 0xff800000'); a(f'v_cndmask_b32 v26, 0, v{x}, s[40:41]'); a('v_mov_b32 v27, v26')
    for i in range(4): a(f'v_mov_b32 v{SEN+i}, -1')
    a('s_cmp_eq_u32 s3, 0'); a('s_cselect_b32 s78, s62, s60'); a('s_cselect_b32 s79, s63, s61')
    def km_flag(add):
        a(f's_add_u32 s46, s30, {add&0xffffffff}'); a('s_lshl_b32 s46, s46, 5'); a('s_add_u32 s46, s46, s16'); a('s_lshl_b32 s46, s46, 2'); a(f's_add_u32 s46, s46, {KMF_OFF}')
        a(f'v_mov_b32 v{T0}, s46'); a(f'v_mov_b32 v{T1}, 1')
        a(f'global_store_dword v{T0}, v{T1}, s[4:5] sc1')
    def km_store():
        for t in range(4):
            a(f'ds_read_b64_tr_b16 {V(FF+4*t,2)}, v{vFR} offset:{t*1024}'); a(f'ds_read_b64_tr_b16 {V(FF+4*t+2,2)}, v{vFR} offset:{t*1024+128}')
        a('s_lshl_b32 s46, s30, 5'); a('s_add_u32 s46, s46, s16'); a('s_lshl_b32 s46, s46, 11'); a(f's_add_u32 s46, s46, {WS_KM}')
        a('s_add_u32 s56, s4, s46'); a('s_addc_u32 s57, s5, 0')
        a('s_waitcnt lgkmcnt(0)')
        a('s_mov_b64 exec, s[72:73]')
        for t in range(4): a(f'global_store_dwordx4 v{vKM}, {V(FF+4*t,4)}, s[56:57] offset:{t*512} sc1')
        a('s_mov_b64 exec, -1')
    def flags_wait(kadd, uadd):
        a(f's_add_u32 s45, s30, {kadd}'); a('s_min_u32 s45, s45, 63')
        a('s_lshl_b32 s46, s45, 8'); a('s_lshr_b32 s47, s16, 1'); a('s_add_u32 s47, s47, 16'); a('s_lshl_b32 s47, s47, 2'); a('s_add_u32 s46, s46, s47'); a(f's_add_u32 s46, s46, {QKF_OFF}')
        a(f'v_mov_b32 v{T2}, s46')
        a(f's_add_u32 s45, s30, {uadd}'); a('s_min_u32 s45, s45, 63')
        a('s_lshl_b32 s46, s45, 7'); a('s_lshl_b32 s47, s15, 6'); a('s_add_u32 s46, s46, s47'); a(f's_add_u32 s46, s46, {UF_OFF}')
        a(f'v_and_b32 v{T0}, 15, v1'); a(f'v_lshlrev_b32 v{T0}, 2, v{T0}'); a(f'v_add_u32 v{T0}, s46, v{T0}')
        Lw=a.nl('vf'); a.lab(Lw)
        a(f'global_load_dword v{T1}, v{T0}, s[4:5] sc1'); a(f'global_load_dword v{T3}, v{T2}, s[4:5] sc1'); a('s_waitcnt vmcnt(0)')
        a(f'v_min_u32 v{T1}, v{T1}, v{T3}'); a(f'v_cmp_eq_u32 vcc, 0, v{T1}'); a.retry('s_cbranch_vccnz',Lw)
    def prefetch_U(part=None, tgt=None, pace=0):
        if tgt is not None: a(f's_add_u32 s45, s30, {tgt}'); a('s_min_u32 s45, s45, 63')
        a('s_mov_b64 exec, s[64:65]')
        a('s_lshl_b32 s46, s45, 5'); a('s_add_u32 s46, s46, s16'); a('s_lshl_b32 s46, s46, 13'); a(f's_add_u32 s46, s46, {WS_K}'); a('s_add_u32 s48, s4, s46'); a('s_addc_u32 s49, s5, 0')
        for i in range(4):
            a(f'global_load_dword v{DUM}, v{vPF}, s[48:49] offset:{i*2048 if i<2 else i*2048-4096} sc1')
            if i==1: a('s_add_u32 s48, s48, 4096'); a('s_addc_u32 s49, s49, 0')
        a('s_mov_b64 exec, -1')
    def z_copy():
        emit(a,slot_base(54,Z_OFF,Z_SLOT,'s30'))
        a(f's_mul_i32 s44, s30, {ZG_STEP}'); a('s_add_u32 s56, s4, s44'); a('s_addc_u32 s57, s5, 0'); a(f's_add_u32 s56, s56, {WS_ZG}'); a('s_addc_u32 s57, s57, 0')
        blks=[(j,k) for j in range(4) for k in range(3) if not (j>=2 and k==2)]
        Lz=a.nl('zc'); a.lab(Lz)
        for i,(j,k) in enumerate(blks):
            a(f's_add_u32 s22, s54, {j*49152}'); a('s_addc_u32 s23, s55, 0')
            a(f'global_load_dwordx4 {V(ZC+4*i,4)}, v{vZC}, s[22:23] offset:{k*256} sc1')
        a('s_waitcnt vmcnt(0)')
        regs=[ZC+2*i for i in range(20)]
        a(f'v_max3_u32 v{T0}, v{regs[0]}, v{regs[1]}, v{regs[2]}')
        for k in range(3,19,2): a(f'v_max3_u32 v{T0}, v{T0}, v{regs[k]}, v{regs[k+1]}')
        a(f'v_max_u32 v{T0}, v{T0}, v{regs[19]}')
        a(f'v_cmp_eq_u32 vcc, -1, v{T0}'); a.retry('s_cbranch_vccnz',Lz)
        for i,(j,k) in enumerate(blks):
            a(f's_add_u32 s22, s56, {j*49152}'); a('s_addc_u32 s23, s57, 0')
            a(f'global_store_dwordx4 v{vZC}, {V(ZC+4*i,4)}, s[22:23] offset:{k*256} sc1')
    def z_reset():
        emit(a,slot_base(54,Z_OFF,Z_SLOT,'s30',-1))
        for (j,k) in [(j,k) for j in range(4) for k in range(3) if not (j>=2 and k==2)]:
            a(f's_add_u32 s22, s54, {j*49152}'); a('s_addc_u32 s23, s55, 0')
            a(f'global_store_dwordx4 v{vZC}, {V(SEN2,4)}, s[22:23] offset:{k*256}{ST}')
    def z_flag(add):
        a(f's_add_u32 s46, s30, {add&0xffffffff}'); a('s_lshl_b32 s46, s46, 5'); a('s_add_u32 s46, s46, s16'); a('s_lshl_b32 s46, s46, 2'); a(f's_add_u32 s46, s46, {ZF_OFF}')
        a(f'v_mov_b32 v{T0}, s46'); a(f'v_mov_b32 v{T1}, 1')
        a(f'global_store_dword v{T0}, v{T1}, s[4:5] sc1')
    a('s_mov_b32 s30, 0')
    flags_wait(0,0); flags_wait(1,1); flags_wait(2,2)
    Lp0=a.nl('p0'); a('s_cmp_lg_u32 s3, 3'); a(f's_cbranch_scc1 {Lp0}'); a('s_mov_b32 s45, 0'); prefetch_U(); a('s_mov_b32 s45, 1'); prefetch_U(); a.lab(Lp0)
    if prof: a('s_memtime s[80:81]'); a('s_memrealtime s[24:25]'); a('s_waitcnt lgkmcnt(0)')
    stamp_init(a)
    Lstep=a.nl('QKstep'); Llast=a.nl('QKlast')
    a.lab(Lstep)
    Lnkx=a.nl('nkx')
    a('s_sub_u32 s46, s3, 1'); a('s_cmp_gt_u32 s46, 1'); a(f's_cbranch_scc1 {Lnkx}')
    a('s_lshl_b32 s46, s30, 5'); a('s_add_u32 s46, s46, s16'); a('s_lshl_b32 s46, s46, 13'); a(f's_add_u32 s46, s46, {WS_K}'); a('s_add_u32 s48, s4, s46'); a('s_addc_u32 s49, s5, 0')
    for t in range(4): a(f'global_load_dwordx4 {V(KX+4*t,4)}, v{vKX}, s[48:49] offset:{t*2048-4096} sc1')
    a.lab(Lnkx)
    emit(a,g_bases(-1)+slot_base(52,PP_OFF,PP_SLOT,'s30')+[f'v_mov_b32 v{ACC+i}, 0' for i in range(16)]+['s_add_u32 s40, s30, 1','v_mov_b32 v22, s40',f'v_mov_b32 v{EX+1}, s40',f'v_mov_b32 v{EX+3}, s40'])
    stamp(a,11)
    G_phase(a,SELH,DELAY_QK,nw=3,L=36,R=144,D=56,lp=29)
    def mf(tl,t): return f'v_smfmac_f32_16x16x64_bf16 {V(ACC+4*tl,4)}, {V(AF+4*t,4)}, {wr((tl*10+t)*8,8)}, v{vIDX}'
    for t in range(5):
        a(f's_waitcnt lgkmcnt({9-t})')
        for tl in range(4): a(mf(tl,t))
    a('s_waitcnt lgkmcnt(0)')
    for t in range(5,10):
        for tl in (0,1): a(mf(tl,t))
    ep=half_sum_pack(ACC,ACC+4,GLx)+[f'ds_write_b64 v{vFW}, {V(GLx,2)}']
    seq=[mf(tl,t) for t in range(5,10) for tl in (2,3)]
    for i,m in enumerate(seq):
        a(m)
        if i>=2 and ep: a(ep.pop(0))
        if i>=5 and ep: a(ep.pop(0))
    emit(a,ep)
    emit(a,half_sum_pack(ACC+8,ACC+12,GLx+2)); a(f'ds_write_b64 v{vFW}, {V(GLx+2,2)} offset:16')
    a('s_waitcnt lgkmcnt(0)'); stamp(a,2); a('s_barrier'); stamp(a,3)
    a(f's_cmp_eq_u32 s30, {nsteps-1}'); a(f's_cbranch_scc1 {Llast}')
    Lw3=a.nl('w3'); Lb3=a.nl('b3'); Lx=a.nl('xs'); Lsm=a.nl('sm')
    a('s_cmp_eq_u32 s3, 3'); a(f's_cbranch_scc1 {Lw3}')
    for t in range(4):
        a(f'ds_read_b64_tr_b16 {V(FF+4*t,2)}, v{vFR} offset:{t*1024}'); a(f'ds_read_b64_tr_b16 {V(FF+4*t+2,2)}, v{vFR} offset:{t*1024+128}')
    a('s_cmp_lg_u32 s3, 0'); a(f's_cbranch_scc1 {Lx}')
    for t in range(4):
        a(f's_waitcnt lgkmcnt({6-2*t})')
        a(f'v_mfma_f32_16x16x32_bf16 {V(SD,4)}, {V(FF+4*t,4)}, {V(FF+4*t,4)}, {"0" if t==0 else V(SD,4)}')
    a(f's_branch {Lsm}')
    a.lab(Lx)
    for t in range(4):
        a(f's_waitcnt lgkmcnt({6-2*t})')
        a(f'v_mfma_f32_16x16x32_bf16 {V(SD,4)}, {V(KX+4*t,4)}, {V(FF+4*t,4)}, {"0" if t==0 else V(SD,4)}')
    a.lab(Lsm)
    softmax_part1(a,SD,SE,26,vMW,EX)
    stamp(a,4)
    Lsh=a.nl('sh'); Lxw=a.nl('xw')
    a.lab(Lxw)
    for k in range(3): a(f'ds_read_b128 {V(ML+4*k,4)}, v{vMR} offset:{k*256}')
    a('s_waitcnt lgkmcnt(0)')
    a(f'v_min3_u32 v{T0}, v{ML+1}, v{ML+3}, v{ML+5}'); a(f'v_min3_u32 v{T0}, v{T0}, v{ML+7}, v{ML+9}'); a(f'v_min_u32 v{T0}, v{T0}, v{ML+11}')
    a(f'v_cmp_gt_u32 vcc, v22, v{T0}'); a.retry('s_cbranch_vccnz',Lxw)
    stamp(a,5)
    Lne=a.nl('ne'); a('s_cmp_lg_u32 s3, 2'); a(f's_cbranch_scc1 {Lne} ; @fwd'); a(f'global_store_dword v21, v22, s[4:5]{ST}'); a(f'{Lne}: ; @end')
    nM,l=T1,T4
    a(f'v_max3_f32 v{T0}, v{ML}, v{ML+4}, v{ML+8}')
    a(f'v_mul_f32 v{nM}, s66, v{T0}')
    for k in range(3): a(f'v_fma_f32 v{ML+4*k}, v{ML+4*k}, s66, -v{nM}')
    a(f'v_fma_f32 v{T2}, v{EX}, s66, -v{nM}')
    for k in range(3): a(f'v_exp_f32 v{ML+4*k}, v{ML+4*k}')
    a(f'v_exp_f32 v{T2}, v{T2}')
    a(f'v_mul_f32 v{l}, v{ML}, v{ML+2}'); a(f'v_fmac_f32 v{l}, v{ML+4}, v{ML+6}'); a(f'v_fmac_f32 v{l}, v{ML+8}, v{ML+10}')
    a(f'v_rcp_f32 v{l}, v{l}')
    a(f'v_mul_f32 v{T2}, v{T2}, v{l}')
    a(f'v_pk_mul_f32 {V(SE,2)}, {V(SE,2)}, {V(T2,2)} op_sel_hi:[1,0]'); a(f'v_pk_mul_f32 {V(SE+2,2)}, {V(SE+2,2)}, {V(T2,2)} op_sel_hi:[1,0]')
    a(f'v_cvt_pk_bf16_f32 v{T0}, v{SE}, v{SE+1}'); a(f'v_cvt_pk_bf16_f32 v{T1}, v{SE+2}, v{SE+3}')
    a(f'v_min_u32 v{T0}, s70, v{T0}')
    a('s_mov_b64 exec, s[78:79]')
    a(f'global_store_dwordx2 v{vPS}, {V(T0,2)}, s[52:53]{ST}')
    a('s_mov_b64 exec, -1')
    a(f's_branch {Lsh}')
    a.lab(Lw3)
    for _ in range(W3_DELAY): a('s_sleep 1')
    km_store()
    emit(a,slot_base(58,PP_OFF,PP_SLOT,'s30',-1))
    a(f'global_store_dwordx4 v{vR}, {V(SEN,4)}, s[58:59]{ST}')
    a(f'global_store_dwordx4 v{vR+1}, {V(SEN,4)}, s[58:59]{ST}')
    if 'noZC' not in EXP: z_copy()
    z_reset()
    flags_wait(3,3)
    km_flag(0); z_flag(0)
    if 'noPF' not in EXP: prefetch_U(None,2,PF_PACE)
    a.lab(Lsh)
    stamp(a,6)
    stamp(a,10)
    a('s_add_u32 s30, s30, 1')
    a(f's_branch {Lstep}')
    a.lab(Llast)
    Ld=a.nl('d'); Ld2=a.nl('d2'); a('s_cmp_lg_u32 s3, 3'); a(f's_cbranch_scc1 {Ld}')
    km_store(); a('s_waitcnt vmcnt(0)'); km_flag(0)
    z_copy(); a('s_waitcnt vmcnt(0)'); z_flag(0)
    a.lab(Ld)
    if prof: prof(a)
    stamp_dump(a,None,FL_END)
    a('s_waitcnt vmcnt(0)')
    a('s_endpgm')

def vo_weight_load(a, vtmp, perm_e=False):
    a('s_load_dwordx2 s[8:9], s[0:1], %d'%KA['Wv']); a('s_load_dwordx2 s[10:11], s[0:1], %d'%KA['Wo'])
    a('s_waitcnt lgkmcnt(0)')
    a('s_lshl_b32 s40, s3, 18'); a('s_lshl_b32 s41, s16, 8'); a('s_add_u32 s40, s40, s41')
    a('s_add_u32 s8, s8, s40'); a('s_addc_u32 s9, s9, 0')
    a('s_mul_i32 s40, s16, 163840'); a('s_mul_i32 s41, s3, 40960'); a('s_add_u32 s40, s40, s41')
    a('s_add_u32 s10, s10, s40'); a('s_addc_u32 s11, s11, 0')
    def srcs(r):
        if r<5:
            a(f's_add_u32 s40, s8, {r*128*8192}'); a('s_addc_u32 s41, s9, 0'); a('s_mov_b32 s43, 32768')
            a(f'v_lshrrev_b32 v{T4}, 4, v1'); a(f'v_lshlrev_b32 v{T4}, 13, v{T4}')
        else:
            a(f's_add_u32 s40, s10, {(r-5)*256}'); a('s_addc_u32 s41, s11, 0'); a('s_mov_b32 s43, 5120')
            a(f'v_lshrrev_b32 v{T4}, 4, v1'); a(f'v_mul_u32_u24 v{T4}, 1280, v{T4}')
        a(f'v_and_b32 v{T5}, 15, v1'); a(f'v_lshl_add_u32 v{T4}, v{T5}, 4, v{T4}')
    tr_addr16(a,vtmp)
    def trs(r,bufoff):
        if r<5: bl=[(m,tp,(tp*10+2*r+m)*8) for m in range(2) for tp in range(2)]
        else:
            cb=r-5; bl=[(m,tp,160+((2*cb+tp)*2+m)*8) for m in range(2) for tp in range(2)]
        tr_B16(a,vtmp,bufoff,bl)
    load_weights(a,srcs,trs)

LDS_P=22784
LDS_PZ=LDS_P+10240
LDS_SY=LDS_GO+16
LDS_U0=40960; LDS_U1=40960+49152
U_PACE=1
def gen_VO(a, safe=False, nsteps=NSTEP, prof=None):
    ST=' sc1' if safe else ''
    vTW=10; vTR=11; vPFL=12; vZS=13; vZS2=14; SELH=186
    vL16=15; vPMR=16; vZ=17; vUR=18; vP=19; vPRm=20; vR=21
    vUR1=23; vUF=24
    LDS_T=LDS_F
    A2=36; ZA=108; ZP=46; ACCV=96
    UF=56; ZF=120; PX=136; PM=36; RA=168; SEN=180
    n,g,x,y=T0,T1,T2,T3
    a.c('================ VO role ================')
    masks(a)
    vo_weight_load(a,vTW)
    if SYNC: SYNC(a)
    common_consts(a,SELH,3); lp_const(a,29)
    a('s_mul_i32 s18, s15, 10240'); a('s_sub_u32 s19, 1, s15'); a('s_mul_i32 s19, s19, 10240'); a('s_add_u32 s19, s19, 20480')
    a(f'v_and_b32 v{n}, 15, v1'); a(f'v_lshrrev_b32 v{g}, 4, v1')
    a('s_lshr_b32 s40, s3, 1'); a('s_lshl_b32 s40, s40, 5'); a('s_and_b32 s41, s3, 1'); a('s_lshl_b32 s41, s41, 4'); a('s_add_u32 s40, s40, s41')
    a(f'v_lshrrev_b32 v{x}, 5, v1'); a(f'v_lshlrev_b32 v{x}, 3, v{x}'); a(f'v_add_u32 v{x}, s40, v{x}')
    a(f'v_lshrrev_b32 v{y}, 2, v{n}'); a(f'v_lshl_add_u32 v{x}, v{y}, 1, v{x}'); a(f'v_and_b32 v{y}, 1, v{n}'); a(f'v_add_u32 v{x}, v{x}, v{y}')
    a(f'v_lshlrev_b32 v{x}, 5, v{x}'); a(f'v_bfe_u32 v{y}, v{n}, 1, 1'); a(f'v_lshl_add_u32 v{x}, v{y}, 4, v{x}')
    a(f'v_and_b32 v{y}, 1, v{g}'); a(f'v_lshl_add_u32 v{x}, v{y}, 3, v{x}'); a(f'v_add_u32 v{vTW}, {LDS_T}, v{x}')
    a(f'v_bfe_u32 v{x}, v1, 2, 2'); a(f'v_lshl_add_u32 v{x}, v{g}, 3, v{x}'); a(f'v_lshlrev_b32 v{x}, 5, v{x}')
    a(f'v_and_b32 v{y}, 3, v1'); a(f'v_lshl_add_u32 v{x}, v{y}, 3, v{x}'); a(f'v_add_u32 v{vTR}, {LDS_T}, v{x}')
    a(f'v_lshrrev_b32 v{x}, 5, v1'); a('s_lshl_b32 s40, s3, 1'); a(f'v_add_u32 v{x}, s40, v{x}'); a(f'v_mul_u32_u24 v{x}, 12288, v{x}')
    a('s_mul_i32 s40, s15, 196608'); a('s_mul_i32 s41, s14, 768'); a('s_add_u32 s40, s40, s41'); a(f'v_add_u32 v{x}, s40, v{x}')
    a(f'v_lshl_add_u32 v{x}, v{n}, 4, v{x}'); a(f'v_and_b32 v{y}, 1, v{g}'); a(f'v_lshl_add_u32 v{vZS}, v{y}, 3, v{x}'); a(f'v_add_u32 v{vZS2}, 98304, v{vZS}')
    a(f'v_and_b32 v{x}, 15, v1'); a(f'v_lshlrev_b32 v{x}, 2, v{x}'); a('s_lshl_b32 s40, s15, 8'); a(f's_add_u32 s40, s40, {PF_OFF}'); a(f'v_add_u32 v{vPFL}, s40, v{x}')
    a(f'v_lshlrev_b32 v{vL16}, 4, v1')
    a(f'v_lshlrev_b32 v{x}, 7, v{g}'); a(f'v_lshl_add_u32 v{x}, v{n}, 4, v{x}'); a(f'v_add_u32 v{x}, {LDS_P+8192}, v{x}')
    a(f'v_mov_b32 v{y}, {LDS_PZ}'); a(f'v_cmp_gt_u32 vcc, 8, v{n}'); a(f'v_cndmask_b32 v{vPMR}, v{y}, v{x}, vcc')
    a('s_mul_i32 s40, s15, 196608'); a('s_mul_i32 s41, s14, 12288'); a('s_add_u32 s40, s40, s41'); a('s_min_u32 s41, s3, 2'); a('s_lshl_b32 s41, s41, 8'); a('s_add_u32 s40, s40, s41'); a('s_add_u32 s40, s40, 4096')
    a(f'v_mul_u32_u24 v{x}, 768, v{g}'); a(f'v_lshl_add_u32 v{x}, v{n}, 4, v{x}'); a(f'v_add_u32 v{vZ}, s40, v{x}')
    a('s_min_u32 s41, s3, 2'); a('s_lshl_b32 s41, s41, 10'); a(f's_add_u32 s41, s41, {LDS_U0}'); a(f'v_add_u32 v{vUR}, s41, v{vL16}'); a(f'v_add_u32 v{vUR1}, 49152, v{vUR}')
    a('s_lshl_b32 s40, s3, 4'); a('s_add_u32 s40, s40, s14'); a('s_lshl_b32 s40, s40, 8'); a('s_add_u32 s40, s40, s18')
    a(f'v_lshlrev_b32 v{x}, 4, v{n}'); a(f'v_and_b32 v{y}, 1, v{g}'); a(f'v_lshl_add_u32 v{x}, v{y}, 3, v{x}'); a(f'v_add_u32 v{vP}, s40, v{x}'); a(f'v_add_u32 v{vPRm}, 20480, v{vP}')
    a('s_cmp_lt_u32 s14, 8'); a('s_cselect_b32 s40, 3, 2'); a('s_mov_b32 s77, s40')
    a(f'v_cmp_gt_u32 vcc, s40, v{g}'); a(f'v_cndmask_b32 v{y}, 0, v{g}, vcc')
    a(f'v_lshlrev_b32 v{y}, 4, v{y}'); a(f'v_add_u32 v{y}, s14, v{y}'); a(f'v_lshlrev_b32 v{y}, 4, v{y}'); a(f'v_add_u32 v{y}, v{y}, v{n}'); a(f'v_lshlrev_b32 v{y}, 4, v{y}')
    a(f'v_add_u32 v{vR}, s18, v{y}'); a(f'v_add_u32 v{vR+1}, 20480, v{vR}')
    a('s_lshl_b32 s40, s15, 7'); a('s_lshl_b32 s41, s14, 2'); a('s_add_u32 s40, s40, s41'); a(f's_add_u32 s40, s40, {GF_OFF}'); a('v_mov_b32 v27, s40')
    a(f'v_and_b32 v{x}, 15, v1'); a(f'v_lshlrev_b32 v{x}, 2, v{x}'); a('s_lshl_b32 s40, s15, 6'); a(f's_add_u32 s40, s40, {UF_OFF}'); a(f'v_add_u32 v{vUF}, s40, v{x}')
    for i in range(4): a(f'v_mov_b32 v{SEN+i}, -1')
    for i in range(4): a(f'v_mov_b32 v{T2+i if i<4 else 0}, 0')
    a(f'v_lshlrev_b32 v{T0}, 4, v1'); a(f'ds_write_b128 v{T0}, {V(T2,4)} offset:{LDS_PZ}'); a(f'ds_write_b128 v{T0}, {V(T2,4)} offset:{LDS_PZ+1024}')
    a(f'v_mov_b32 v{T0}, {LDS_SY}'); a(f'ds_write_b128 v{T0}, {V(T2,4)}')
    for i in range(4):
        if i<3: a(f's_add_u32 s40, s3, {3*i}')
        else: a('s_add_u32 s40, s3, 6'); a('s_cmp_eq_u32 s3, 0'); a('s_cselect_b32 s40, 9, s40')
        a('s_lshl_b32 s41, s40, 10'); a(f's_add_u32 s{10+i}, s41, {LDS_P}')
        a('s_lshl_b32 s42, s15, 13'); a('s_add_u32 s42, s42, s41')
        a('s_lshl_b32 s43, s15, 11'); a('s_add_u32 s43, s43, s41'); a(f's_add_u32 s43, s43, {PM_REL-8192}')
        a('s_cmp_lt_u32 s40, 8'); a(f's_cselect_b32 s{56+i}, s42, s43')
    a('s_waitcnt lgkmcnt(0)'); a('s_barrier')
    a('s_load_dwordx2 s[8:9], s[0:1], %d'%KA['mem0'])
    a(f's_add_u32 s34, s4, {P_OFF+3*P_SLOT}'); a('s_addc_u32 s35, s5, 0')
    a('s_waitcnt lgkmcnt(0)')
    Lskip=a.nl('Pinit'); Lz=a.nl('Pz')
    a('s_cmp_ge_u32 s3, s77'); a(f's_cbranch_scc1 {Lskip}')
    a('s_mov_b64 exec, s[64:65]')
    a(f'v_subrev_u32 v{T0}, s18, v{vP}'); a(f'v_lshrrev_b32 v{T1}, 4, v{T0}'); a(f'v_lshlrev_b32 v{T1}, 1, v{T1}')
    a(f'v_bfe_u32 v{T0}, v{T0}, 3, 1'); a(f'v_mul_u32_u24 v{T0}, 5120, v{T0}'); a(f'v_add_u32 v{T0}, v{T0}, v{T1}')
    a(f'v_mov_b32 v{T2}, 0'); a(f'v_mov_b32 v{T3}, 0')
    a('s_cmp_lg_u32 s15, 0'); a(f's_cbranch_scc1 {Lz}')
    a(f'global_load_ushort v{T2}, v{T0}, s[8:9]'); a(f'global_load_ushort v{T4}, v{T0}, s[8:9] offset:1280')
    a(f'global_load_ushort v{T3}, v{T0}, s[8:9] offset:2560'); a(f'global_load_ushort v{T5}, v{T0}, s[8:9] offset:3840')
    a('s_waitcnt vmcnt(0)')
    a(f'v_lshl_or_b32 v{T2}, v{T4}, 16, v{T2}'); a(f'v_lshl_or_b32 v{T3}, v{T5}, 16, v{T3}')
    a(f'v_min_u32 v{T2}, s70, v{T2}')
    a.lab(Lz)
    a(f'global_store_dwordx2 v{vP}, {V(T2,2)}, s[34:35]{ST}')
    a(f'global_store_dwordx2 v{vPRm}, {V(T2,2)}, s[34:35] sc1')
    a(f'v_mov_b32 v{T4}, 1'); a(f'global_store_dword v27, v{T4}, s[4:5]{ST}')
    a('s_mov_b64 exec, -1')
    a.lab(Lskip)
    def u_dma(pace):
        a('s_lshl_b32 s46, s45, 7'); a(f'v_add_u32 v{T0}, s46, v{vUF}')
        Lw=a.nl('uf'); a.lab(Lw)
        a(f'global_load_dword v{T1}, v{T0}, s[4:5] sc1'); a('s_waitcnt vmcnt(0)'); a(f'v_cmp_eq_u32 vcc, 0, v{T1}'); a.retry('s_cbranch_vccnz',Lw)
        a(f's_mul_i32 s44, s45, {U_SEG}'); a('s_mul_i32 s46, s15, 786432'); a('s_add_u32 s44, s44, s46'); a('s_mul_i32 s46, s14, 49152'); a('s_add_u32 s44, s44, s46')
        a('s_add_u32 s48, s4, s44'); a('s_addc_u32 s49, s5, 0'); a(f's_add_u32 s48, s48, {WS_U}'); a('s_addc_u32 s49, s49, 0')
        a('s_and_b32 s46, s45, 1'); a('s_mul_i32 s46, s46, 49152'); a(f's_add_u32 s46, s46, {LDS_U0}')
        a('s_mov_b32 s47, 0')
        Ll=a.nl('ud'); a.lab(Ll)
        a('s_mov_b32 m0, s46'); a(f'global_load_lds_dwordx4 v{vL16}, s[48:49] sc1')
        a('s_add_u32 m0, s46, 0'); a(f'global_load_lds_dwordx4 v{vL16}, s[48:49] offset:1024 sc1')
        Ln=a.nl('un'); a('s_cmp_lt_u32 s77, 3'); a(f's_cbranch_scc1 {Ln}')
        a(f'global_load_lds_dwordx4 v{vL16}, s[48:49] offset:2048 sc1')
        a.lab(Ln)
        for _ in range(pace): a('s_sleep 1')
        a('s_add_u32 s48, s48, 3072'); a('s_addc_u32 s49, s49, 0'); a('s_add_u32 s46, s46, 3072'); a('s_add_u32 s47, s47, 1'); a('s_cmp_lt_u32 s47, 16'); a(f's_cbranch_scc1 {Ll}')
    a('s_mov_b32 s30, 0')
    Lw0=a.nl('w0'); a('s_cmp_lg_u32 s3, 3'); a(f's_cbranch_scc1 {Lw0}'); a('s_mov_b32 s45, 0'); u_dma(0); a('s_waitcnt vmcnt(0)'); a.lab(Lw0)
    a('s_mov_b32 s31, 0')
    stamp_init(a)
    Lstep=a.nl('VOstep'); Llast=a.nl('VOlast')
    a.lab(Lstep)
    emit(a,g_bases(-1)+[f'v_mov_b32 v{ZA+i}, 0' for i in range(16)]+[f'v_mov_b32 v{ACCV+i}, 0' for i in range(8)])
    stamp(a,11)
    Lw3w=a.nl('w3w'); a('s_cmp_lg_u32 s3, 3'); a(f's_cbranch_scc1 {Lw3w}'); a('s_waitcnt vmcnt(0)'); a.lab(Lw3w)
    G_phase(a,SELH,DELAY_VO,nw=3,L=36,R=136,D=56,lp=29)
    vm=[]
    for t in range(10):
        vm.append(f's_waitcnt lgkmcnt({9-t})')
        for tl in (0,1): vm.append(f'v_smfmac_f32_16x16x64_bf16 {V(ACCV+4*tl,4)}, {V(AF+4*t,4)}, {wr((tl*10+t)*8,8)}, v{vIDX}')
    fill=slot_base(54,Z_OFF,Z_SLOT,'s30')
    fill+=slot_base(52,PP_OFF,PP_SLOT,'s30')+slot_base(34,P_OFF,P_SLOT,'s30')+slot_base(26,P_OFF,P_SLOT,'s30',-2)+['s_add_u32 s40, s30, 2','v_mov_b32 v28, s40']
    interleave(a,vm,fill,per=2)
    emit(a,half_sum_pack(ACCV,ACCV+4,44))
    a(f'ds_write_b64 v{vTW}, {V(44,2)}')
    a('s_waitcnt lgkmcnt(0)'); stamp(a,2); a('s_barrier'); stamp(a,3)
    for t2 in range(2):
        a(f'ds_read_b64_tr_b16 {V(A2+4*t2,2)}, v{vTR} offset:{t2*1024}'); a(f'ds_read_b64_tr_b16 {V(A2+4*t2+2,2)}, v{vTR} offset:{t2*1024+128}')
    a('s_waitcnt lgkmcnt(0)')
    def zfin(cb):
        z0=ZA+8*(cb%2)
        L=half_sum_pack(z0,z0+4,ZP+2*cb)
        L+=[f'v_min_u32 v{ZP+2*cb}, s70, v{ZP+2*cb}']
        L+=[f'global_store_dwordx2 v{vZS2 if cb%2 else vZS}, {V(ZP+2*cb,2)}, s[54:55] offset:{256*(cb//2)}{ST}']
        if cb+2<5: L+=[f'v_mov_b32 v{z0+i}, 0' for i in range(8)]
        return L
    pend=[]
    for cb in range(5):
        z0=ZA+8*(cb%2)
        for t2 in range(2):
            for dl in range(2):
                u=2*cb+dl
                a(f'v_smfmac_f32_16x16x64_bf16 {V(z0+4*dl,4)}, {V(A2+4*t2,4)}, {wr(160+(u*2+t2)*8,8)}, v{vIDX}')
        emit(a,pend); pend=zfin(cb)
    emit(a,pend)
    stamp(a,4)
    a(f's_cmp_eq_u32 s30, {nsteps-1}'); a(f's_cbranch_scc1 {Llast}')
    Lw3=a.nl('vw3'); Lnx=a.nl('nx')
    a('s_cmp_eq_u32 s3, 3'); a(f's_cbranch_scc1 {Lw3}')
    Lb1=a.nl('ub1'); Lb2=a.nl('ub2')
    a('s_bitcmp1_b32 s30, 0'); a(f's_cbranch_scc1 {Lb1}')
    for h in range(16): a(f'ds_read_b128 {V(UF+4*h,4)}, v{vUR} offset:{h*3072}')
    a(f's_branch {Lb2}')
    a.lab(Lb1)
    for h in range(16): a(f'ds_read_b128 {V(UF+4*h,4)}, v{vUR1} offset:{h*3072}')
    a.lab(Lb2)
    for _ in range(Z_DELAY): a('s_sleep 1')
    zl=[f'global_load_dwordx4 {V(ZF+4*t,4)}, v{vZ}, s[54:55] offset:{t*3072-4096 if t<2 else (t-2)*3072+2048-0} sc1' for t in range(4)]
    zl=[f'global_load_dwordx4 {V(ZF,4)}, v{vZ}, s[54:55] offset:-4096 sc1',f'global_load_dwordx4 {V(ZF+4,4)}, v{vZ}, s[54:55] offset:-1024 sc1',
        f'global_load_dwordx4 {V(ZF+8,4)}, v{vZ}, s[54:55] offset:2048 sc1',f'v_add_u32 v{T5}, 5120, v{vZ}',f'global_load_dwordx4 {V(ZF+12,4)}, v{T5}, s[54:55] sc1']
    stamp(a,6)
    flag_gate(a,vPFL,LDS_GO+4)
    stamp(a,5)
    for i in range(4):
        a(f's_add_u32 s22, s52, s{56+i}'); a('s_addc_u32 s23, s53, 0'); a(f's_mov_b32 m0, s{10+i}')
        a(f'global_load_lds_dwordx4 v{vL16}, s[22:23] sc1')
    Lnt=a.nl('nt'); a('s_cmp_ge_u32 s3, s77'); a(f's_cbranch_scc1 {Lnt}')
    emit(a,zl)
    a.lab(Lnt)
    a('s_add_u32 s31, s30, 1')
    a('s_lshl_b32 s40, s3, 2'); a(f's_add_u32 s40, s40, {LDS_SY}'); a(f'v_mov_b32 v{T0}, s40'); a(f'v_mov_b32 v{T1}, s31')
    Lv0=a.nl('v0'); Lv1=a.nl('v1')
    a('s_cmp_ge_u32 s3, s77'); a(f's_cbranch_scc1 {Lv0}'); a('s_waitcnt vmcnt(4)'); a(f's_branch {Lv1}'); a.lab(Lv0); a('s_waitcnt vmcnt(0)'); a.lab(Lv1)
    stamp(a,8)
    a(f'ds_write_b32 v{T0}, v{T1}')
    a(f'v_mov_b32 v{T0}, {LDS_SY}')
    Ls=a.nl('sy'); a.lab(Ls)
    a(f'ds_read_b96 {V(T2,3)}, v{T0}'); a('s_waitcnt lgkmcnt(0)'); a(f'v_min3_u32 v{T1}, v{T2}, v{T3}, v{T4}'); a(f'v_cmp_gt_u32 vcc, s31, v{T1}'); a.retry('s_cbranch_vccnz',Ls)
    Lp=a.nl('Sp'); Lp2=a.nl('Sp2'); a(f's_branch {Lp}')
    a.lab(Lp2)
    a('s_lshl_b32 s40, s15, 13'); a('s_add_u32 s22, s52, s40'); a('s_addc_u32 s23, s53, 0')
    for i in range(8):
        a(f's_mov_b32 m0, {LDS_P+i*1024}'); a(f'global_load_lds_dwordx4 v{vL16}, s[22:23] sc1'); a('s_add_u32 s22, s22, 1024'); a('s_addc_u32 s23, s23, 0')
    a('s_lshl_b32 s40, s15, 11'); a(f's_add_u32 s40, s40, {PM_REL}'); a('s_add_u32 s22, s52, s40'); a('s_addc_u32 s23, s53, 0')
    for i in range(2):
        a(f's_mov_b32 m0, {LDS_P+8192+i*1024}'); a(f'global_load_lds_dwordx4 v{vL16}, s[22:23] sc1'); a('s_add_u32 s22, s22, 1024'); a('s_addc_u32 s23, s23, 0')
    a('s_waitcnt vmcnt(0)')
    a.lab(Lp)
    stamp(a,7)
    for q in range(8): a(f'ds_read_b128 {V(PX+4*q,4)}, v{vL16} offset:{LDS_P+q*1024}')
    for t in range(4): a(f'ds_read_b128 {V(PM+4*t,4)}, v{vPMR} offset:{t*512}')
    for i in range(4): a(f'v_mov_b32 v{RA+i}, 0')
    for q in range(8):
        a(f's_waitcnt lgkmcnt({11-q})')
        a(f'v_smfmac_f32_16x16x64_bf16 {V(RA,4)}, {V(PX+4*q,4)}, {V(UF+8*q,8)}, v{vIDX}')
        r=PX+4*q
        if q==0: a(f'v_max_u32 v{T0}, v{r}, v{r+2}')
        else: a(f'v_max3_u32 v{T0}, v{T0}, v{r}, v{r+2}')
    a('s_waitcnt vmcnt(0)')
    for t in range(4):
        a(f's_waitcnt lgkmcnt({3-t})')
        a(f'v_mfma_f32_16x16x32_bf16 {V(RA,4)}, {V(PM+4*t,4)}, {V(ZF+4*t,4)}, {V(RA,4)}')
        a(f'v_max3_u32 v{T0}, v{T0}, v{PM+4*t}, v{PM+4*t+2}')
    a(f'v_cmp_eq_u32 vcc, -1, v{T0}'); a.retry('s_cbranch_vccnz',Lp2)
    stamp(a,9)
    a('s_cmp_ge_u32 s3, s77'); a(f's_cbranch_scc1 {Lnx}')
    Lzo=a.nl('zo')
    regs=[ZF+2*i for i in range(8)]
    a(f'v_max3_u32 v{T0}, v{regs[0]}, v{regs[1]}, v{regs[2]}'); a(f'v_max3_u32 v{T0}, v{T0}, v{regs[3]}, v{regs[4]}'); a(f'v_max3_u32 v{T0}, v{T0}, v{regs[5]}, v{regs[6]}'); a(f'v_max_u32 v{T0}, v{T0}, v{regs[7]}')
    a(f'v_cmp_eq_u32 vcc, -1, v{T0}'); a(f's_cbranch_vccz {Lzo}')
    Lzr=a.nl('zr'); a.lab(Lzr)
    emit(a,zl); a('s_waitcnt vmcnt(0)')
    a(f'v_max3_u32 v{T0}, v{regs[0]}, v{regs[1]}, v{regs[2]}'); a(f'v_max3_u32 v{T0}, v{T0}, v{regs[3]}, v{regs[4]}'); a(f'v_max3_u32 v{T0}, v{T0}, v{regs[5]}, v{regs[6]}'); a(f'v_max_u32 v{T0}, v{T0}, v{regs[7]}')
    a(f'v_cmp_eq_u32 vcc, -1, v{T0}'); a.retry('s_cbranch_vccnz',Lzr)
    for t in range(4): a(f'v_mfma_f32_16x16x32_bf16 {V(RA,4)}, {V(PM+4*t,4)}, {V(ZF+4*t,4)}, {"0" if t==0 else V(RA,4)}')
    for q in range(8): a(f'v_smfmac_f32_16x16x64_bf16 {V(RA,4)}, {V(PX+4*q,4)}, {V(UF+8*q,8)}, v{vIDX}')
    a.lab(Lzo)
    for i in range(4): a(f'v_mov_b32 v{RA+4+i}, v{RA+i}')
    emit(a,half_sum_pack(RA,RA+4,T0))
    a(f'v_min_u32 v{T0}, s70, v{T0}')
    a('s_mov_b64 exec, s[64:65]')
    a(f'global_store_dwordx2 v{vP}, {V(T0,2)}, s[34:35]{ST}')
    a(f'global_store_dwordx2 v{vPRm}, {V(T0,2)}, s[34:35] sc1')
    a('s_mov_b64 exec, -1')
    a(f's_branch {Lnx}')
    a.lab(Lw3)
    a(f'global_store_dwordx4 v{vR+1}, {V(SEN,4)}, s[26:27] sc1'); a(f'global_store_dwordx4 v{vR}, {V(SEN,4)}, s[26:27]{ST}')
    a('s_add_u32 s40, s30, 1'); a(f'v_mov_b32 v{T2}, {LDS_GO+4}')
    a('s_add_u32 s45, s30, 1'); u_dma_first=True
    Lg=a.nl('eg');
    a.lab(Lg)
    a(f'ds_read_b32 v{T1}, v{T2}'); a('s_waitcnt lgkmcnt(0)'); a(f'v_cmp_gt_u32 vcc, s40, v{T1}'); a.retry('s_cbranch_vccnz',Lg)
    for _ in range(EW_G): a('s_sleep 1')
    a(f'global_store_dword v27, v28, s[4:5]{ST}')
    a('s_add_u32 s45, s30, 1'); u_dma(U_PACE)
    a.lab(Lnx)
    stamp(a,10)
    a('s_add_u32 s30, s30, 1')
    a(f's_branch {Lstep}')
    a.lab(Llast)
    stamp_dump(a,None,FL_END+1024)
    a('s_waitcnt vmcnt(0)')
    a('s_endpgm')
```

```python
import sys
from asmgen import *
from layout import *
import chain, ext, parta, hazard
NAME='concat_heads__ssm_conv_s4__memory_aug_recurrent_mem_tr__prompt'
KN=NAME+'_kernel'
XA,XB=0,1
def sync_check(a):
    L=a.nl('sc'); Lok=a.nl('sco')
    a('v_mov_b32 v30, 64')
    a.lab(L)
    a('global_load_dword v31, v30, s[6:7] sc1'); a('s_waitcnt vmcnt(0)'); a('v_readfirstlane_b32 s40, v31')
    a('s_cmp_ge_u32 s40, 256'); Lg=a.nl('scg'); a(f's_cbranch_scc1 {Lg}'); a('s_sleep 4'); a('s_add_u32 s100, s100, 64'); a('s_cmp_lt_u32 s100, 0x1000000'); a(f's_cbranch_scc1 {L}'); a('s_endpgm')
    a.lab(Lg)
    a('s_cmp_lg_u32 s101, 0'); a(f's_cbranch_scc1 {Lok}')
    a('v_and_b32 v30, 7, v1'); a('v_lshlrev_b32 v30, 2, v30')
    a('global_load_dword v31, v30, s[6:7] sc1'); a('s_waitcnt vmcnt(0)')
    a(f'v_cmp_ne_u32 vcc, {32 if not FORCE_SAFE else 33}, v31'); a(f's_cbranch_vccz {Lok}')
    a('s_mov_b32 s101, 1'); a('s_lshr_b32 s12, s2, 5'); a('s_and_b32 s17, s2, 31'); a('s_barrier'); a('s_branch L_dispatch')
    a.lab(Lok)
FORCE_SAFE=False
def gen(stamps=False, prof=False, **kw):
    chain.STAMPS=stamps
    chain.DELAY_VO=2; chain.DELAY_QK=12; chain.EW_G=10; chain.Z_DELAY=0; chain.U_PACE=1; chain.W3_DELAY=20
    for k,v in kw.items(): setattr(chain,k,v)
    a=Asm()
    hdr=open('cdna_kernels/'+NAME+'.s.ref').read().split('\n')
    for l in hdr:
        if l.startswith('; @launch'): break
        a(l)
    a('; @launch grid=(256,1,1) block=(256,1,1) lds=163840')
    a('.amdgcn_target "amdgcn-amd-amdhsa--gfx950"')
    a(kernel_header(KN))
    a('s_cmp_ge_u32 s2, 256'); a('s_cbranch_scc1 L_exit')
    if prof: a('s_memrealtime s[20:21]')
    a(f's_load_dwordx2 s[4:5], s[0:1], {KA["ws"]}'); a(f's_load_dwordx2 s[6:7], s[0:1], {KA["dbg"]}')
    a('s_getreg_b32 s12, hwreg(HW_REG_XCC_ID, 0, 4)')
    a('v_and_b32 v1, 63, v0'); a('v_lshrrev_b32 v30, 6, v0'); a('v_readfirstlane_b32 s3, v30')
    a('s_mov_b32 s101, 0'); a('s_mov_b32 s100, 0')
    a('s_waitcnt lgkmcnt(0)')
    a('s_cmp_lg_u32 s3, 0'); a('s_cbranch_scc1 L_tk')
    a('s_lshl_b32 s14, s12, 2'); a('v_mov_b32 v30, s14'); a('v_mov_b32 v31, 1')
    a('s_mov_b64 exec, 1')
    a('global_atomic_add v32, v30, v31, s[6:7] sc0')
    a('s_mov_b64 exec, -1')
    a.lab('L_tk')
    nsent=(SENT_END-SENT_BEGIN)//256; assert nsent%16==0 and nsent<=8192
    a(f's_mul_i32 s40, s2, {nsent}'); a(f's_add_u32 s40, s40, {SENT_BEGIN}')
    a('v_lshlrev_b32 v33, 4, v0'); a('v_add_u32 v34, s40, v33')
    for i in range(4): a(f'v_mov_b32 v{36+i}, -1')
    a('global_store_dwordx4 v34, v[36:39], s[4:5] sc1')
    a(f'v_cmp_gt_u32 vcc, {nsent-4096}, v33'); a('s_and_saveexec_b64 s[42:43], vcc'); a('s_cbranch_execz L_i2')
    a('global_store_dwordx4 v34, v[36:39], s[4:5] offset:4095 sc1'.replace('offset:4095','offset:0')) if False else None
    a('v_add_u32 v34, 4096, v34'); a('global_store_dwordx4 v34, v[36:39], s[4:5] sc1')
    a.lab('L_i2'); a('s_mov_b64 exec, s[42:43]')
    nfl=(FL_END-FL_OFF)//256; assert nfl%16==0
    a(f's_mul_i32 s40, s2, {nfl}'); a(f's_add_u32 s40, s40, {FL_OFF}'); a('v_add_u32 v34, s40, v33')
    for i in range(4): a(f'v_mov_b32 v{40+i}, 0')
    a(f'v_cmp_gt_u32 vcc, {nfl}, v33'); a('s_and_saveexec_b64 s[42:43], vcc'); a('s_cbranch_execz L_i3')
    a('global_store_dwordx4 v34, v[40:43], s[4:5] sc1')
    a.lab('L_i3'); a('s_mov_b64 exec, s[42:43]')
    a('s_waitcnt vmcnt(0)')
    a('s_cmp_lg_u32 s3, 0'); a('s_cbranch_scc1 L_tk2')
    a('v_mov_b32 v30, 0'); a('s_mov_b64 exec, 1'); a('ds_write_b32 v30, v32'); a('s_mov_b64 exec, -1'); a('s_waitcnt lgkmcnt(0)')
    a.lab('L_tk2')
    a('s_barrier')
    a('v_mov_b32 v30, 0'); a('ds_read_b32 v32, v30')
    a('s_cmp_lg_u32 s3, 0'); a('s_cbranch_scc1 L_tk3')
    a('v_mov_b32 v30, 64'); a('v_mov_b32 v31, 1'); a('s_mov_b64 exec, 1'); a('global_atomic_add v30, v31, s[6:7]'); a('s_mov_b64 exec, -1')
    a.lab('L_tk3')
    a('s_waitcnt lgkmcnt(0)')
    a('v_readfirstlane_b32 s17, v32')
    a('s_barrier')
    a.lab('L_dispatch')
    a('s_cmp_gt_u32 s12, 7'); a('s_cbranch_scc1 L_odd')
    a('s_cmp_lt_u32 s12, 2'); a('s_cbranch_scc1 L_chain')
    a('s_cmp_lt_u32 s12, 4'); a('s_cbranch_scc1 L_e1')
    a('s_cmp_lt_u32 s12, 6'); a('s_cbranch_scc1 L_vu')
    a('s_sub_u32 s40, s12, 6'); a('s_lshl_b32 s29, s40, 5'); a('s_add_u32 s29, s29, s17'); a('s_and_b32 s29, s29, 63')
    sync_check(a)
    a('s_mov_b32 s23, s29')
    parta.gen_A(a,64)
    if prof: prof_end(a,'s29',0)
    a('s_barrier')
    a('s_cmp_ge_u32 s29, 24'); a('s_cbranch_scc1 L_e3')
    a('s_lshr_b32 s23, s29, 3'); a('s_and_b32 s24, s29, 7')
    ext.gen_E2(a,3); a('s_waitcnt vmcnt(0)')
    if prof: prof_end(a,'s29',64)
    a('s_endpgm')
    a.lab('L_e3')
    a('s_sub_u32 s41, s29, 24'); a('s_mul_hi_u32 s23, s41, 429496730'); a('s_mul_i32 s40, s23, 10'); a('s_sub_u32 s24, s41, s40')
    ext.gen_E3(a,4); a('s_waitcnt vmcnt(0)')
    if prof: prof_end(a,'s29',64)
    a('s_endpgm')
    a.lab('L_odd')
    sync_check(a)
    a('s_endpgm')
    a.lab('L_e1')
    a('s_and_b32 s17, s17, 31')
    a('s_lshr_b32 s14, s17, 1'); a('s_cmp_eq_u32 s12, 2'); a('s_cselect_b32 s40, 16, 0'); a('s_add_u32 s14, s14, s40'); a('s_and_b32 s15, s17, 1')
    ext.SYNC=sync_check
    ext.END=(lambda a: prof_end(a,'s14',128+0)) if prof else None
    ext.gen_E1(a)
    a.lab('L_vu')
    a('s_and_b32 s17, s17, 31')
    a('s_sub_u32 s15, s12, 4'); a('s_lshr_b32 s14, s17, 1'); a('s_lshl_b32 s16, s15, 4'); a('s_add_u32 s16, s16, s14'); a('s_and_b32 s17, s17, 1')
    ext.END=(lambda a: prof_end(a,'s16',160)) if prof else None
    ext.gen_VU(a)
    a.lab('L_chain')
    a('s_and_b32 s17, s17, 31')
    a('s_mov_b32 s15, s12'); a('s_and_b32 s14, s17, 15'); a('s_lshl_b32 s16, s15, 4'); a('s_add_u32 s16, s16, s14')
    chain.SYNC=sync_check
    a('s_cmp_lg_u32 s101, 0'); a('s_cbranch_scc1 L_chain_safe')
    a('s_cmp_ge_u32 s17, 16'); a('s_cbranch_scc1 L_vo')
    chain.gen_QK(a,False,NSTEP,(lambda a: prof_end(a,'s16',192)) if prof else None)
    a.lab('L_vo'); chain.gen_VO(a,False)
    a.lab('L_chain_safe')
    a('s_cmp_ge_u32 s17, 16'); a('s_cbranch_scc1 L_vo_s')
    chain.gen_QK(a,True)
    a.lab('L_vo_s'); chain.gen_VO(a,True)
    a.lab('L_exit')
    a('s_endpgm')
    a(kernel_desc(KN))
    a.lines=[l for l in a.lines if l is not None]
    t,n=hazard.fix(a.text())
    return t
def prof_end(a, idxreg, base):
    L=a.nl('pe')
    a('s_cmp_lg_u32 s3, 0'); a(f's_cbranch_scc1 {L}')
    a('s_memrealtime s[82:83]'); a('s_waitcnt lgkmcnt(0)')
    a(f's_add_u32 s40, {idxreg}, {base}'); a('s_lshl_b32 s40, s40, 3'); a(f's_add_u32 s40, s40, {FL_END+0x8000}')
    a('v_mov_b32 v30, s40'); a('v_mov_b32 v32, s20'); a('v_mov_b32 v33, s82'); a('global_store_dwordx2 v30, v[32:33], s[4:5]')
    a.lab(L)
if __name__=='__main__':
    if len(sys.argv)>2 and sys.argv[2]=='safe': FORCE_SAFE=True
    t=gen(prof=(len(sys.argv)>2 and sys.argv[2]=='prof'))
    out=sys.argv[1] if len(sys.argv)>1 else 'cdna_kernels/'+NAME+'.s'
    open(out,'w').write(t); print(len(t.split('\n')),'lines',len(t),'bytes ->',out)
```

```python
from asmgen import *
from layout import *
SCALE=0x3db504f3
L2E=0x3fb8aa3b
LDS_A=0
LDS_F=10240
LDS_ML=14336
LDS_R=14848
LDS_GO=21504
LDS_ML2=21760
STG_BLK=1088; STG_BUF=32*STG_BLK

def wr(idx,n):
    if idx<256:
        assert idx+n<=256
        return f'a[{idx}:{idx+n-1}]'
    b=192+idx-256
    return f'v[{b}:{b+n-1}]'
def V(b,n=1): return f'v{b}' if n==1 else f'v[{b}:{b+n-1}]'

def interleave(a, mains, fillers, per=2, start=0):
    f=list(fillers)
    for i,m in enumerate(mains):
        a(m)
        if i>=start and not m.startswith('s_waitcnt'):
            for _ in range(per):
                if f: a(f.pop(0))
    for x in f: a(x)

T0,T1,T2,T3,T4,T5=30,31,32,33,34,35
vG=2; vAW=3; vAR=4; vIDX=5; vSEL=6
GL=36; AF=56; GD=56; ACC=96

def masks(a):
    a('s_mov_b32 s60, 0x00ff00ff'); a('s_mov_b32 s61, 0x00ff00ff')
    a('s_mov_b32 s62, 0'); a('s_mov_b32 s63, 0x00ff00ff')
    a('s_mov_b32 s64, -1'); a('s_mov_b32 s65, 0')
    a('s_mov_b32 s72, 0xff00ff00'); a('s_mov_b32 s73, 0xff00ff00')
    a('s_mov_b32 s66, 0x3e0293ee'); a('s_mov_b32 s67, 0x3e0293ee')
    a('s_mov_b32 s70, 0xfffffffe')

def load_weights(a, srcs, trs, NR=10):
    def issue(r):
        srcs(r)
        a(f's_mul_i32 s44, s3, {8*STG_BLK}')
        a(f's_add_u32 s44, s44, {(r%4)*STG_BUF}')
        a(f'v_mov_b32 v{T5}, v{T4}')
        for i in range(8):
            a(f's_add_u32 m0, s44, {i*STG_BLK}')
            a(f'global_load_lds_dwordx4 v{T5}, s[40:41]')
            if i<7: a(f'v_add_u32 v{T5}, s43, v{T5}')
    for r in range(4): issue(r)
    if ARRIVE: ARRIVE(a,32)
    for r in range(NR):
        a(f's_waitcnt vmcnt({8*min(NR-1-r,3)})')
        a('s_barrier')
        trs(r,(r%4)*STG_BUF)
        a('s_waitcnt lgkmcnt(0)')
        a('s_barrier')
        if r+4<NR: issue(r+4)

def tr_addr16(a, dst):
    a(f'v_lshrrev_b32 v{T0}, 4, v1'); a(f'v_mul_u32_u24 v{dst}, {2*STG_BLK}, v{T0}')
    a(f'v_bfe_u32 v{T0}, v1, 2, 2'); a(f'v_lshl_add_u32 v{dst}, v{T0}, 8, v{dst}')
    a(f'v_and_b32 v{T0}, 3, v1'); a(f'v_lshl_add_u32 v{dst}, v{T0}, 3, v{dst}')
    a('s_lshl_b32 s40, s3, 6'); a(f'v_add_u32 v{dst}, s40, v{dst}')
def tr_B16(a, vaddr, bufoff, blocks):
    a(f'v_add_u32 v{T3}, {bufoff}, v{vaddr}')
    for (m,tp,idx) in blocks:
        for hB in range(2):
            for half in range(2):
                off=(m*16+8*hB+half)*STG_BLK+32*tp
                a(f'ds_read_b64_tr_b16 {wr(idx+hB*4+half*2,2)}, v{T3} offset:{off}')

vG3=184; vAW3=185; vSELH=186
SELH=None
DELAY_VO=0; DELAY_QK=0; NU_MID=6
VO_GATE=True; VO_D2=None; G_D2=0; P_TIMED=None; KMOD=' sc1'; EXP=set(); EW_P=0; EW_G=0; Z_DELAY=5; PF_A=6; PF_PACE=1; W3_DELAY=12; EWP_POS='pre'
def common_consts(a, selh, nw=4):
    n,g,x,y=T0,T1,T2,T3
    a(f'v_and_b32 v{n}, 15, v1'); a(f'v_lshrrev_b32 v{g}, 4, v1')
    a(f'v_lshrrev_b32 v{x}, 2, v{n}'); a(f'v_lshlrev_b32 v{x}, 4, v{x}')
    a(f'v_lshrrev_b32 v{y}, 1, v{g}'); a(f'v_lshl_add_u32 v{x}, v{y}, 3, v{x}')
    a(f'v_bfe_u32 v{y}, v{n}, 1, 1'); a(f'v_lshl_add_u32 v{x}, v{y}, 2, v{x}')
    a(f'v_and_b32 v{y}, 1, v{g}'); a(f'v_lshl_add_u32 v{x}, v{y}, 1, v{x}')
    a(f'v_and_b32 v{y}, 1, v{n}'); a(f'v_add_u32 v{x}, v{x}, v{y}')
    a(f'v_lshlrev_b32 v{x}, 4, v{x}')
    a('s_lshl_b32 s40, s3, 10'); a('s_add_u32 s41, s40, 4096')
    a(f'v_add_u32 v{vG}, s41, v{x}')
    a(f'v_lshlrev_b32 v{vAR}, 4, v1'); a(f'v_add_u32 v{vAW}, s40, v{vAR}')
    if nw==4:
        a('s_cmp_lt_u32 s3, 2'); a('s_cselect_b32 s42, 4096, 0')
        a(f'v_add_u32 v{vG3}, s42, v{vG}'); a('s_add_u32 s42, s42, 4096'); a(f'v_add_u32 v{vAW3}, s42, v{vAW}')
    else:
        a('s_movk_i32 s43, 2048'); a('s_cmp_eq_u32 s3, 0'); a('s_cselect_b32 s42, 5120, s43')
        a(f'v_add_u32 v{vG3}, s42, v{vG}'); a('s_add_u32 s42, s42, 4096'); a(f'v_add_u32 v{vAW3}, s42, v{vAW}')
    a(f'v_mov_b32 v{vIDX}, 0x4444'); a(f'v_mov_b32 v{x}, 0xeeee'); a(f'v_cmp_lt_u32 vcc, 7, v{n}'); a(f'v_cndmask_b32 v{vIDX}, v{vIDX}, v{x}, vcc')
    a(f'v_lshrrev_b32 v{x}, 3, v{n}'); a(f'v_and_b32 v{y}, 1, v{g}'); a(f'v_cmp_eq_u32 s[40:41], v{x}, v{y}')
    a(f'v_and_b32 v{x}, 1, v{n}'); a(f'v_lshlrev_b32 v{x}, 4, v{x}'); a(f'v_mov_b32 v{y}, 0x3f80'); a(f'v_lshlrev_b32 v{x}, v{x}, v{y}')
    a(f'v_cndmask_b32 v{x}, 0, v{x}, s[40:41]')
    a(f'v_bfe_u32 v{y}, v{n}, 1, 2')
    a(f'v_cmp_gt_u32 s[42:43], 2, v{g}')
    for d in range(4):
        a(f'v_cmp_eq_u32 vcc, {d}, v{y}'); a(f'v_cndmask_b32 v{T4}, 0, v{x}, vcc')
        a(f'v_cndmask_b32 v{vSEL+d}, 0, v{T4}, s[42:43]'); a(f'v_cndmask_b32 v{selh+d}, v{T4}, 0, s[42:43]')

def g_bases(stepadd):
    return [f's_add_u32 s44, s30, {stepadd&0xffffffff}','s_and_b32 s44, s44, 3',f's_mul_i32 s44, s44, {P_SLOT}',f's_add_u32 s44, s44, {P_OFF}',
            's_add_u32 s45, s44, s18','s_add_u32 s36, s4, s45','s_addc_u32 s37, s5, 0','s_add_u32 s45, s44, s19','s_add_u32 s38, s4, s45','s_addc_u32 s39, s5, 0']
vLP=None
def lp_const(a, reg):
    a(f'v_and_b32 v{T0}, 15, v1'); a(f'v_lshlrev_b32 v{T0}, 2, v{T0}')
    a('s_lshl_b32 s40, s15, 7'); a(f's_add_u32 s40, s40, {GF_OFF}'); a(f'v_add_u32 v{reg}, s40, v{T0}')
    a(f'v_mov_b32 v{T0}, {LDS_GO}'); a(f'v_mov_b32 v{T2}, 0'); a(f'v_mov_b32 v{T3}, 0'); a(f'ds_write_b64 v{T0}, {V(T2,2)}')
    a(f'v_mov_b32 v{T4}, 0'); a(f'v_mov_b32 v{T5}, 0'); a(f'v_lshlrev_b32 v{T0}, 4, v1'); a(f'ds_write_b128 v{T0}, {V(T2,4)} offset:{LDS_ML2}')
    a('s_waitcnt lgkmcnt(0)'); a('s_barrier')
POLL_DEPTH=3
def flag_gate(a, vflag, goaddr, dbg=False):
    Lq=a.nl('Fq'); Lw=a.nl('Fw'); Lo=a.nl('Fo'); Lk=a.nl('Fk')
    R=[T1,T3,T4][:POLL_DEPTH]; D=len(R)
    a('s_add_u32 s40, s30, 1')
    a(f'v_mov_b32 v{T2}, {goaddr}')
    a('s_cmp_lg_u32 s3, 0'); a(f's_cbranch_scc1 {Lw}')
    a('s_mov_b64 exec, 0xffff')
    for i,r in enumerate(R):
        a(f'global_load_dword v{r}, v{vflag}, s[4:5] sc1')
        if i<D-1: a('s_nop 15')
    a.lab(Lq)
    for i,r in enumerate(R):
        a(f's_waitcnt vmcnt({D-1})')
        a(f'v_cmp_gt_u32 vcc, s40, v{r}'); a(f's_cbranch_vccz {Lk}')
        a(f'global_load_dword v{r}, v{vflag}, s[4:5] sc1')
    a('s_add_u32 s100, s100, 1'); a('s_cmp_lt_u32 s100, 0x1000000'); a(f's_cbranch_scc1 {Lq}'); a('s_endpgm')
    a.lab(Lk)
    a(f'v_mov_b32 v{T0}, s40'); a(f'ds_write_b32 v{T2}, v{T0}')
    a('s_mov_b64 exec, -1')
    a(f's_branch {Lo}')
    a.lab(Lw)
    a(f'ds_read_b32 v{T1}, v{T2}'); a('s_waitcnt lgkmcnt(0)'); a(f'v_cmp_gt_u32 vcc, s40, v{T1}'); a.retry('s_cbranch_vccnz',Lw)
    a.lab(Lo)

def G_phase(a, selh, delay=0, nw=4, mid=None, L=36, R=80, D=56, lp=None, gate=True, d2o=None):
    nl=3 if nw==4 else 4
    offs=[-4096,0] if nw==4 else [-4096,-1024,2048]
    lds=[0,4096] if nw==4 else [0,3072,6144]
    Lskip=a.nl('Gs')
    def loads(dst,base):
        for i,o in enumerate(offs): a(f'global_load_dwordx4 {V(dst+4*i,4)}, v{vG}, s[{base}:{base+1}] offset:{o} sc1')
        a(f'global_load_dwordx4 {V(dst+4*(nl-1),4)}, v{vG3}, s[{base}:{base+1}] sc1')
    def check(src):
        regs=[src+2*i for i in range(2*nl)]
        a(f'v_max3_u32 v{T0}, v{regs[0]}, v{regs[1]}, v{regs[2]}'); k=3
        while k+1<len(regs): a(f'v_max3_u32 v{T0}, v{T0}, v{regs[k]}, v{regs[k+1]}'); k+=2
        if k<len(regs): a(f'v_max_u32 v{T0}, v{T0}, v{regs[k]}')
        a(f'v_cmp_eq_u32 vcc, -1, v{T0}')
    if nw==3: a('s_cmp_eq_u32 s3, 3'); a(f's_cbranch_scc1 {Lskip}')
    if gate: flag_gate(a,lp,LDS_GO)
    stamp(a,12)
    def loads2(dst,base):
        for i,o in enumerate(offs): a(f'global_load_dwordx4 {V(dst+4*i,4)}, v{vG}, s[{base}:{base+1}] offset:{o} sc1')
        a(f'global_load_dwordx4 {V(dst+4*(nl-1),4)}, v{vG3}, s[{base}:{base+1}] sc1')
    d2=min(delay,G_D2 if d2o is None else d2o)
    Lnd=a.nl('nd')
    if not gate and nw==4 and delay-d2>0: a('s_cmp_eq_u32 s3, 3'); a(f's_cbranch_scc1 {Lnd}')
    for _ in range(delay-d2): a('s_sleep 1')
    a.lab(Lnd)
    loads2(L,36)
    for _ in range(d2): a('s_sleep 1')
    loads2(R,38); a(f's_waitcnt vmcnt({nl})')
    Ll=a.nl('Gl'); Llo=a.nl('Glo')
    a.lab(Ll)
    check(L); a(f's_cbranch_vccz {Llo}')
    loads(L,36); a('s_waitcnt vmcnt(0)'); a('s_add_u32 s100, s100, 1'); a('s_cmp_lt_u32 s100, 0x1000000'); a(f's_cbranch_scc1 {Ll}'); a('s_endpgm')
    a.lab(Llo)
    for i in range(nl):
        for nu in range(2): a(f'v_mfma_f32_16x16x32_bf16 {V(D+8*i+4*nu,4)}, {V(L+4*i,4)}, {V(vSEL if nu==0 else selh,4)}, 0')
    a('s_waitcnt vmcnt(0)')
    Lr=a.nl('Gr'); Lro=a.nl('Gro')
    a.lab(Lr)
    if STAMPS==True: a('s_add_u32 s97, s97, 1')
    check(R); a(f's_cbranch_vccz {Lro}')
    loads(R,38); a('s_waitcnt vmcnt(0)'); a('s_add_u32 s100, s100, 1'); a('s_cmp_lt_u32 s100, 0x1000000'); a(f's_cbranch_scc1 {Lr}'); a('s_endpgm')
    a.lab(Lro)
    stamp(a,0)
    def fin_i(i):
        for q in range(4): a(f'v_cvt_pk_bf16_f32 v{L+4*i+q}, v{D+8*i+2*q}, v{D+8*i+2*q+1}')
        if i<nl-1: a(f'ds_write_b128 v{vAW}, {V(L+4*i,4)} offset:{lds[i]}')
        else: a(f'ds_write_b128 v{vAW3}, {V(L+4*i,4)}')
    for i in range(nl):
        for nu in range(2): a(f'v_mfma_f32_16x16x32_bf16 {V(D+8*i+4*nu,4)}, {V(R+4*i,4)}, {V(vSEL if nu==0 else selh,4)}, {V(D+8*i+4*nu,4)}')
        if i>=2: fin_i(i-2)
    fin_i(nl-2); fin_i(nl-1)
    a('s_waitcnt lgkmcnt(0)')
    a.lab(Lskip)
    a('s_barrier')
    stamp(a,1)
    for t in range(10):
        a(f'ds_read_b128 {V(AF+4*t,4)}, v{vAR} offset:{t*1024}')
GREM=80; GDD=56

def half_sum_pack(t0, t1, out):
    L=[]
    for i in range(4): L.append(f'v_permlane32_swap_b32 v{t0+i}, v{t1+i}')
    L.append(f'v_pk_add_f32 {V(t0,2)}, {V(t0,2)}, {V(t1,2)}')
    L.append(f'v_pk_add_f32 {V(t0+2,2)}, {V(t0+2,2)}, {V(t1+2,2)}')
    if out is not None:
        L.append(f'v_cvt_pk_bf16_f32 v{out}, v{t0}, v{t0+1}')
        L.append(f'v_cvt_pk_bf16_f32 v{out+1}, v{t0+2}, v{t0+3}')
    return L

def slot_base(dst, off, slotsz, stepreg, add=0, tmp='s44'):
    L=[]
    if add: L+= [f's_add_u32 {tmp}, {stepreg}, {add&0xffffffff}', f's_and_b32 {tmp}, {tmp}, 3']
    else: L.append(f's_and_b32 {tmp}, {stepreg}, 3')
    L+=[f's_mul_i32 {tmp}, {tmp}, {slotsz}', f's_add_u32 {tmp}, {tmp}, {off}', f's_add_u32 s{dst}, s4, {tmp}', f's_addc_u32 s{dst+1}, s5, 0']
    return L
def poll_flag(a, offreg_s):
    Lw=a.nl('pf')
    a(f'v_mov_b32 v{T0}, {offreg_s}')
    a.lab(Lw)
    a(f'global_load_dword v{T1}, v{T0}, s[4:5] sc1'); a('s_waitcnt vmcnt(0)')
    a(f'v_cmp_eq_u32 vcc, 0, v{T1}')
    a.retry('s_cbranch_vccnz',Lw)
def emit(a,L):
    for x in L: a(x)

STAMPS=False
ARRIVE=None
SYNC=None
EVSTEP=30
def stamp(a,i):
    if not STAMPS: return
    if STAMPS=='ev':
        L=a.nl('ev')
        a(f's_cmp_lg_u32 s30, {EVSTEP}'); a(f's_cbranch_scc1 {L} ; @fwd')
        a('s_memrealtime s[82:83]'); a('s_waitcnt lgkmcnt(0)'); a(f's_mov_b32 s{84+i}, s82')
        a(f'{L}: ; @end')
        return
    a('s_memtime s[82:83]'); a('s_waitcnt lgkmcnt(0)'); a('s_sub_u32 s99, s82, s98'); a(f's_add_u32 s{84+i}, s{84+i}, s99'); a('s_mov_b32 s98, s82')
def stamp_init(a):
    if not STAMPS: return
    for i in range(14): a(f's_mov_b32 s{84+i}, 0')
    a('s_memtime s[82:83]'); a('s_waitcnt lgkmcnt(0)'); a('s_mov_b32 s98, s82')
def stamp_dump(a, cond_regs, base):
    if not STAMPS: return
    L=a.nl('sd')
    if STAMPS=='ev':
        a('s_lshl_b32 s40, s15, 4'); a('s_add_u32 s40, s40, s14'); a('s_lshl_b32 s40, s40, 2'); a('s_add_u32 s40, s40, s3'); a('s_lshl_b32 s40, s40, 6')
        a(f's_add_u32 s40, s40, {base if base==FL_END else FL_END+8192}')
    else:
        a('s_or_b32 s40, s15, s14'); a('s_cmp_lg_u32 s40, 0'); a(f's_cbranch_scc1 {L}')
        a('s_lshl_b32 s40, s3, 6'); a(f's_add_u32 s40, s40, {base}')
    a('v_mov_b32 v30, s40')
    for i in range(14):
        a(f'v_mov_b32 v31, s{84+i}'); a(f'global_store_dword v30, v31, s[4:5] offset:{4*i}')
    if STAMPS=='ev': a('v_mov_b32 v31, s81'); a('global_store_dword v30, v31, s[4:5] offset:56')
    a.lab(L)

CSC=0x3e0293ee
def softmax_part1(a, D, S, vBI, vMW, EX):
    m,l=EX,EX+2; u=T4
    a(f'v_pk_add_f32 {V(D,2)}, {V(D,2)}, {V(vBI,2)}'); a(f'v_pk_add_f32 {V(D+2,2)}, {V(D+2,2)}, {V(vBI,2)}')
    a(f'v_max3_f32 v{m}, v{D}, v{D+1}, v{D+2}'); a(f'v_max_f32 v{m}, v{m}, v{D+3}')
    a(f'v_mov_b32 v{u}, v{m}'); a(f'v_permlane16_swap_b32 v{m}, v{u}'); a(f'v_max_f32 v{m}, v{m}, v{u}')
    a(f'v_mov_b32 v{u}, v{m}'); a(f'v_permlane32_swap_b32 v{m}, v{u}'); a(f'v_max_f32 v{m}, v{m}, v{u}')
    a(f'v_pk_mul_f32 {V(T2,2)}, {V(m,2)}, s[66:67] op_sel_hi:[0,1]')
    a(f'v_pk_fma_f32 {V(S,2)}, {V(D,2)}, s[66:67], {V(T2,2)} neg_lo:[0,0,1] neg_hi:[0,0,1]')
    a(f'v_pk_fma_f32 {V(S+2,2)}, {V(D+2,2)}, s[66:67], {V(T2,2)} neg_lo:[0,0,1] neg_hi:[0,0,1]')
    for i in range(4): a(f'v_exp_f32 v{S+i}, v{S+i}')
    a(f'v_pk_add_f32 {V(T2,2)}, {V(S,2)}, {V(S+2,2)}'); a(f'v_add_f32 v{l}, v{T2}, v{T3}')
    a(f'v_mov_b32 v{u}, v{l}'); a(f'v_permlane16_swap_b32 v{l}, v{u}'); a(f'v_add_f32 v{l}, v{l}, v{u}')
    a(f'v_mov_b32 v{u}, v{l}'); a(f'v_permlane32_swap_b32 v{l}, v{u}'); a(f'v_add_f32 v{l}, v{l}, v{u}')
    a(f'ds_write_b128 v{vMW}, {V(EX,4)}')

def gen_QK(a, safe=False, nsteps=NSTEP, prof=None):
    ST=' sc1' if safe else ''
    vFW=10; vFR=11; vKX=12; vPS=13; vKM=23; vMW=24; vMR=25
    vSL=26; vSH=27; vNI=28; vPF=14; vZC=15; SEN2=132; ZC=136
    KX=112; vR=180; SELH=186; DUM=128
    SEN=112
    FF=56
    SD=36; SE=40; ML=44; EX=160
    GLx=36
    n,g,x,y=T0,T1,T2,T3
    a.c('================ QK role ================')
    masks(a)
    a('s_load_dwordx2 s[8:9], s[0:1], %d'%KA['Wq']); a('s_load_dwordx2 s[10:11], s[0:1], %d'%KA['Wk'])
    a('s_waitcnt lgkmcnt(0)')
    a(f'v_lshrrev_b32 v{T4}, 4, v1'); a(f'v_lshlrev_b32 v{T4}, 13, v{T4}'); a(f'v_and_b32 v{T5}, 15, v1'); a(f'v_lshl_add_u32 v{T4}, v{T5}, 4, v{T4}')
    a('s_cmp_lt_u32 s3, 2'); a('s_cselect_b32 s12, s8, s10'); a('s_cselect_b32 s13, s9, s11')
    a('s_and_b32 s40, s3, 1'); a('s_lshl_b32 s40, s40, 18')
    a('s_lshl_b32 s41, s16, 8'); a('s_add_u32 s40, s40, s41')
    a('s_add_u32 s12, s12, s40'); a('s_addc_u32 s13, s13, 0')
    a('s_mov_b32 s43, 32768')
    def srcs(r):
        a(f's_add_u32 s40, s12, {r*64*8192}'); a('s_addc_u32 s41, s13, 0')
    tr_addr16(a,vFW)
    def trs(r,bufoff):
        tr_B16(a,vFW,bufoff,[(0,0,(0*10+r)*8),(0,1,(1*10+r)*8),(1,0,(2*10+r)*8),(1,1,(3*10+r)*8)])
    load_weights(a,srcs,trs)
    if SYNC: SYNC(a)
    common_consts(a,SELH,3); lp_const(a,29)
    a('s_mul_i32 s18, s15, 10240'); a('s_sub_u32 s19, 1, s15'); a('s_mul_i32 s19, s19, 10240'); a('s_add_u32 s19, s19, 20480')
    a(f'v_and_b32 v{n}, 15, v1'); a(f'v_lshrrev_b32 v{g}, 4, v1')
    a(f'v_lshrrev_b32 v{x}, 5, v1'); a(f'v_lshlrev_b32 v{x}, 4, v{x}'); a(f'v_add_u32 v{x}, v{x}, v{n}')
    a('s_lshl_b32 s40, s3, 5'); a(f'v_add_u32 v{x}, s40, v{x}'); a(f'v_lshlrev_b32 v{x}, 5, v{x}')
    a(f'v_and_b32 v{y}, 1, v{g}'); a(f'v_lshl_add_u32 v{x}, v{y}, 3, v{x}'); a(f'v_add_u32 v{vFW}, {LDS_F}, v{x}')
    a(f'v_bfe_u32 v{x}, v1, 2, 2'); a(f'v_lshl_add_u32 v{x}, v{g}, 3, v{x}'); a(f'v_lshlrev_b32 v{x}, 5, v{x}')
    a(f'v_and_b32 v{y}, 3, v1'); a(f'v_lshl_add_u32 v{x}, v{y}, 3, v{x}'); a(f'v_add_u32 v{vFR}, {LDS_F}, v{x}')
    a('s_sub_u32 s40, s3, 1'); a('s_and_b32 s40, s40, 1'); a('s_lshl_b32 s40, s40, 8'); a('s_add_u32 s40, s40, 4096')
    a(f'v_lshlrev_b32 v{x}, 9, v{g}'); a(f'v_lshl_add_u32 v{x}, v{n}, 4, v{x}'); a(f'v_add_u32 v{vKX}, s40, v{x}')
    a(f'v_lshlrev_b32 v{x}, 3, v{g}'); a(f'v_add_u32 v{x}, v{x}, v{n}'); a(f'v_lshlrev_b32 v{x}, 3, v{x}')
    a('s_sub_u32 s40, s3, 1'); a('s_and_b32 s40, s40, 1'); a('s_lshl_b32 s40, s40, 9')
    a('s_lshr_b32 s41, s14, 1'); a('s_lshl_b32 s41, s41, 10'); a('s_add_u32 s40, s40, s41'); a('s_and_b32 s41, s14, 1'); a('s_lshl_b32 s41, s41, 8'); a('s_add_u32 s40, s40, s41')
    a('s_lshl_b32 s41, s15, 13'); a('s_add_u32 s40, s40, s41')
    a(f'v_add_u32 v{vPS}, s40, v{x}')
    a(f'v_and_b32 v{x}, 1, v{g}'); a(f'v_lshlrev_b32 v{x}, 3, v{x}'); a(f'v_lshl_add_u32 v{x}, v{n}, 4, v{x}')
    a('s_lshl_b32 s41, s14, 7'); a('s_lshl_b32 s42, s15, 11'); a('s_add_u32 s41, s41, s42'); a(f's_add_u32 s41, s41, {PM_REL}')
    a(f'v_add_u32 v{x}, s41, v{x}')
    a('s_cmp_eq_u32 s3, 0'); a('s_cselect_b64 vcc, -1, 0'); a(f'v_cndmask_b32 v{vPS}, v{vPS}, v{x}, vcc')
    a('s_lshl_b32 s40, s14, 7'); a('s_lshl_b32 s42, s15, 11'); a('s_add_u32 s40, s40, s42'); a(f's_add_u32 s40, s40, {PM_REL}'); a(f'v_and_b32 v{y}, 7, v1'); a(f'v_lshlrev_b32 v{y}, 4, v{y}'); a(f'v_add_u32 v{vR}, s40, v{y}')
    a('s_lshr_b32 s40, s14, 1'); a('s_lshl_b32 s40, s40, 10'); a('s_and_b32 s41, s14, 1'); a('s_lshl_b32 s41, s41, 8'); a('s_add_u32 s40, s40, s41'); a('s_lshl_b32 s42, s15, 13'); a('s_add_u32 s40, s40, s42')
    a(f'v_and_b32 v{y}, 1, v{g}'); a(f'v_lshlrev_b32 v{y}, 9, v{y}'); a(f'v_lshl_add_u32 v{y}, v{n}, 4, v{y}'); a(f'v_add_u32 v{vR+1}, s40, v{y}')
    a(f'v_lshlrev_b32 v{x}, 7, v{g}'); a(f'v_lshl_add_u32 v{x}, v{n}, 4, v{x}'); a(f'v_subrev_u32 v{vKM}, 128, v{x}')
    a(f'v_lshlrev_b32 v{x}, 4, v{n}'); a(f'v_add_u32 v{vMR}, {LDS_ML2}, v{x}'); a('s_lshl_b32 s40, s3, 8'); a(f'v_add_u32 v{vMW}, s40, v{vMR}')
    a(f'v_lshlrev_b32 v{vPF}, 6, v1')
    a('s_lshl_b32 s40, s15, 8'); a('s_lshl_b32 s41, s14, 2'); a('s_add_u32 s40, s40, s41'); a(f's_add_u32 s40, s40, {PF_OFF}'); a('v_mov_b32 v21, s40')
    a(f'v_mul_u32_u24 v{x}, 12288, v{g}'); a(f'v_lshl_add_u32 v{x}, v{n}, 4, v{x}')
    a('s_mul_i32 s40, s15, 196608'); a('s_mul_i32 s41, s14, 768'); a('s_add_u32 s40, s40, s41')
    a(f'v_add_u32 v{vZC}, s40, v{x}')
    for i in range(4): a(f'v_mov_b32 v{SEN2+i}, -1')
    a('s_cmp_eq_u32 s3, 0'); a('s_cselect_b32 s40, -1, 0'); a('s_mov_b32 s41, 0')
    a(f'v_mov_b32 v{x}, 0xff800000'); a(f'v_cndmask_b32 v26, 0, v{x}, s[40:41]'); a('v_mov_b32 v27, v26')
    for i in range(4): a(f'v_mov_b32 v{SEN+i}, -1')
    a('s_cmp_eq_u32 s3, 0'); a('s_cselect_b32 s78, s62, s60'); a('s_cselect_b32 s79, s63, s61')
    def km_flag(add):
        a(f's_add_u32 s46, s30, {add&0xffffffff}'); a('s_lshl_b32 s46, s46, 5'); a('s_add_u32 s46, s46, s16'); a('s_lshl_b32 s46, s46, 2'); a(f's_add_u32 s46, s46, {KMF_OFF}')
        a(f'v_mov_b32 v{T0}, s46'); a(f'v_mov_b32 v{T1}, 1')
        a(f'global_store_dword v{T0}, v{T1}, s[4:5] sc1')
    def km_store():
        for t in range(4):
            a(f'ds_read_b64_tr_b16 {V(FF+4*t,2)}, v{vFR} offset:{t*1024}'); a(f'ds_read_b64_tr_b16 {V(FF+4*t+2,2)}, v{vFR} offset:{t*1024+128}')
        a('s_lshl_b32 s46, s30, 5'); a('s_add_u32 s46, s46, s16'); a('s_lshl_b32 s46, s46, 11'); a(f's_add_u32 s46, s46, {WS_KM}')
        a('s_add_u32 s56, s4, s46'); a('s_addc_u32 s57, s5, 0')
        a('s_waitcnt lgkmcnt(0)')
        a('s_mov_b64 exec, s[72:73]')
        for t in range(4): a(f'global_store_dwordx4 v{vKM}, {V(FF+4*t,4)}, s[56:57] offset:{t*512} sc1')
        a('s_mov_b64 exec, -1')
    def flags_wait(kadd, uadd=None):
        a(f's_add_u32 s45, s30, {kadd}'); a('s_min_u32 s45, s45, 63')
        a('s_lshl_b32 s46, s45, 8'); a('s_lshr_b32 s47, s16, 1'); a('s_add_u32 s47, s47, 16'); a('s_lshl_b32 s47, s47, 2'); a('s_add_u32 s46, s46, s47'); a(f's_add_u32 s46, s46, {QKF_OFF}')
        a(f'v_mov_b32 v{T2}, s46')
        Lw=a.nl('vf'); a.lab(Lw)
        a(f'global_load_dword v{T3}, v{T2}, s[4:5] sc1'); a('s_waitcnt vmcnt(0)')
        a(f'v_cmp_eq_u32 vcc, 0, v{T3}'); a.retry('s_cbranch_vccnz',Lw)
    def prefetch_U(part=None, tgt=None, pace=0):
        if tgt is not None: a(f's_add_u32 s45, s30, {tgt}'); a('s_min_u32 s45, s45, 63')
        a('s_mov_b64 exec, s[64:65]')
        a('s_lshl_b32 s46, s45, 5'); a('s_add_u32 s46, s46, s16'); a('s_lshl_b32 s46, s46, 13'); a(f's_add_u32 s46, s46, {WS_K}'); a('s_add_u32 s48, s4, s46'); a('s_addc_u32 s49, s5, 0')
        for i in range(4):
            a(f'global_load_dword v{DUM}, v{vPF}, s[48:49] offset:{i*2048 if i<2 else i*2048-4096} sc1')
            if i==1: a('s_add_u32 s48, s48, 4096'); a('s_addc_u32 s49, s49, 0')
        a('s_mov_b64 exec, -1')
    def z_copy():
        emit(a,slot_base(54,Z_OFF,Z_SLOT,'s30'))
        a(f's_mul_i32 s44, s30, {ZG_STEP}'); a('s_add_u32 s56, s4, s44'); a('s_addc_u32 s57, s5, 0'); a(f's_add_u32 s56, s56, {WS_ZG}'); a('s_addc_u32 s57, s57, 0')
        blks=[(j,k) for j in range(4) for k in range(3) if not (j>=2 and k==2)]
        Lz=a.nl('zc'); a.lab(Lz)
        for i,(j,k) in enumerate(blks):
            a(f's_add_u32 s22, s54, {j*49152}'); a('s_addc_u32 s23, s55, 0')
            a(f'global_load_dwordx4 {V(ZC+4*i,4)}, v{vZC}, s[22:23] offset:{k*256} sc1')
        a('s_waitcnt vmcnt(0)')
        regs=[ZC+2*i for i in range(20)]
        a(f'v_max3_u32 v{T0}, v{regs[0]}, v{regs[1]}, v{regs[2]}')
        for k in range(3,19,2): a(f'v_max3_u32 v{T0}, v{T0}, v{regs[k]}, v{regs[k+1]}')
        a(f'v_max_u32 v{T0}, v{T0}, v{regs[19]}')
        a(f'v_cmp_eq_u32 vcc, -1, v{T0}'); a.retry('s_cbranch_vccnz',Lz)
        for i,(j,k) in enumerate(blks):
            a(f's_add_u32 s22, s56, {j*49152}'); a('s_addc_u32 s23, s57, 0')
            a(f'global_store_dwordx4 v{vZC}, {V(ZC+4*i,4)}, s[22:23] offset:{k*256} sc1')
    def z_reset():
        emit(a,slot_base(54,Z_OFF,Z_SLOT,'s30',-1))
        for (j,k) in [(j,k) for j in range(4) for k in range(3) if not (j>=2 and k==2)]:
            a(f's_add_u32 s22, s54, {j*49152}'); a('s_addc_u32 s23, s55, 0')
            a(f'global_store_dwordx4 v{vZC}, {V(SEN2,4)}, s[22:23] offset:{k*256}{ST}')
    def z_flag(add):
        a(f's_add_u32 s46, s30, {add&0xffffffff}'); a('s_lshl_b32 s46, s46, 5'); a('s_add_u32 s46, s46, s16'); a('s_lshl_b32 s46, s46, 2'); a(f's_add_u32 s46, s46, {ZF_OFF}')
        a(f'v_mov_b32 v{T0}, s46'); a(f'v_mov_b32 v{T1}, 1')
        a(f'global_store_dword v{T0}, v{T1}, s[4:5] sc1')
    a('s_mov_b32 s30, 0')
    flags_wait(0); flags_wait(1)
    if prof: a('s_memtime s[80:81]'); a('s_memrealtime s[24:25]'); a('s_waitcnt lgkmcnt(0)')
    stamp_init(a)
    Lstep=a.nl('QKstep'); Llast=a.nl('QKlast')
    a.lab(Lstep)
    Lnkx=a.nl('nkx')
    a('s_sub_u32 s46, s3, 1'); a('s_cmp_gt_u32 s46, 1'); a(f's_cbranch_scc1 {Lnkx}')
    a('s_lshl_b32 s46, s30, 5'); a('s_add_u32 s46, s46, s16'); a('s_lshl_b32 s46, s46, 13'); a(f's_add_u32 s46, s46, {WS_K}'); a('s_add_u32 s48, s4, s46'); a('s_addc_u32 s49, s5, 0')
    for t in range(4): a(f'global_load_dwordx4 {V(KX+4*t,4)}, v{vKX}, s[48:49] offset:{t*2048-4096}{KMOD}')
    a.lab(Lnkx)
    emit(a,g_bases(-1)+slot_base(52,PP_OFF,PP_SLOT,'s30')+[f'v_mov_b32 v{ACC+i}, 0' for i in range(16)]+['s_add_u32 s40, s30, 1','v_mov_b32 v22, s40',f'v_mov_b32 v{EX+1}, s40',f'v_mov_b32 v{EX+3}, s40'])
    stamp(a,11)
    G_phase(a,SELH,DELAY_QK,nw=3,L=36,R=144,D=56,lp=29)
    def mf(tl,t): return f'v_smfmac_f32_16x16x64_bf16 {V(ACC+4*tl,4)}, {V(AF+4*t,4)}, {wr((tl*10+t)*8,8)}, v{vIDX}'
    for t in range(5):
        a(f's_waitcnt lgkmcnt({9-t})')
        for tl in range(4): a(mf(tl,t))
    a('s_waitcnt lgkmcnt(0)')
    for t in range(5,10):
        for tl in (0,1): a(mf(tl,t))
    ep=half_sum_pack(ACC,ACC+4,GLx)+[f'ds_write_b64 v{vFW}, {V(GLx,2)}']
    seq=[mf(tl,t) for t in range(5,10) for tl in (2,3)]
    for i,m in enumerate(seq):
        a(m)
        if i>=3 and ep: a(ep.pop(0))
        if i>=5 and ep: a(ep.pop(0))
    emit(a,ep)
    emit(a,half_sum_pack(ACC+8,ACC+12,GLx+2)); a(f'ds_write_b64 v{vFW}, {V(GLx+2,2)} offset:16')
    a('s_waitcnt lgkmcnt(0)'); stamp(a,2); a('s_barrier'); stamp(a,3)
    a(f's_cmp_eq_u32 s30, {nsteps-1}'); a(f's_cbranch_scc1 {Llast}')
    Lw3=a.nl('w3'); Lb3=a.nl('b3'); Lx=a.nl('xs'); Lsm=a.nl('sm')
    a('s_cmp_eq_u32 s3, 3'); a(f's_cbranch_scc1 {Lw3}')
    for t in range(4):
        a(f'ds_read_b64_tr_b16 {V(FF+4*t,2)}, v{vFR} offset:{t*1024}'); a(f'ds_read_b64_tr_b16 {V(FF+4*t+2,2)}, v{vFR} offset:{t*1024+128}')
    a('s_cmp_lg_u32 s3, 0'); a(f's_cbranch_scc1 {Lx}')
    for t in range(4):
        a(f's_waitcnt lgkmcnt({6-2*t})')
        a(f'v_mfma_f32_16x16x32_bf16 {V(SD,4)}, {V(FF+4*t,4)}, {V(FF+4*t,4)}, {"0" if t==0 else V(SD,4)}')
    a(f's_branch {Lsm} ; @in')
    a.lab(Lx)
    for t in range(4):
        a(f's_waitcnt lgkmcnt({6-2*t})')
        a(f'v_mfma_f32_16x16x32_bf16 {V(SD,4)}, {V(KX+4*t,4)}, {V(FF+4*t,4)}, {"0" if t==0 else V(SD,4)}')
    a.lab(Lsm)
    if EWP_POS=='pre0':
        Lne0=a.nl('ne0'); a('s_cmp_lg_u32 s3, 2'); a(f's_cbranch_scc1 {Lne0} ; @fwd'); a('s_mov_b64 exec, 1'); a(f'global_store_dword v21, v22, s[4:5]{ST}'); a('s_mov_b64 exec, -1'); a(f'{Lne0}: ; @end')
    softmax_part1(a,SD,SE,26,vMW,EX)
    if EWP_POS=='pre':
        Lne1=a.nl('ne1'); a('s_cmp_lg_u32 s3, 2'); a(f's_cbranch_scc1 {Lne1} ; @fwd'); a('s_mov_b64 exec, 1'); a(f'global_store_dword v21, v22, s[4:5]{ST}'); a('s_mov_b64 exec, -1'); a(f'{Lne1}: ; @end')
    stamp(a,4)
    Lsh=a.nl('sh'); Lxw=a.nl('xw')
    a.lab(Lxw)
    for k in range(3): a(f'ds_read_b128 {V(ML+4*k,4)}, v{vMR} offset:{k*256}')
    a('s_waitcnt lgkmcnt(0)')
    a(f'v_min3_u32 v{T0}, v{ML+1}, v{ML+3}, v{ML+5}'); a(f'v_min3_u32 v{T0}, v{T0}, v{ML+7}, v{ML+9}'); a(f'v_min_u32 v{T0}, v{T0}, v{ML+11}')
    a(f'v_cmp_gt_u32 vcc, v22, v{T0}'); a.retry('s_cbranch_vccnz',Lxw)
    stamp(a,5)
    if EWP_POS=='post':
        Lne=a.nl('ne'); a('s_cmp_lg_u32 s3, 2'); a(f's_cbranch_scc1 {Lne} ; @fwd'); a('s_mov_b64 exec, 1'); a(f'global_store_dword v21, v22, s[4:5]{ST}'); a('s_mov_b64 exec, -1'); a(f'{Lne}: ; @end')
    nM,l=T1,T4
    a(f'v_max3_f32 v{T0}, v{ML}, v{ML+4}, v{ML+8}')
    a(f'v_mul_f32 v{nM}, s66, v{T0}')
    for k in range(3): a(f'v_fma_f32 v{ML+4*k}, v{ML+4*k}, s66, -v{nM}')
    a(f'v_fma_f32 v{T2}, v{EX}, s66, -v{nM}')
    for k in range(3): a(f'v_exp_f32 v{ML+4*k}, v{ML+4*k}')
    a(f'v_exp_f32 v{T2}, v{T2}')
    a(f'v_mul_f32 v{l}, v{ML}, v{ML+2}'); a(f'v_fmac_f32 v{l}, v{ML+4}, v{ML+6}'); a(f'v_fmac_f32 v{l}, v{ML+8}, v{ML+10}')
    a(f'v_rcp_f32 v{l}, v{l}')
    a(f'v_mul_f32 v{T2}, v{T2}, v{l}')
    a(f'v_pk_mul_f32 {V(SE,2)}, {V(SE,2)}, {V(T2,2)} op_sel_hi:[1,0]'); a(f'v_pk_mul_f32 {V(SE+2,2)}, {V(SE+2,2)}, {V(T2,2)} op_sel_hi:[1,0]')
    a(f'v_cvt_pk_bf16_f32 v{T0}, v{SE}, v{SE+1}'); a(f'v_cvt_pk_bf16_f32 v{T1}, v{SE+2}, v{SE+3}')
    a(f'v_min_u32 v{T0}, s70, v{T0}')
    a('s_mov_b64 exec, s[78:79]')
    a(f'global_store_dwordx2 v{vPS}, {V(T0,2)}, s[52:53]{ST}')
    a('s_mov_b64 exec, -1')
    if STAMPS=='ev':
        stamp(a,7); a('s_waitcnt vmcnt(0)'); stamp(a,8)
    a(f's_branch {Lsh}')
    a.lab(Lw3)
    for _ in range(W3_DELAY): a('s_sleep 1')
    km_store()
    emit(a,slot_base(58,PP_OFF,PP_SLOT,'s30',-1))
    a(f'global_store_dwordx4 v{vR}, {V(SEN,4)}, s[58:59]{ST}')
    a(f'global_store_dwordx4 v{vR+1}, {V(SEN,4)}, s[58:59]{ST}')
    if 'noZC' not in EXP: z_copy()
    z_reset()
    flags_wait(2)
    km_flag(0); z_flag(0)
    if 'noPF' not in EXP: prefetch_U(None,2,PF_PACE)
    a.lab(Lsh)
    stamp(a,6)
    stamp(a,10)
    a('s_add_u32 s30, s30, 1')
    a(f's_branch {Lstep}')
    a.lab(Llast)
    Ld=a.nl('d'); Ld2=a.nl('d2'); a('s_cmp_lg_u32 s3, 3'); a(f's_cbranch_scc1 {Ld}')
    km_store(); a('s_waitcnt vmcnt(0)'); km_flag(0)
    z_copy(); a('s_waitcnt vmcnt(0)'); z_flag(0)
    a.lab(Ld)
    if prof: prof(a)
    stamp_dump(a,None,FL_END)
    a('s_waitcnt vmcnt(0)')
    a('s_endpgm')

def vo_weight_load(a, vtmp, perm_e=False):
    a('s_load_dwordx2 s[8:9], s[0:1], %d'%KA['Wv']); a('s_load_dwordx2 s[10:11], s[0:1], %d'%KA['Wo'])
    a('s_waitcnt lgkmcnt(0)')
    a('s_lshl_b32 s40, s3, 18'); a('s_lshl_b32 s41, s16, 8'); a('s_add_u32 s40, s40, s41')
    a('s_add_u32 s8, s8, s40'); a('s_addc_u32 s9, s9, 0')
    a('s_mul_i32 s40, s16, 163840'); a('s_mul_i32 s41, s3, 40960'); a('s_add_u32 s40, s40, s41')
    a('s_add_u32 s10, s10, s40'); a('s_addc_u32 s11, s11, 0')
    def srcs(r):
        if r<5:
            a(f's_add_u32 s40, s8, {r*128*8192}'); a('s_addc_u32 s41, s9, 0'); a('s_mov_b32 s43, 32768')
            a(f'v_lshrrev_b32 v{T4}, 4, v1'); a(f'v_lshlrev_b32 v{T4}, 13, v{T4}')
        else:
            a(f's_add_u32 s40, s10, {(r-5)*256}'); a('s_addc_u32 s41, s11, 0'); a('s_mov_b32 s43, 5120')
            a(f'v_lshrrev_b32 v{T4}, 4, v1'); a(f'v_mul_u32_u24 v{T4}, 1280, v{T4}')
        a(f'v_and_b32 v{T5}, 15, v1'); a(f'v_lshl_add_u32 v{T4}, v{T5}, 4, v{T4}')
    tr_addr16(a,vtmp)
    def trs(r,bufoff):
        if r<5: bl=[(m,tp,(tp*10+2*r+m)*8) for m in range(2) for tp in range(2)]
        else:
            cb=r-5; bl=[(m,tp,160+((2*cb+tp)*2+m)*8) for m in range(2) for tp in range(2)]
        tr_B16(a,vtmp,bufoff,bl)
    load_weights(a,srcs,trs)

LDS_U0=40960; LDS_U1=40960+49152
UMOD=' sc1'; U_POS_V=(); U_POS_Z=(0,1,2,3); U_INLINE=True; U_SPLIT=0; U_PACE=0
def gen_VO(a, safe=False, nsteps=NSTEP, prof=None):
    ST=' sc1' if safe else ''
    vTW=10; vTR=11; vPFL=12; vZS=13; vZS2=14; SELH=186
    vL16=15; vPM=16; vZ=17; vZ2=18; vUR=19; vUR1=20; vPX=21; vRW=22; vRR=23; vP=24; vPRm=25; vR=26; vUF=28
    vGF=30-30+190
    LDS_T=LDS_F
    A2=36; ZA=108; ZP=46; ACCV=96
    UF=124; ZF=80; PXF=72; PMF=176; RA=96; SEN=180; GLx=36
    n,g,x,y=T0,T1,T2,T3
    a.c('================ VO role ================')
    masks(a)
    vo_weight_load(a,vTW)
    if SYNC: SYNC(a)
    common_consts(a,SELH,4); lp_const(a,29)
    a('s_mul_i32 s18, s15, 10240'); a('s_sub_u32 s19, 1, s15'); a('s_mul_i32 s19, s19, 10240'); a('s_add_u32 s19, s19, 20480')
    a(f'v_and_b32 v{n}, 15, v1'); a(f'v_lshrrev_b32 v{g}, 4, v1')
    a('s_lshr_b32 s40, s3, 1'); a('s_lshl_b32 s40, s40, 5'); a('s_and_b32 s41, s3, 1'); a('s_lshl_b32 s41, s41, 4'); a('s_add_u32 s40, s40, s41')
    a(f'v_lshrrev_b32 v{x}, 5, v1'); a(f'v_lshlrev_b32 v{x}, 3, v{x}'); a(f'v_add_u32 v{x}, s40, v{x}')
    a(f'v_lshrrev_b32 v{y}, 2, v{n}'); a(f'v_lshl_add_u32 v{x}, v{y}, 1, v{x}'); a(f'v_and_b32 v{y}, 1, v{n}'); a(f'v_add_u32 v{x}, v{x}, v{y}')
    a(f'v_lshlrev_b32 v{x}, 5, v{x}'); a(f'v_bfe_u32 v{y}, v{n}, 1, 1'); a(f'v_lshl_add_u32 v{x}, v{y}, 4, v{x}')
    a(f'v_and_b32 v{y}, 1, v{g}'); a(f'v_lshl_add_u32 v{x}, v{y}, 3, v{x}'); a(f'v_add_u32 v{vTW}, {LDS_T}, v{x}')
    a(f'v_bfe_u32 v{x}, v1, 2, 2'); a(f'v_lshl_add_u32 v{x}, v{g}, 3, v{x}'); a(f'v_lshlrev_b32 v{x}, 5, v{x}')
    a(f'v_and_b32 v{y}, 3, v1'); a(f'v_lshl_add_u32 v{x}, v{y}, 3, v{x}'); a(f'v_add_u32 v{vTR}, {LDS_T}, v{x}')
    a(f'v_lshrrev_b32 v{x}, 5, v1'); a('s_lshl_b32 s40, s3, 1'); a(f'v_add_u32 v{x}, s40, v{x}'); a(f'v_mul_u32_u24 v{x}, 12288, v{x}')
    a('s_mul_i32 s40, s15, 196608'); a('s_mul_i32 s41, s14, 768'); a('s_add_u32 s40, s40, s41'); a(f'v_add_u32 v{x}, s40, v{x}')
    a(f'v_lshl_add_u32 v{x}, v{n}, 4, v{x}'); a(f'v_and_b32 v{y}, 1, v{g}'); a(f'v_lshl_add_u32 v{vZS}, v{y}, 3, v{x}'); a(f'v_add_u32 v{vZS2}, 98304, v{vZS}')
    a(f'v_and_b32 v{x}, 15, v1'); a(f'v_lshlrev_b32 v{x}, 2, v{x}'); a('s_lshl_b32 s40, s15, 8'); a(f's_add_u32 s40, s40, {PF_OFF}'); a(f'v_add_u32 v{vPFL}, s40, v{x}')
    a(f'v_lshlrev_b32 v{vL16}, 4, v1')
    a(f'v_lshrrev_b32 v{x}, 5, v1'); a(f'v_lshlrev_b32 v{x}, 8, v{x}'); a(f'v_and_b32 v{y}, 31, v1'); a(f'v_lshl_add_u32 v{x}, v{y}, 3, v{x}')
    a('s_lshl_b32 s40, s15, 13'); a('s_lshl_b32 s41, s3, 11'); a('s_add_u32 s40, s40, s41'); a(f'v_add_u32 v{vPX}, s40, v{x}')
    a('s_lshl_b32 s40, s15, 11'); a('s_lshl_b32 s41, s3, 9'); a('s_add_u32 s40, s40, s41'); a(f's_add_u32 s40, s40, {PM_REL}')
    a(f'v_lshlrev_b32 v{x}, 7, v{g}'); a(f'v_lshl_add_u32 v{x}, v{n}, 4, v{x}'); a(f'v_add_u32 v{vPM}, s40, v{x}')
    a('s_mul_i32 s40, s15, 196608'); a('s_mul_i32 s41, s14, 12288'); a('s_add_u32 s40, s40, s41'); a('s_mul_i32 s41, s3, 3072'); a('s_add_u32 s40, s40, s41')
    a(f'v_mul_u32_u24 v{x}, 768, v{g}'); a(f'v_lshl_add_u32 v{x}, v{n}, 4, v{x}'); a(f'v_add_u32 v{vZ}, s40, v{x}')
    a('s_movk_i32 s41, 256'); a('s_cmp_lt_u32 s14, 8'); a('s_cselect_b32 s40, 512, s41'); a(f'v_add_u32 v{vZ2}, s40, v{vZ}')
    a('s_mul_i32 s41, s3, 12288'); a(f's_add_u32 s41, s41, {LDS_U0}'); a(f'v_add_u32 v{vUR}, s41, v{vL16}'); a(f'v_add_u32 v{vUR1}, 49152, v{vUR}')
    a('s_mul_i32 s40, s3, 1536'); a(f's_add_u32 s40, s40, {LDS_R}'); a(f'v_add_u32 v{vRW}, s40, v{vL16}')
    a('s_cmp_lt_u32 s14, 8'); a('s_cselect_b32 s40, 3, 2'); a('s_mov_b32 s77, s40')
    a(f'v_cmp_gt_u32 vcc, s40, v{g}'); a(f'v_cndmask_b32 v{y}, 0, v{g}, vcc')
    a(f'v_lshlrev_b32 v{y}, 4, v{y}'); a(f'v_add_u32 v{y}, s14, v{y}'); a(f'v_lshlrev_b32 v{y}, 4, v{y}'); a(f'v_add_u32 v{y}, v{y}, v{n}'); a(f'v_lshlrev_b32 v{y}, 4, v{y}')
    a(f'v_add_u32 v{vR}, s18, v{y}'); a(f'v_add_u32 v{vR+1}, 20480, v{vR}')
    a('s_lshl_b32 s40, s15, 7'); a('s_lshl_b32 s41, s14, 2'); a('s_add_u32 s40, s40, s41'); a(f's_add_u32 s40, s40, {GF_OFF}'); a(f'v_mov_b32 v{vGF}, s40')
    a(f'v_and_b32 v{x}, 15, v1'); a(f'v_lshlrev_b32 v{x}, 2, v{x}'); a('s_lshl_b32 s40, s15, 6'); a(f's_add_u32 s40, s40, {UF_OFF}'); a(f'v_add_u32 v{vUF}, s40, v{x}')
    a(f'v_lshrrev_b32 v{n}, 5, v0'); a(f'v_bfe_u32 v{g}, v0, 1, 4'); a(f'v_and_b32 v{x}, 1, v0')
    a(f'v_lshlrev_b32 v{y}, 5, v{n}'); a(f'v_lshl_add_u32 v{y}, v{x}, 4, v{y}'); a(f'v_add_u32 v{y}, v{y}, v{g}'); a(f'v_lshlrev_b32 v{y}, 4, v{y}'); a(f'v_add_u32 v{vRR}, {LDS_R}, v{y}')
    a(f'v_lshlrev_b32 v{y}, 4, v{n}'); a(f'v_add_u32 v{y}, s14, v{y}'); a(f'v_lshlrev_b32 v{y}, 4, v{y}'); a(f'v_add_u32 v{y}, v{y}, v{g}'); a(f'v_lshlrev_b32 v{y}, 4, v{y}')
    a(f'v_lshl_add_u32 v{y}, v{x}, 3, v{y}'); a(f'v_add_u32 v{vP}, s18, v{y}'); a(f'v_add_u32 v{vPRm}, 20480, v{vP}')
    for i in range(4): a(f'v_mov_b32 v{PMF+i}, 0')
    for i in range(4): a(f'v_mov_b32 v{SEN+i}, -1')
    a('s_cmp_eq_u32 s3, 0'); a('s_cselect_b32 s74, -1, 0'); a('s_cselect_b32 s75, -1, 0')
    a('s_cmp_eq_u32 s3, 1'); a('s_cselect_b32 s40, 1, 0'); a('s_cmp_lt_u32 s14, 8'); a('s_cselect_b32 s41, 1, 0'); a('s_and_b32 s40, s40, s41')
    a('s_cmp_eq_u32 s40, 1'); a('s_cselect_b32 s74, -1, s74')
    a('s_or_b32 s76, s74, s75')
    a('s_mul_i32 s33, s15, 786432'); a('s_mul_i32 s40, s14, 49152'); a('s_add_u32 s33, s33, s40'); a('s_mul_i32 s40, s3, 12288'); a('s_add_u32 s33, s33, s40'); a(f's_add_u32 s71, s40, {LDS_U0}')
    a('s_load_dwordx2 s[8:9], s[0:1], %d'%KA['mem0'])
    a(f's_add_u32 s34, s4, {P_OFF+3*P_SLOT}'); a('s_addc_u32 s35, s5, 0')
    a('s_waitcnt lgkmcnt(0)')
    Lskip=a.nl('Pinit'); Lz=a.nl('Pz')
    a('s_cmp_eq_u32 s76, 0'); a(f's_cbranch_scc1 {Lskip}')
    a('s_mov_b64 exec, s[74:75]')
    a(f'v_subrev_u32 v{T0}, s18, v{vP}'); a(f'v_lshrrev_b32 v{T0}, 4, v{T0}'); a(f'v_lshlrev_b32 v{T0}, 1, v{T0}')
    a(f'v_and_b32 v{T1}, 1, v0'); a(f'v_mul_u32_u24 v{T1}, 5120, v{T1}'); a(f'v_add_u32 v{T0}, v{T0}, v{T1}')
    a(f'v_mov_b32 v{T2}, 0'); a(f'v_mov_b32 v{T3}, 0')
    a('s_cmp_lg_u32 s15, 0'); a(f's_cbranch_scc1 {Lz}')
    a(f'global_load_ushort v{T2}, v{T0}, s[8:9]'); a(f'global_load_ushort v{T4}, v{T0}, s[8:9] offset:1280')
    a(f'global_load_ushort v{T3}, v{T0}, s[8:9] offset:2560'); a(f'global_load_ushort v{T5}, v{T0}, s[8:9] offset:3840')
    a('s_waitcnt vmcnt(0)')
    a(f'v_lshl_or_b32 v{T2}, v{T4}, 16, v{T2}'); a(f'v_lshl_or_b32 v{T3}, v{T5}, 16, v{T3}')
    a(f'v_min_u32 v{T2}, s70, v{T2}')
    a.lab(Lz)
    a(f'global_store_dwordx2 v{vP}, {V(T2,2)}, s[34:35]{ST}')
    a(f'global_store_dwordx2 v{vPRm}, {V(T2,2)}, s[34:35] sc1')
    a(f'v_mov_b32 v{T4}, 1'); a(f'global_store_dword v{vGF}, v{T4}, s[4:5]{ST}')
    a('s_mov_b64 exec, -1')
    a.lab(Lskip)
    def uflag(add):
        a(f's_add_u32 s45, s30, {add}'); a('s_min_u32 s45, s45, 63'); a('s_lshl_b32 s46, s45, 7'); a(f'v_add_u32 v{T0}, s46, v{vUF}')
        Lw=a.nl('uf'); a.lab(Lw)
        a(f'global_load_dword v{T1}, v{T0}, s[4:5] sc1'); a('s_waitcnt vmcnt(0)'); a(f'v_cmp_eq_u32 vcc, 0, v{T1}'); a.retry('s_cbranch_vccnz',Lw)
    def pre(add):
        return [f's_add_u32 s45, s30, {add}','s_min_u32 s45, s45, 63',f's_mul_i32 s44, s45, {U_SEG}','s_add_u32 s44, s44, s33','s_add_u32 s28, s4, s44','s_addc_u32 s29, s5, 0',f's_add_u32 s28, s28, {WS_U}','s_addc_u32 s29, s29, 0',
                's_and_b32 s46, s45, 1','s_mul_i32 s46, s46, 49152','s_add_u32 s32, s46, s71']
    def dma_group():
        if 'noU' in EXP: return []
        L=['s_mov_b32 m0, s32',f'global_load_lds_dwordx4 v{vL16}, s[28:29]{UMOD}',f'global_load_lds_dwordx4 v{vL16}, s[28:29] offset:1024{UMOD}']
        Ln=a.nl('dg')
        L+=['s_cmp_lt_u32 s77, 3',f's_cbranch_scc1 {Ln} ; @fwd',f'global_load_lds_dwordx4 v{vL16}, s[28:29] offset:2048{UMOD}',f'{Ln}: ; @end','s_add_u32 s28, s28, 3072','s_addc_u32 s29, s29, 0','s_add_u32 s32, s32, 3072']
        return L
    a('s_mov_b32 s30, 0')
    uflag(0); emit(a,pre(0))
    for _ in range(4): emit(a,dma_group())
    uflag(1)
    stamp_init(a)
    Lstep=a.nl('VOstep'); Llast=a.nl('VOlast')
    a.lab(Lstep)
    emit(a,g_bases(-1)+[f'v_mov_b32 v{ZA+i}, 0' for i in range(16)]+[f'v_mov_b32 v{ACCV+i}, 0' for i in range(8)])
    stamp(a,11)
    G_phase(a,SELH,DELAY_VO,nw=4,L=36,R=80,D=56,lp=29,gate=VO_GATE,d2o=VO_D2)
    vm=[]
    for t in range(10):
        vm.append(f's_waitcnt lgkmcnt({9-t})')
        for tl in (0,1): vm.append(f'v_smfmac_f32_16x16x64_bf16 {V(ACCV+4*tl,4)}, {V(AF+4*t,4)}, {wr((tl*10+t)*8,8)}, v{vIDX}')
    fill=slot_base(54,Z_OFF,Z_SLOT,'s30')
    fill+=slot_base(52,PP_OFF,PP_SLOT,'s30')+slot_base(34,P_OFF,P_SLOT,'s30')+slot_base(26,P_OFF,P_SLOT,'s30',-2)+['s_add_u32 s40, s30, 2',f'v_mov_b32 v{vGF+1}, s40']
    emit(a,pre(1))
    f=list(fill); nm=0
    for m in vm:
        a(m)
        if m.startswith('v_smfmac'):
            nm+=1
            for _ in range(3):
                if f: a(f.pop(0))
            if nm in U_POS_V: emit(a,dma_group())
    emit(a,f)
    emit(a,half_sum_pack(ACCV,ACCV+4,44))
    a(f'ds_write_b64 v{vTW}, {V(44,2)}')
    a('s_waitcnt lgkmcnt(0)'); stamp(a,2); a('s_barrier'); stamp(a,3)
    for t2 in range(2):
        a(f'ds_read_b64_tr_b16 {V(A2+4*t2,2)}, v{vTR} offset:{t2*1024}'); a(f'ds_read_b64_tr_b16 {V(A2+4*t2+2,2)}, v{vTR} offset:{t2*1024+128}')
    a('s_waitcnt lgkmcnt(0)')
    def zfin(cb):
        z0=ZA+8*(cb%2)
        L=half_sum_pack(z0,z0+4,ZP+2*cb)
        L+=[f'v_min_u32 v{ZP+2*cb}, s70, v{ZP+2*cb}']
        L+=[f'global_store_dwordx2 v{vZS2 if cb%2 else vZS}, {V(ZP+2*cb,2)}, s[54:55] offset:{256*(cb//2)}{ST}']
        if cb+2<5: L+=[f'v_mov_b32 v{z0+i}, 0' for i in range(8)]
        return L
    pend=[]
    for cb in range(5):
        z0=ZA+8*(cb%2)
        for t2 in range(2):
            for dl in range(2):
                u=2*cb+dl
                a(f'v_smfmac_f32_16x16x64_bf16 {V(z0+4*dl,4)}, {V(A2+4*t2,4)}, {wr(160+(u*2+t2)*8,8)}, v{vIDX}')
        emit(a,pend); pend=zfin(cb)
        if cb in U_POS_Z: emit(a,dma_group())
    emit(a,pend)
    stamp(a,4)
    a(f's_cmp_eq_u32 s30, {nsteps-1}'); a(f's_cbranch_scc1 {Llast}')
    Lb1=a.nl('ub1'); Lb2=a.nl('ub2')
    a('s_bitcmp1_b32 s30, 0'); a(f's_cbranch_scc1 {Lb1}')
    for j in range(4):
        for k in range(3): a(f'ds_read_b128 {V(UF+(k*4+j)*4,4)}, v{vUR} offset:{j*3072+k*1024}')
    a(f's_branch {Lb2}')
    a.lab(Lb1)
    for j in range(4):
        for k in range(3): a(f'ds_read_b128 {V(UF+(k*4+j)*4,4)}, v{vUR1} offset:{j*3072+k*1024}')
    a.lab(Lb2)
    stamp(a,6)
    flag_gate(a,vPFL,LDS_GO+4,True)
    stamp(a,5)
    zl=[f'global_load_dwordx4 {V(ZF,4)}, v{vZ}, s[54:55] sc1', f'global_load_dwordx4 {V(ZF+4,4)}, v{vZ}, s[54:55] offset:256 sc1', f'global_load_dwordx4 {V(ZF+8,4)}, v{vZ2}, s[54:55] sc1']
    Lp=a.nl('Sp'); a.lab(Lp)
    for q in range(2):
        a(f'global_load_dwordx2 {V(PXF+4*q,2)}, v{vPX}, s[52:53] offset:{q*1024} sc1'); a(f'global_load_dwordx2 {V(PXF+4*q+2,2)}, v{vPX}, s[52:53] offset:{q*1024+512} sc1')
    a('s_mov_b64 exec, s[60:61]')
    a(f'global_load_dwordx4 {V(PMF,4)}, v{vPM}, s[52:53] sc1')
    a('s_mov_b64 exec, -1')
    emit(a,zl)
    a('s_waitcnt vmcnt(3) lgkmcnt(0)')
    stamp(a,8)
    a(f'v_max3_u32 v{T0}, v{PXF}, v{PXF+2}, v{PXF+4}'); a(f'v_max3_u32 v{T0}, v{T0}, v{PXF+6}, v{PMF}'); a(f'v_max_u32 v{T0}, v{T0}, v{PMF+2}')
    a(f'v_cmp_eq_u32 vcc, -1, v{T0}'); a.retry('s_cbranch_vccnz',Lp)
    for k in range(3):
        for i in range(4): pass
    for i in range(12): a(f'v_mov_b32 v{RA+i}, 0')
    for q in range(2):
        for k in range(3): a(f'v_smfmac_f32_16x16x64_bf16 {V(RA+4*k,4)}, {V(PXF+4*q,4)}, {V(UF+(k*4+2*q)*4,8)}, v{vIDX}')
    a('s_waitcnt vmcnt(0)')
    Lzp=a.nl('Zp'); Lzo=a.nl('Zo')
    a.lab(Lzp)
    a(f'v_max3_u32 v{T0}, v{ZF}, v{ZF+2}, v{ZF+4}'); a(f'v_max3_u32 v{T0}, v{T0}, v{ZF+6}, v{ZF+8}'); a(f'v_max_u32 v{T0}, v{T0}, v{ZF+10}')
    a(f'v_cmp_eq_u32 vcc, -1, v{T0}'); a(f's_cbranch_vccz {Lzo}')
    emit(a,zl); a('s_waitcnt vmcnt(0)'); a('s_add_u32 s100, s100, 1'); a('s_cmp_lt_u32 s100, 0x1000000'); a(f's_cbranch_scc1 {Lzp}'); a('s_endpgm')
    a.lab(Lzo)
    for k in range(3): a(f'v_mfma_f32_16x16x32_bf16 {V(RA+4*k,4)}, {V(PMF,4)}, {V(ZF+4*k,4)}, {V(RA+4*k,4)}')
    stamp(a,7)
    emit(a,half_sum_pack(RA,RA+4,None))
    a(f'ds_write_b128 v{vRW}, {V(RA,4)}')
    for i in range(4): a(f'v_mov_b32 v{RA+4+i}, v{RA+8+i}')
    emit(a,half_sum_pack(RA+8,RA+4,None))
    a('s_mov_b64 exec, s[64:65]'); a(f'ds_write_b128 v{vRW}, {V(RA+8,4)} offset:1024'); a('s_mov_b64 exec, -1')
    Lew=a.nl('ew'); a('s_cmp_lg_u32 s3, 2'); a(f's_cbranch_scc1 {Lew} ; @fwd'); a('s_mov_b64 exec, 1'); a(f'global_store_dword v{vGF}, v{vGF+1}, s[4:5]{ST}'); a('s_mov_b64 exec, -1'); a(f'{Lew}: ; @end')
    a('s_waitcnt lgkmcnt(0)'); stamp(a,9); a('s_barrier')
    Lnf2=a.nl('nfin'); Lnx=a.nl('nx')
    a('s_cmp_eq_u32 s76, 0'); a(f's_cbranch_scc1 {Lnf2}')
    a('s_mov_b64 exec, s[74:75]')
    for w in range(4): a(f'ds_read_b128 {V(GLx+4*w,4)}, v{vRR} offset:{w*1536}')
    a('s_waitcnt lgkmcnt(2)')
    a(f'v_pk_add_f32 {V(GLx,2)}, {V(GLx,2)}, {V(GLx+4,2)}'); a(f'v_pk_add_f32 {V(GLx+2,2)}, {V(GLx+2,2)}, {V(GLx+6,2)}')
    a('s_waitcnt lgkmcnt(0)')
    a(f'v_pk_add_f32 {V(GLx+8,2)}, {V(GLx+8,2)}, {V(GLx+12,2)}'); a(f'v_pk_add_f32 {V(GLx+10,2)}, {V(GLx+10,2)}, {V(GLx+14,2)}')
    a(f'v_pk_add_f32 {V(GLx,2)}, {V(GLx,2)}, {V(GLx+8,2)}'); a(f'v_pk_add_f32 {V(GLx+2,2)}, {V(GLx+2,2)}, {V(GLx+10,2)}')
    a(f'v_cvt_pk_bf16_f32 v{T0}, v{GLx}, v{GLx+1}'); a(f'v_cvt_pk_bf16_f32 v{T1}, v{GLx+2}, v{GLx+3}')
    a(f'v_min_u32 v{T0}, s70, v{T0}')
    a(f'global_store_dwordx2 v{vP}, {V(T0,2)}, s[34:35]{ST}')
    a(f'global_store_dwordx2 v{vPRm}, {V(T0,2)}, s[34:35] sc1')
    a('s_mov_b64 exec, -1')
    a(f's_branch {Lnx}')
    a.lab(Lnf2)
    Lw3=a.nl('w3'); a('s_cmp_lg_u32 s3, 3'); a(f's_cbranch_scc1 {Lnx}')
    a(f'global_store_dwordx4 v{vR+1}, {V(SEN,4)}, s[26:27] sc1'); a(f'global_store_dwordx4 v{vR}, {V(SEN,4)}, s[26:27]{ST}')
    uflag(2)
    a.lab(Lnx)
    stamp(a,10)
    a('s_add_u32 s30, s30, 1')
    a(f's_branch {Lstep}')
    a.lab(Llast)
    stamp_dump(a,None,FL_END+1024)
    a('s_waitcnt vmcnt(0)')
    a('s_endpgm')
```

```python
from asmgen import *
from layout import *
from chain import wr,V,load_weights,STG_BLK,STG_BUF,T0,T1,T2,T3,T4,T5,emit,poll_flag,masks,vo_weight_load,SCALE,L2E,interleave
PROF=False
SYNC=None
END=None
PRE=None
def prof_mark(a,r):
    if PROF: a(f's_memtime s[{r}:{r+1}]'); a(f's_memrealtime s[{r+8}:{r+9}]'); a('s_waitcnt lgkmcnt(0)')
def prof_dump(a):
    if not PROF: return
    L=a.nl('pd')
    prof_mark(a,84)
    a('s_cmp_lg_u32 s22, 0'); a(f's_cbranch_scc1 {L}'); a('s_cmp_lg_u32 s3, 0'); a(f's_cbranch_scc1 {L}')
    a('s_sub_u32 s86, s82, s80'); a('s_sub_u32 s87, s84, s82'); a('s_sub_u32 s94, s92, s88')
    a('v_mov_b32 v30, 64'); a('v_mov_b32 v31, s86'); a('global_store_dword v30, v31, s[6:7]'); a('v_mov_b32 v32, s87'); a('global_store_dword v30, v32, s[6:7] offset:4'); a('v_mov_b32 v33, s94'); a('global_store_dword v30, v33, s[6:7] offset:8')
    a.lab(L)
XB_SZ=40960

def x_dma_consts(a, vXD):
    a(f'v_lshrrev_b32 v{T0}, 3, v1'); a('s_lshl_b32 s40, s3, 3'); a(f'v_add_u32 v{T0}, s40, v{T0}')
    a(f'v_bfe_u32 v{T1}, v{T0}, 1, 3'); a(f'v_and_b32 v{T2}, 7, v1'); a(f'v_xor_b32 v{T1}, v{T1}, v{T2}')
    a(f'v_mul_u32_u24 v{T0}, 1280, v{T0}'); a(f'v_lshl_add_u32 v{vXD}, v{T1}, 4, v{T0}')
def x_dma(a, vXD, sbase, ldsbuf_s, g):
    return [f's_add_u32 m0, {ldsbuf_s}, {g*4096-g*128}', f'global_load_lds_dwordx4 v{vXD}, s[{sbase}:{sbase+1}] offset:{g*128}']

def gen_E1(a):
    vXD=2; vXR=4
    vOUT=8; vTR=9
    ACC=36
    BF=100
    PK=116
    LX0=0; LX1=XB_SZ
    a.c('================ E1 role ================')
    if PRE: PRE(a)
    a('s_load_dwordx2 s[8:9], s[0:1], %d'%KA['Wq']); a('s_load_dwordx2 s[10:11], s[0:1], %d'%KA['Wk']); a('s_load_dwordx2 s[18:19], s[0:1], %d'%KA['x'])
    a('s_waitcnt lgkmcnt(0)')
    a('s_cmp_lt_u32 s14, 16'); a('s_cselect_b32 s12, s8, s10'); a('s_cselect_b32 s13, s9, s11')
    a('s_and_b32 s40, s14, 15'); a('s_lshl_b32 s40, s40, 9')
    a('s_lshr_b32 s41, s3, 1'); a('s_lshl_b32 s41, s41, 8'); a('s_add_u32 s40, s40, s41')
    a('s_and_b32 s41, s3, 1'); a('s_lshl_b32 s41, s41, 18'); a('s_add_u32 s40, s40, s41')
    a('s_add_u32 s12, s12, s40'); a('s_addc_u32 s13, s13, 0')
    a(f'v_lshrrev_b32 v{T4}, 4, v1'); a(f'v_lshlrev_b32 v{T4}, 13, v{T4}'); a(f'v_and_b32 v{T5}, 15, v1'); a(f'v_lshl_add_u32 v{T4}, v{T5}, 4, v{T4}')
    a('s_mov_b32 s43, 32768')
    def srcs(r):
        a(f's_add_u32 s40, s12, {r*64*8192}'); a('s_addc_u32 s41, s13, 0')
    a(f'v_lshrrev_b32 v{T0}, 5, v1'); a(f'v_lshlrev_b32 v{T0}, 1, v{T0}'); a('s_lshr_b32 s40, s3, 1'); a('s_lshl_b32 s40, s40, 4'); a(f'v_add_u32 v{T0}, s40, v{T0}')
    a(f'v_mul_u32_u24 v{vTR}, {STG_BLK}, v{T0}')
    a(f'v_bfe_u32 v{T0}, v1, 2, 2'); a(f'v_lshl_add_u32 v{vTR}, v{T0}, 8, v{vTR}')
    a(f'v_bfe_u32 v{T0}, v1, 4, 1'); a(f'v_lshl_add_u32 v{vTR}, v{T0}, 5, v{vTR}')
    a(f'v_and_b32 v{T0}, 3, v1'); a(f'v_lshl_add_u32 v{vTR}, v{T0}, 3, v{vTR}')
    a('s_and_b32 s40, s3, 1'); a('s_lshl_b32 s40, s40, 7'); a(f'v_add_u32 v{vTR}, s40, v{vTR}')
    def trs(r,bufoff):
        a(f'v_add_u32 v{T3}, {bufoff}, v{vTR}')
        for ct in range(2):
            for kk in range(4):
                for half in range(2):
                    idx=(ct*40+4*r+kk)*4+2*half
                    a(f'ds_read_b64_tr_b16 {wr(idx,2)}, v{T3} offset:{(4*kk+half)*STG_BLK+ct*64}')
    load_weights(a,srcs,trs)
    prof_mark(a,82)
    if SYNC: SYNC(a)
    x_dma_consts(a,vXD)
    a(f'v_and_b32 v{T0}, 31, v1'); a(f'v_lshrrev_b32 v{T1}, 5, v1'); a(f'v_bfe_u32 v{T2}, v{T0}, 1, 3')
    for q in range(4):
        a(f'v_add_u32 v{T3}, {2*q}, v{T1}'); a(f'v_xor_b32 v{T3}, v{T3}, v{T2}'); a(f'v_lshlrev_b32 v{T3}, 4, v{T3}'); a(f'v_lshl_add_u32 v{vXR+q}, v{T0}, 7, v{T3}'); a(f'v_add_u32 v{vXR+8+q}, {XB_SZ}, v{vXR+q}')
    a('s_lshr_b32 s40, s3, 1'); a('s_lshl_b32 s40, s40, 13'); a('s_and_b32 s41, s3, 1'); a('s_lshl_b32 s41, s41, 12'); a('s_add_u32 s40, s40, s41')
    a(f'v_lshlrev_b32 v{T3}, 9, v{T1}'); a(f'v_lshl_add_u32 v{T3}, v{T0}, 4, v{T3}'); a(f'v_add_u32 v{vOUT}, s40, v{T3}')
    a('s_cmp_lt_u32 s14, 16'); a(f's_mov_b32 s41, {WS_K}'); a(f's_cselect_b32 s20, {WS_Q}, s41'); a('s_and_b32 s40, s14, 15'); a('s_lshl_b32 s40, s40, 14'); a('s_add_u32 s20, s20, s40')
    a('s_lshl_b32 s21, s3, 10')
    def issue_x(segreg, buf):
        L=[f's_mul_i32 s44, {segreg}, 40960','s_add_u32 s46, s18, s44','s_addc_u32 s47, s19, 0', f's_add_u32 s45, s21, {buf}']
        for g in range(10): L+=x_dma(a,vXD,46,'s45',g)
        return L
    def epilogue(acc):
        L=[]
        for ct in range(2):
            for b in range(4):
                L.append(f'v_cvt_pk_bf16_f32 v{PK+8*ct+2*b}, v{acc+16*ct+4*b}, v{acc+16*ct+4*b+1}')
                L.append(f'v_cvt_pk_bf16_f32 v{PK+8*ct+2*b+1}, v{acc+16*ct+4*b+2}, v{acc+16*ct+4*b+3}')
            for b in (0,2):
                L.append(f'v_permlane32_swap_b32 v{PK+8*ct+2*b}, v{PK+8*ct+2*b+2}')
                L.append(f'v_permlane32_swap_b32 v{PK+8*ct+2*b+1}, v{PK+8*ct+2*b+3}')
            for b in (0,2):
                L.append(f'global_store_dwordx4 v{vOUT}, {V(PK+8*ct+2*b,4)}, s[48:49] offset:{(4*ct+b)*512} sc1')
        return L
    def out_base(segreg):
        return [f's_lshl_b32 s44, {segreg}, 18','s_add_u32 s44, s44, s20','s_add_u32 s48, s4, s44','s_addc_u32 s49, s5, 0']
    def flag(segreg):
        L=a.nl('ef')
        a('s_cmp_lg_u32 s3, 0'); a(f's_cbranch_scc1 {L}')
        a(f's_lshl_b32 s44, {segreg}, 8'); a('s_lshl_b32 s45, s14, 2'); a('s_add_u32 s44, s44, s45'); a(f's_add_u32 s44, s44, {QKF_OFF}')
        a(f'v_mov_b32 v{T0}, s44'); a(f'v_mov_b32 v{T1}, 1'); a(f'global_store_dword v{T0}, v{T1}, s[4:5] sc1')
        a.lab(L)
    def seg_compute(acc, buf, fillers):
        mains=[]
        PD=3
        def rd(k): return f'ds_read_b128 {V(BF+4*(k%4),4)}, v{vXR+(8 if buf else 0)+(k%4)} offset:{(k//4)*4096}'
        for k in range(PD): a(rd(k))
        f=list(fillers)
        for k in range(40):
            if k+PD<40: a(rd(k+PD))
            a(f's_waitcnt lgkmcnt({min(PD,39-k)})')
            for ct in range(2):
                a(f'v_mfma_f32_32x32x16_bf16 {V(acc+16*ct,16)}, {wr((ct*40+k)*4,4)}, {V(BF+4*(k%4),4)}, {"0" if k==0 else V(acc+16*ct,16)}')
                for _ in range(1 if ct==0 else 1):
                    if f and k>=1: a(f.pop(0))
        emit(a,f)
    a('s_mov_b32 s30, s15')
    emit(a,issue_x('s30',LX0))
    a('s_waitcnt vmcnt(0)'); a('s_barrier')
    Lloop=a.nl('E1l'); Lend=a.nl('E1e')
    a('s_add_u32 s31, s30, 2')
    seg_compute(ACC,LX0,issue_x('s31',LX1))
    emit(a,out_base('s30')); emit(a,epilogue(ACC))
    a('s_waitcnt vmcnt(0)'); a('s_barrier'); flag('s30')
    a.lab(Lloop)
    for ph in range(2):
        accC,accP=(ACC+32,ACC) if ph==0 else (ACC,ACC+32)
        bufC,bufN=(LX1,LX0) if ph==0 else (LX0,LX1)
        a('s_add_u32 s32, s31, 2'); a('s_min_u32 s32, s32, 63')
        f=out_base('s30')+epilogue(accP)+issue_x('s32',bufN)
        seg_compute(accC,bufC,f)
        a('s_waitcnt vmcnt(0)'); a('s_barrier')
        flag('s30')
        a('s_mov_b32 s30, s31'); a('s_add_u32 s31, s31, 2')
        Lfin=a.nl('E1f')
        a('s_cmp_ge_u32 s31, 64'); a(f's_cbranch_scc1 {Lend}_{ph}')
    a(f's_branch {Lloop}')
    for ph in range(2):
        accC=(ACC+32) if ph==0 else ACC
        a.lab(f'{Lend}_{ph}')
        emit(a,out_base('s30')); emit(a,epilogue(accC))
        a('s_waitcnt vmcnt(0)'); a('s_barrier'); flag('s30')
        prof_dump(a)
        if END: END(a)
        a('s_waitcnt vmcnt(0)'); a('s_endpgm')


def gen_VU(a):
    vXD=2; vXR=4
    vAW=8; vAR=9; vUS=10; vTMP=11
    VA=36
    BF=52
    AFR=68
    UA=100
    UP=116
    LX0=0; LX1=XB_SZ; LA=2*XB_SZ
    a.c('================ VU role ================')
    vo_weight_load(a,vTMP)
    prof_mark(a,82)
    if SYNC: SYNC(a)
    a('s_load_dwordx2 s[18:19], s[0:1], %d'%KA['x'])
    x_dma_consts(a,vXD)
    n,g=T0,T1
    a(f'v_and_b32 v{n}, 15, v1'); a(f'v_lshrrev_b32 v{g}, 4, v1')
    a(f'v_bfe_u32 v{T2}, v{n}, 2, 1'); a(f'v_lshlrev_b32 v{T2}, 4, v{T2}'); a(f'v_lshrrev_b32 v{T3}, 3, v{n}'); a(f'v_lshl_add_u32 v{T2}, v{T3}, 3, v{T2}')
    a(f'v_bfe_u32 v{T3}, v{n}, 1, 1'); a(f'v_lshl_add_u32 v{T2}, v{T3}, 2, v{T2}'); a(f'v_and_b32 v{T3}, 1, v{n}'); a(f'v_add_u32 v{T2}, v{T2}, v{T3}')
    for tau in range(2):
        for kp in range(2):
            r=vXR+tau*2+kp
            a(f'v_add_u32 v{T3}, {2*tau}, v{T2}'); a(f'v_bfe_u32 v{T4}, v{T3}, 1, 3'); a(f'v_add_u32 v{T5}, {4*kp}, v{g}'); a(f'v_xor_b32 v{T4}, v{T4}, v{T5}')
            a(f'v_lshlrev_b32 v{T4}, 4, v{T4}'); a(f'v_lshl_add_u32 v{r}, v{T3}, 7, v{T4}'); a(f'v_add_u32 v{r+8}, {XB_SZ}, v{r}')
    a(f'v_lshrrev_b32 v{T2}, 1, v{g}'); a(f'v_lshl_add_u32 v{T2}, v{T2}, 4, v{n}'); a(f'v_lshlrev_b32 v{T2}, 4, v{T2}'); a(f'v_and_b32 v{T3}, 1, v{g}'); a(f'v_lshl_add_u32 v{T2}, v{T3}, 3, v{T2}')
    a('s_lshl_b32 s40, s3, 11'); a(f's_add_u32 s40, s40, {LA}'); a(f'v_add_u32 v{vAW}, s40, v{T2}')
    a(f'v_lshlrev_b32 v{T2}, 4, v1'); a(f'v_add_u32 v{vAR}, {LA}, v{T2}')
    a('s_mul_i32 s40, s15, 786432'); a('s_mul_i32 s41, s3, 98304'); a('s_add_u32 s40, s40, s41'); a('s_mul_i32 s41, s14, 3072'); a('s_add_u32 s40, s40, s41')
    a(f'v_add_u32 v{vUS}, s40, v{T2}')
    a('s_lshl_b32 s21, s3, 10')
    a('s_waitcnt lgkmcnt(0)')
    def issue_x(segreg, buf):
        L=[f's_mul_i32 s44, {segreg}, 40960','s_add_u32 s46, s18, s44','s_addc_u32 s47, s19, 0', f's_add_u32 s45, s21, {buf}']
        for gg in range(10): L+=x_dma(a,vXD,46,'s45',gg)
        return L
    def flag(segreg):
        L=a.nl('uf')
        a('s_cmp_lg_u32 s3, 0'); a(f's_cbranch_scc1 {L}')
        a(f's_lshl_b32 s44, {segreg}, 7'); a('s_lshl_b32 s45, s16, 2'); a('s_add_u32 s44, s44, s45'); a(f's_add_u32 s44, s44, {UF_OFF}')
        a(f'v_mov_b32 v{T0}, s44'); a(f'v_mov_b32 v{T1}, 1'); a(f'global_store_dword v{T0}, v{T1}, s[4:5] sc1')
        a.lab(L)
    def seg(buf, fillers):
        def rd(k):
            return [f'ds_read_b128 {V(BF+8*(k%2)+4*tau,4)}, v{vXR+(8 if buf else 0)+tau*2+(k%2)} offset:{(k//2)*4096}' for tau in range(2)]
        emit(a,rd(0))
        f=list(fillers)
        for k in range(20):
            if k+1<20: emit(a,rd(k+1))
            a(f's_waitcnt lgkmcnt({2 if k+1<20 else 0})')
            t,hB=k//2,k%2
            for dl in range(2):
                for tau in range(2):
                    acc=VA+(dl*2+tau)*4
                    a(f'v_mfma_f32_16x16x32_bf16 {V(acc,4)}, {wr((dl*10+t)*8+4*hB,4)}, {V(BF+8*(k%2)+4*tau,4)}, {"0" if k==0 else V(acc,4)}')
                if f: a(f.pop(0))
                if f: a(f.pop(0))
        emit(a,f)
        for dl in range(2):
            for tau in range(2):
                acc=VA+(dl*2+tau)*4
                a(f'v_cvt_pk_bf16_f32 v{T0+0}, v{acc}, v{acc+1}'); a(f'v_cvt_pk_bf16_f32 v{T1}, v{acc+2}, v{acc+3}')
                a(f'ds_write_b64 v{vAW}, {V(T0,2)} offset:{dl*512+tau*1024}')
        a('s_waitcnt lgkmcnt(0)'); a('s_barrier')
        for t in range(4):
            for tau in range(2): a(f'ds_read_b128 {V(AFR+(t*2+tau)*4,4)}, v{vAR} offset:{(t*2+tau)*1024}')
        a(f's_mul_i32 s44, s30, {U_SEG}'); a('s_add_u32 s50, s4, s44'); a('s_addc_u32 s51, s5, 0'); a(f's_add_u32 s50, s50, {WS_U}'); a('s_addc_u32 s51, s51, 0')
        a('s_waitcnt lgkmcnt(0)')
        def fin(u):
            cb,dl=u//2,u%2
            acc=UA+8*(u%2); pk=UP+4*(u%2)
            for tau in range(2):
                a(f'v_cvt_pk_bf16_f32 v{pk+2*tau}, v{acc+4*tau}, v{acc+4*tau+1}'); a(f'v_cvt_pk_bf16_f32 v{pk+2*tau+1}, v{acc+4*tau+2}, v{acc+4*tau+3}')
            c=(8*(cb%2)+dl)*49152+(cb//2)*1024
            a(f's_add_u32 s52, s50, {c}'); a('s_addc_u32 s53, s51, 0')
            a(f'global_store_dwordx4 v{vUS}, {V(pk,4)}, s[52:53] sc1')
        for u in range(10):
            acc=UA+8*(u%2)
            for t in range(4):
                for tau in range(2):
                    widx=160+(u*2+t//2)*8+4*(t%2)
                    a(f'v_mfma_f32_16x16x32_bf16 {V(acc+4*tau,4)}, {V(AFR+(t*2+tau)*4,4)}, {wr(widx,4)}, {"0" if t==0 else V(acc+4*tau,4)}')
                if t==1 and u>0: fin(u-1)
        fin(9)
    a('s_mov_b32 s30, s17')
    emit(a,issue_x('s30',LX0))
    a('s_waitcnt vmcnt(0)'); a('s_barrier')
    Ll=a.nl('VUl'); Le=a.nl('VUe')
    a.lab(Ll)
    for ph in range(2):
        bufC,bufN=(LX0,LX1) if ph==0 else (LX1,LX0)
        a('s_add_u32 s32, s30, 2'); a('s_min_u32 s32, s32, 63')
        seg(bufC,issue_x('s32',bufN))
        a('s_waitcnt vmcnt(0)'); a('s_barrier')
        flag('s30')
        a('s_add_u32 s30, s30, 2'); a('s_cmp_ge_u32 s30, 64'); a(f's_cbranch_scc1 {Le}')
    a(f's_branch {Ll}')
    a.lab(Le)
    prof_dump(a)
    if END: END(a)
    a('s_waitcnt vmcnt(0)'); a('s_endpgm')

def gen_E2(a, ngroups, loop=True):
    vQ=2; vK=3; vKM=4; vD=5; vPX=6; vPM=7; vSL=8; vSH=9; vNI=10
    QF=36
    KF=68
    SD=116
    S=140
    a.c('================ E2 role ================')
    n,g=T0,T1
    a(f'v_and_b32 v{n}, 15, v1'); a(f'v_lshrrev_b32 v{g}, 4, v1')
    a(f'v_lshlrev_b32 v{T2}, 9, v{g}'); a(f'v_lshl_add_u32 v{vQ}, v{n}, 4, v{T2}'); a(f'v_add_u32 v{vQ}, 4096, v{vQ}')
    a(f'v_bfe_u32 v{T2}, v{n}, 2, 1'); a(f'v_lshlrev_b32 v{T2}, 4, v{T2}'); a(f'v_lshrrev_b32 v{T3}, 3, v{n}'); a(f'v_lshl_add_u32 v{T2}, v{T3}, 3, v{T2}')
    a(f'v_bfe_u32 v{T3}, v{n}, 1, 1'); a(f'v_lshl_add_u32 v{T2}, v{T3}, 2, v{T2}'); a(f'v_and_b32 v{T3}, 1, v{n}'); a(f'v_add_u32 v{T2}, v{T2}, v{T3}')
    a(f'v_lshlrev_b32 v{T2}, 4, v{T2}'); a(f'v_lshl_add_u32 v{vK}, v{g}, 9, v{T2}'); a(f'v_add_u32 v{vK}, 4096, v{vK}')
    a(f'v_and_b32 v{T2}, 7, v{n}'); a(f'v_lshlrev_b32 v{T2}, 4, v{T2}'); a(f'v_lshl_add_u32 v{vKM}, v{g}, 7, v{T2}')
    a(f'v_and_b32 v{T2}, 1, v{g}'); a(f'v_lshlrev_b32 v{T2}, 4, v{T2}'); a(f'v_lshrrev_b32 v{T3}, 1, v{g}'); a(f'v_lshl_add_u32 v{T2}, v{T3}, 3, v{T2}'); a(f'v_sub_u32 v{vD}, v{n}, v{T2}')
    a(f'v_lshlrev_b32 v{vPX}, 4, v1')
    a(f'v_lshlrev_b32 v{T2}, 4, v{n}'); a(f'v_and_b32 v{T3}, 1, v{g}'); a(f'v_lshl_add_u32 v{T2}, v{T3}, 3, v{T2}'); a(f'v_add_u32 v{vPM}, 2048, v{T2}')
    a(f'v_mov_b32 v{vSL}, 0x05040c0c'); a(f'v_mov_b32 v{vSH}, 0x07060c0c'); a(f'v_mov_b32 v{vNI}, 0xff800000')
    a('s_mov_b32 s40, 0'); a('s_mov_b32 s41, -1'); a(f'v_mov_b32 v{T2}, 0x03020100'); a(f'v_cndmask_b32 v{vSL}, v{vSL}, v{T2}, s[40:41]'); a(f'v_cndmask_b32 v{vSH}, v{vSH}, v{T2}, s[40:41]')
    a(f's_mov_b32 s66, {SCALE}'); a(f's_mov_b32 s67, {SCALE}'); a(f's_mov_b32 s68, {L2E}')
    a('s_mov_b32 s64, -1'); a('s_mov_b32 s65, 0')
    a('s_lshl_b32 s16, s24, 2'); a('s_add_u32 s16, s16, s3')
    a('s_mov_b32 s30, s23')
    Ll=a.nl('E2l'); Le=a.nl('E2e')
    a.lab(Ll)
    a('s_lshl_b32 s44, s30, 5'); a('s_add_u32 s44, s44, s16'); a('s_lshl_b32 s44, s44, 2'); a(f's_add_u32 s44, s44, {KMF_OFF}'); a(f'v_mov_b32 v{T0}, s44')
    a('s_lshl_b32 s44, s30, 8'); a('s_lshr_b32 s45, s16, 1'); a('s_lshl_b32 s45, s45, 2'); a('s_add_u32 s44, s44, s45'); a(f's_add_u32 s44, s44, {QKF_OFF}'); a(f'v_mov_b32 v{T1}, s44')
    Lw=a.nl('e2w'); a.lab(Lw)
    a(f'global_load_dword v{T2}, v{T0}, s[4:5] sc1'); a(f'global_load_dword v{T3}, v{T1}, s[4:5] sc1'); a(f'global_load_dword v{T4}, v{T1}, s[4:5] offset:64 sc1')
    a('s_waitcnt vmcnt(0)'); a(f'v_min_u32 v{T2}, v{T2}, v{T3}'); a(f'v_min_u32 v{T2}, v{T2}, v{T4}'); a(f'v_cmp_eq_u32 vcc, 0, v{T2}')
    Lgo=a.nl('e2g'); a(f's_cbranch_vccz {Lgo}'); a('s_sleep 2'); a('s_add_u32 s100, s100, 16'); a('s_cmp_lt_u32 s100, 0x1000000'); a(f's_cbranch_scc1 {Lw}'); a('s_endpgm'); a.lab(Lgo)
    a('s_lshl_b32 s44, s30, 5'); a('s_add_u32 s44, s44, s16')
    a('s_lshl_b32 s45, s44, 13'); a('s_add_u32 s46, s4, s45'); a('s_addc_u32 s47, s5, 0')
    a(f's_add_u32 s48, s46, {WS_K}'); a('s_addc_u32 s49, s47, 0')
    a('s_lshl_b32 s45, s44, 11'); a(f's_add_u32 s45, s45, {WS_KM}'); a('s_add_u32 s50, s4, s45'); a('s_addc_u32 s51, s5, 0')
    a('s_mul_i32 s45, s44, 2560'); a(f's_add_u32 s45, s45, {WS_PR}'); a('s_add_u32 s52, s4, s45'); a('s_addc_u32 s53, s5, 0')
    for t in range(4):
        a(f'global_load_dwordx4 {V(KF+4*t,4)}, v{vKM}, s[50:51] offset:{t*512} sc1')
        for tau in range(2): a(f'global_load_dwordx4 {V(KF+((1+tau)*4+t)*4,4)}, v{vK}, s[48:49] offset:{t*2048-4096+tau*32} sc1')
        for rho in range(2): a(f'global_load_dwordx4 {V(QF+(rho*4+t)*4,4)}, v{vQ}, s[46:47] offset:{t*2048-4096+rho*256} sc1')
    for t in range(4):
        a(f's_waitcnt vmcnt({5*(3-t)})')
        for rho in range(2):
            for tl in range(3):
                d=SD+(rho*3+tl)*4
                a(f'v_mfma_f32_16x16x32_bf16 {V(d,4)}, {V(KF+(tl*4+t)*4,4)}, {V(QF+(rho*4+t)*4,4)}, {"0" if t==0 else V(d,4)}')
    for rho in range(2):
        D=SD+rho*12
        for p in range(6):
            a(f'v_cvt_pk_bf16_f32 v{T0}, v{D+2*p}, v{D+2*p+1}')
            a(f'v_lshlrev_b32 v{S+2*p}, 16, v{T0}'); a(f'v_and_b32 v{S+2*p+1}, 0xffff0000, v{T0}')
            a(f'v_pk_mul_f32 {V(S+2*p,2)}, {V(S+2*p,2)}, s[66:67]')
            a(f'v_cvt_pk_bf16_f32 v{T0}, v{S+2*p}, v{S+2*p+1}')
            if p<2:
                a(f'v_perm_b32 v{S+2*p}, v{T0}, v{vNI}, v{vSL}'); a(f'v_perm_b32 v{S+2*p+1}, v{T0}, v{vNI}, v{vSH}')
            else:
                a(f'v_lshlrev_b32 v{S+2*p}, 16, v{T0}'); a(f'v_and_b32 v{S+2*p+1}, 0xffff0000, v{T0}')
        a(f'v_add_u32 v{T1}, {16*rho}, v{vD}')
        for tau in range(2):
            for i in range(4):
                c=4*(i>>1)+2*tau+(i&1)
                a(f'v_cmp_le_i32 vcc, {c}, v{T1}'); a(f'v_cndmask_b32 v{S+4+4*tau+i}, v{vNI}, v{S+4+4*tau+i}, vcc')
        m,u,l=T2,T3,T4
        a(f'v_max3_f32 v{m}, v{S}, v{S+1}, v{S+2}')
        for p in range(4): a(f'v_max3_f32 v{m}, v{m}, v{S+3+2*p}, v{S+4+2*p}')
        a(f'v_max_f32 v{m}, v{m}, v{S+11}')
        a(f'v_mov_b32 v{u}, v{m}'); a(f'v_permlane16_swap_b32 v{m}, v{u}'); a(f'v_max_f32 v{m}, v{m}, v{u}')
        a(f'v_mov_b32 v{u}, v{m}'); a(f'v_permlane32_swap_b32 v{m}, v{u}'); a(f'v_max_f32 v{m}, v{m}, v{u}')
        a(f'v_mul_f32 v{m}, s68, v{m}')
        for i in range(12): a(f'v_fma_f32 v{S+i}, v{S+i}, s68, -v{m}')
        for i in range(12): a(f'v_exp_f32 v{S+i}, v{S+i}')
        a(f'v_add_f32 v{l}, v{S}, v{S+1}')
        for i in range(2,12): a(f'v_add_f32 v{l}, v{l}, v{S+i}')
        a(f'v_mov_b32 v{u}, v{l}'); a(f'v_permlane16_swap_b32 v{l}, v{u}'); a(f'v_add_f32 v{l}, v{l}, v{u}')
        a(f'v_mov_b32 v{u}, v{l}'); a(f'v_permlane32_swap_b32 v{l}, v{u}'); a(f'v_add_f32 v{l}, v{l}, v{u}')
        a(f'v_rcp_f32 v{l}, v{l}')
        for i in range(12): a(f'v_mul_f32 v{S+i}, v{S+i}, v{l}')
        a(f'v_cvt_pk_bf16_f32 v{D}, v{S}, v{S+1}'); a(f'v_cvt_pk_bf16_f32 v{D+1}, v{S+2}, v{S+3}')
        for p in range(4): a(f'v_cvt_pk_bf16_f32 v{D+4+p}, v{S+4+2*p}, v{S+5+2*p}')
        a(f'global_store_dwordx4 v{vPX}, {V(D+4,4)}, s[52:53] offset:{rho*1024} sc1')
        a('s_mov_b64 exec, s[64:65]')
        a(f'global_store_dwordx2 v{vPM}, {V(D,2)}, s[52:53] offset:{rho*256} sc1')
        a('s_mov_b64 exec, -1')
    a('s_waitcnt vmcnt(0)')
    a('s_lshl_b32 s44, s30, 5'); a('s_add_u32 s44, s44, s16'); a('s_lshl_b32 s44, s44, 2'); a(f's_add_u32 s44, s44, {PRF_OFF}')
    a(f'v_mov_b32 v{T0}, s44'); a(f'v_mov_b32 v{T1}, 1'); a(f'global_store_dword v{T0}, v{T1}, s[4:5] sc1')
    a(f's_add_u32 s30, s30, {ngroups}'); a('s_cmp_lt_u32 s30, 64'); a(f's_cbranch_scc1 {Ll}')

def gen_E3(a, ngroups):
    vU=2; vZ=3; vPX=4; vPM=5; vO=6; vDM=7
    AF=36
    BF=68
    ACC=84
    NA=8
    a.c('================ E3 role ================')
    a('s_load_dwordx2 s[18:19], s[0:1], %d'%KA['out'])
    n,g=T0,T1
    a(f'v_and_b32 v{n}, 15, v1'); a(f'v_lshrrev_b32 v{g}, 4, v1')
    a('s_lshl_b32 s25, s24, 2'); a('s_add_u32 s25, s25, s3')
    a('s_and_b32 s26, s25, 15'); a('s_lshr_b32 s27, s25, 4')
    a('s_mul_i32 s40, s26, 49152'); a('s_lshl_b32 s41, s27, 10'); a('s_add_u32 s40, s40, s41'); a(f'v_lshlrev_b32 v{vDM}, 4, v1'); a(f'v_add_u32 v{vU}, s40, v{vDM}')
    a('s_mul_i32 s40, s26, 12288'); a('s_lshl_b32 s41, s27, 8'); a('s_add_u32 s40, s40, s41')
    a(f'v_mul_u32_u24 v{T2}, 768, v{g}'); a(f'v_lshl_add_u32 v{T2}, v{n}, 4, v{T2}'); a(f'v_add_u32 v{vZ}, s40, v{T2}')
    a(f'v_mov_b32 v{vPX}, v{vDM}')
    a(f'v_mul_u32_u24 v{T2}, 2560, v{g}'); a(f'v_lshl_add_u32 v{T2}, v{n}, 4, v{T2}'); a(f'v_add_u32 v{vPM}, 2048, v{T2}')
    a(f'v_mul_u32_u24 v{T2}, 2560, v{n}'); a(f'v_lshl_add_u32 v{T2}, v{g}, 3, v{T2}'); a('s_lshl_b32 s40, s25, 5'); a('s_add_u32 s40, s40, 1280'); a(f'v_add_u32 v{vO}, s40, v{T2}')
    a('s_waitcnt lgkmcnt(0)')
    a('s_mov_b32 s30, s23')
    Ll=a.nl('E3l')
    a.lab(Ll)
    a('s_lshl_b32 s44, s30, 7'); a(f'v_and_b32 v{T0}, 31, v1'); a(f'v_lshlrev_b32 v{T0}, 2, v{T0}'); a(f'v_add_u32 v{T0}, s44, v{T0}')
    a(f'v_add_u32 v{T1}, {PRF_OFF}, v{T0}'); a(f'v_add_u32 v{T2}, {ZF_OFF}, v{T0}'); a(f'v_add_u32 v{T3}, {UF_OFF}, v{T0}')
    Lw=a.nl('e3w'); a.lab(Lw)
    a(f'global_load_dword v{T4}, v{T1}, s[4:5] sc1'); a(f'global_load_dword v{T5}, v{T2}, s[4:5] sc1'); a(f'global_load_dword v{T0}, v{T3}, s[4:5] sc1')
    a('s_waitcnt vmcnt(0)'); a(f'v_min_u32 v{T4}, v{T4}, v{T5}'); a(f'v_min_u32 v{T4}, v{T4}, v{T0}'); a(f'v_cmp_eq_u32 vcc, 0, v{T4}')
    Lgo=a.nl('e3g'); a(f's_cbranch_vccz {Lgo}'); a('s_sleep 2'); a('s_add_u32 s100, s100, 16'); a('s_cmp_lt_u32 s100, 0x1000000'); a(f's_cbranch_scc1 {Lw}'); a('s_endpgm'); a.lab(Lgo)
    a('s_barrier')
    a('s_mul_i32 s44, s30, 81920'); a(f's_add_u32 s44, s44, {WS_PR}'); a('s_mul_i32 s45, s3, 20480'); a('s_add_u32 s44, s44, s45'); a('s_add_u32 s46, s4, s44'); a('s_addc_u32 s47, s5, 0')
    for i in range(20):
        if i%4==0 and i>0: a('s_add_u32 s46, s46, 4096'); a('s_addc_u32 s47, s47, 0')
        a(f's_add_u32 m0, s45, {i*1024-(i%4)*1024}'); a(f'global_load_lds_dwordx4 v{vDM}, s[46:47] offset:{(i%4)*1024} sc1')
    a(f's_mul_i32 s44, s30, {U_SEG}'); a('s_add_u32 s48, s4, s44'); a('s_addc_u32 s49, s5, 0'); a(f's_add_u32 s48, s48, {WS_U}'); a('s_addc_u32 s49, s49, 0')
    a(f's_mul_i32 s44, s30, {ZG_STEP}'); a('s_add_u32 s50, s4, s44'); a('s_addc_u32 s51, s5, 0'); a(f's_add_u32 s50, s50, {WS_ZG}'); a('s_addc_u32 s51, s51, 0')
    def aload(i):
        r=V(AF+4*(i%NA),4)
        if i<32:
            off=(i//16)*786432+(i%16)*3072
            return [f's_add_u32 s52, s48, {off}','s_addc_u32 s53, s49, 0',f'global_load_dwordx4 {r}, v{vU}, s[52:53] sc1']
        t=i-32; off=(t//4)*196608+(t%4)*4*768
        return [f's_add_u32 s52, s50, {off}','s_addc_u32 s53, s51, 0',f'global_load_dwordx4 {r}, v{vZ}, s[52:53] sc1']
    for i in range(NA-1): emit(a,aload(i))
    a(f's_waitcnt vmcnt({NA-1})'); a('s_barrier')
    def bread(i,rho):
        r=V(BF+4*((2*i+rho)%4),4)
        if i<32:
            off=i*2560+rho*1024
            return (f'ds_read_b128 {r}, v{vPX} offset:{off}' if off<65536 else f'ds_read_b128 {r}, v{T5} offset:{off-65536}')
        t=i-32; off=t*4*2560+rho*256
        return (f'ds_read_b128 {r}, v{vPM} offset:{off}' if off<65536-7680 else f'ds_read_b128 {r}, v{T4} offset:{off-57344}')
    a(f'v_add_u32 v{T5}, 65536, v{vPX}'); a(f'v_add_u32 v{T4}, 57344, v{vPM}')
    a(bread(0,0)); a(bread(0,1))
    for i in range(40):
        if i+NA-1<40: emit(a,aload(i+NA-1))
        if i+1<40: a(bread(i+1,0)); a(bread(i+1,1))
        a(f's_waitcnt vmcnt({min(NA-1,39-i)}) lgkmcnt({2 if i+1<40 else 0})')
        for rho in range(2):
            a(f'v_mfma_f32_16x16x32_bf16 {V(ACC+4*rho,4)}, {V(AF+4*(i%NA),4)}, {V(BF+4*((2*i+rho)%4),4)}, {"0" if i==0 else V(ACC+4*rho,4)}')
    a('s_mul_i32 s44, s30, 81920'); a('s_add_u32 s52, s18, s44'); a('s_addc_u32 s53, s19, 0')
    for rho in range(2):
        a(f'v_cvt_pk_bf16_f32 v{T0+2*rho}, v{ACC+4*rho}, v{ACC+4*rho+1}'); a(f'v_cvt_pk_bf16_f32 v{T0+2*rho+1}, v{ACC+4*rho+2}, v{ACC+4*rho+3}')
    a(f'global_store_dwordx2 v{vO}, {V(T0,2)}, s[52:53]')
    a(f'v_add_u32 v{T4}, 40960, v{vO}')
    a(f'global_store_dwordx2 v{T4}, {V(T2,2)}, s[52:53]')
    a(f's_add_u32 s30, s30, {ngroups}'); a('s_cmp_lt_u32 s30, 64'); a(f's_cbranch_scc1 {Ll}')
```

```python
import sys
from asmgen import *
from layout import *
import chain, ext, parta, hazard
NAME='concat_heads__ssm_conv_s4__memory_aug_recurrent_mem_tr__prompt'
KN=NAME+'_kernel'
XA,XB=0,1
PROFW=None
def sync_check(a):
    if PROFW: prof_end(a,PROFW[0],PROFW[1])
    L=a.nl('sc'); Lok=a.nl('sco')
    a('v_mov_b32 v30, 64')
    a.lab(L)
    a('global_load_dword v31, v30, s[6:7] sc1'); a('s_waitcnt vmcnt(0)'); a('v_readfirstlane_b32 s40, v31')
    a('s_cmp_ge_u32 s40, 256'); Lg=a.nl('scg'); a(f's_cbranch_scc1 {Lg}'); a('s_sleep 4'); a('s_add_u32 s100, s100, 64'); a('s_cmp_lt_u32 s100, 0x1000000'); a(f's_cbranch_scc1 {L}'); a('s_endpgm')
    a.lab(Lg)
    a('s_cmp_lg_u32 s101, 0'); a(f's_cbranch_scc1 {Lok}')
    a('v_and_b32 v30, 7, v1'); a('v_lshlrev_b32 v30, 2, v30')
    a('global_load_dword v31, v30, s[6:7] sc1'); a('s_waitcnt vmcnt(0)')
    a(f'v_cmp_ne_u32 vcc, {32 if not FORCE_SAFE else 33}, v31'); a(f's_cbranch_vccz {Lok}')
    a('s_mov_b32 s101, 1'); a('s_lshr_b32 s12, s2, 5'); a('s_and_b32 s17, s2, 31'); a('s_barrier'); a('s_branch L_dispatch')
    a.lab(Lok)
FORCE_SAFE=False
def q_delay(a):
    L=a.nl('qd'); Lo=a.nl('qdo')
    a('s_cmp_ge_u32 s14, 16'); a(f's_cbranch_scc1 {Lo}')
    a('s_cmp_lg_u32 s101, 0'); a(f's_cbranch_scc1 {Lo}')
    arrive(a,0)
    a('s_mov_b32 s99, 1')
    a('v_mov_b32 v30, 192')
    a.lab(L)
    a('global_load_dword v31, v30, s[6:7] sc1'); a('s_waitcnt vmcnt(0)'); a('v_readfirstlane_b32 s40, v31')
    a('s_cmp_ge_u32 s40, 64'); a(f's_cbranch_scc1 {Lo}'); a('s_sleep 32'); a('s_add_u32 s100, s100, 256'); a('s_cmp_lt_u32 s100, 0x40000'); a(f's_cbranch_scc1 {L}')
    a.lab(Lo)
def chain_loaded(a):
    L=a.nl('cl')
    a('s_cmp_lg_u32 s3, 0'); a(f's_cbranch_scc1 {L}')
    a('v_mov_b32 v30, 192'); a('v_mov_b32 v31, 1'); a('s_mov_b64 exec, 1'); a('global_atomic_add v30, v31, s[6:7]'); a('s_mov_b64 exec, -1')
    a.lab(L)
def arrive(a, younger):
    L=a.nl('arr')
    a('s_cmp_lg_u32 s101, 0'); a(f's_cbranch_scc1 {L}')
    a('s_cmp_lg_u32 s99, 0'); a(f's_cbranch_scc1 {L}')
    a(f's_waitcnt vmcnt({younger})'); a('s_barrier')
    a('s_cmp_lg_u32 s3, 0'); a(f's_cbranch_scc1 {L}')
    a('v_mov_b32 v30, 64'); a('v_mov_b32 v31, 1'); a('s_mov_b64 exec, 1'); a('global_atomic_add v30, v31, s[6:7]'); a('s_mov_b64 exec, -1')
    a.lab(L)
def gen(stamps=False, prof=False, **kw):
    chain.STAMPS=stamps; chain.ARRIVE=arrive
    chain.DELAY_VO=8; chain.DELAY_QK=4; chain.W3_DELAY=14; chain.G_D2=2; chain.QK_NW=3; chain.EWP_POS='pre'; chain.VO_GATE=False; chain.VO_D2=5; chain.U_POS_V=(4,10,16); chain.U_POS_Z=(0,); chain.POLL_DEPTH=3
    for k,v in kw.items(): setattr(chain,k,v)
    a=Asm()
    hdr=open('cdna_kernels/'+NAME+'.s.ref').read().split('\n')
    for l in hdr:
        if l.startswith('; @launch'): break
        a(l)
    a('; @launch grid=(256,1,1) block=(256,1,1) lds=163840')
    a('.amdgcn_target "amdgcn-amd-amdhsa--gfx950"')
    a(kernel_header(KN))
    a('s_cmp_ge_u32 s2, 256'); a('s_cbranch_scc1 L_exit')
    if prof: a('s_memrealtime s[20:21]')
    a(f's_load_dwordx2 s[4:5], s[0:1], {KA["ws"]}'); a(f's_load_dwordx2 s[6:7], s[0:1], {KA["dbg"]}')
    a('s_getreg_b32 s12, hwreg(HW_REG_XCC_ID, 0, 4)')
    a('v_and_b32 v1, 63, v0'); a('v_lshrrev_b32 v30, 6, v0'); a('v_readfirstlane_b32 s3, v30')
    a('s_mov_b32 s101, 0'); a('s_mov_b32 s100, 0'); a('s_mov_b32 s99, 0')
    a('s_waitcnt lgkmcnt(0)')
    a('s_cmp_lg_u32 s3, 0'); a('s_cbranch_scc1 L_tk')
    a('s_lshl_b32 s14, s12, 2'); a('v_mov_b32 v30, s14'); a('v_mov_b32 v31, 1')
    a('s_mov_b64 exec, 1')
    a('global_atomic_add v32, v30, v31, s[6:7] sc0'); a('s_waitcnt vmcnt(0)')
    a('v_mov_b32 v30, 0'); a('ds_write_b32 v30, v32'); a('s_mov_b64 exec, -1'); a('s_waitcnt lgkmcnt(0)')
    a('s_branch L_tk2')
    a.lab('L_tk')
    nsent=(SENT_END-SENT_BEGIN)//256; assert nsent%16==0 and nsent<=3*3072
    a(f's_mul_i32 s40, s2, {nsent}'); a(f's_add_u32 s40, s40, {SENT_BEGIN}')
    a('v_subrev_u32 v33, 64, v0'); a('v_lshlrev_b32 v33, 4, v33'); a('v_add_u32 v34, s40, v33')
    for i in range(4): a(f'v_mov_b32 v{36+i}, -1')
    a('global_store_dwordx4 v34, v[36:39], s[4:5] sc1')
    a('global_store_dwordx4 v34, v[36:39], s[4:5] offset:3072 sc1')
    a(f'v_cmp_gt_u32 vcc, {nsent-6144}, v33'); a('s_and_saveexec_b64 s[42:43], vcc'); a('s_cbranch_execz L_i2')
    a('v_add_u32 v34, 6144, v34'); a('global_store_dwordx4 v34, v[36:39], s[4:5] sc1')
    a.lab('L_i2'); a('s_mov_b64 exec, s[42:43]')
    nfl=(FL_END-FL_OFF)//256; assert nfl%16==0
    a(f's_mul_i32 s40, s2, {nfl}'); a(f's_add_u32 s40, s40, {FL_OFF}'); a('v_add_u32 v34, s40, v33')
    for i in range(4): a(f'v_mov_b32 v{40+i}, 0')
    a(f'v_cmp_gt_u32 vcc, {nfl}, v33'); a('s_and_saveexec_b64 s[42:43], vcc'); a('s_cbranch_execz L_i3')
    a('global_store_dwordx4 v34, v[40:43], s[4:5] sc1')
    a.lab('L_i3'); a('s_mov_b64 exec, s[42:43]')
    a.lab('L_tk2')
    a('s_barrier')
    a('v_mov_b32 v30, 0'); a('ds_read_b32 v32, v30'); a('s_waitcnt lgkmcnt(0)')
    a('v_readfirstlane_b32 s17, v32')
    a('s_barrier')
    a.lab('L_dispatch')
    a('s_cmp_gt_u32 s12, 7'); a('s_cbranch_scc1 L_odd')
    a('s_cmp_lt_u32 s12, 2'); a('s_cbranch_scc1 L_chain')
    a('s_cmp_lt_u32 s12, 4'); a('s_cbranch_scc1 L_e1')
    a('s_cmp_lt_u32 s12, 6'); a('s_cbranch_scc1 L_vu')
    a('s_sub_u32 s40, s12, 6'); a('s_lshl_b32 s29, s40, 5'); a('s_add_u32 s29, s29, s17'); a('s_and_b32 s29, s29, 63')
    arrive(a,0)
    sync_check(a)
    a('s_mov_b32 s23, s29')
    parta.gen_A(a,64)
    if prof: prof_end(a,'s29',0)
    a('s_barrier')
    a('s_cmp_ge_u32 s29, 24'); a('s_cbranch_scc1 L_e3')
    a('s_lshr_b32 s23, s29, 3'); a('s_and_b32 s24, s29, 7')
    ext.gen_E2(a,3); a('s_waitcnt vmcnt(0)')
    if prof: prof_end(a,'s29',64)
    a('s_endpgm')
    a.lab('L_e3')
    a('s_sub_u32 s41, s29, 24'); a('s_mul_hi_u32 s23, s41, 429496730'); a('s_mul_i32 s40, s23, 10'); a('s_sub_u32 s24, s41, s40')
    ext.gen_E3(a,4); a('s_waitcnt vmcnt(0)')
    if prof: prof_end(a,'s29',64)
    a('s_endpgm')
    a.lab('L_odd')
    arrive(a,0)
    sync_check(a)
    a('s_endpgm')
    a.lab('L_e1')
    a('s_and_b32 s17, s17, 31')
    a('s_lshr_b32 s14, s17, 1'); a('s_cmp_eq_u32 s12, 2'); a('s_cselect_b32 s40, 16, 0'); a('s_add_u32 s14, s14, s40'); a('s_and_b32 s15, s17, 1')
    global PROFW
    ext.SYNC=sync_check
    PROFW=('s14',512+128) if prof else None
    ext.END=(lambda a: prof_end(a,'s14',128+0)) if prof else None
    ext.PRE=q_delay
    ext.gen_E1(a)
    a.lab('L_vu')
    a('s_and_b32 s17, s17, 31')
    a('s_sub_u32 s15, s12, 4'); a('s_lshr_b32 s14, s17, 1'); a('s_lshl_b32 s16, s15, 4'); a('s_add_u32 s16, s16, s14'); a('s_and_b32 s17, s17, 1')
    ext.END=(lambda a: prof_end(a,'s16',160)) if prof else None
    PROFW=('s16',512+160) if prof else None
    ext.gen_VU(a)
    a.lab('L_chain')
    a('s_and_b32 s17, s17, 31')
    a('s_mov_b32 s15, s12'); a('s_and_b32 s14, s17, 15'); a('s_lshl_b32 s16, s15, 4'); a('s_add_u32 s16, s16, s14')
    chain.SYNC=lambda a: (chain_loaded(a), sync_check(a))
    a('s_cmp_lg_u32 s101, 0'); a('s_cbranch_scc1 L_chain_safe')
    a('s_cmp_ge_u32 s17, 16'); a('s_cbranch_scc1 L_vo')
    PROFW=('s16',512+192) if prof else None
    chain.gen_QK(a,False,NSTEP,(lambda a: prof_end(a,'s16',192)) if prof else None)
    PROFW=('s16',512+224) if prof else None
    a.lab('L_vo'); chain.gen_VO(a,False)
    PROFW=None
    a.lab('L_chain_safe')
    a('s_cmp_ge_u32 s17, 16'); a('s_cbranch_scc1 L_vo_s')
    chain.gen_QK(a,True)
    a.lab('L_vo_s'); chain.gen_VO(a,True)
    a.lab('L_exit')
    a('s_endpgm')
    a(kernel_desc(KN))
    a.lines=[l for l in a.lines if l is not None]
    t,n=hazard.fix(a.text())
    return t
def prof_end(a, idxreg, base):
    L=a.nl('pe')
    a('s_cmp_lg_u32 s3, 0'); a(f's_cbranch_scc1 {L}')
    a('s_memrealtime s[82:83]'); a('s_waitcnt lgkmcnt(0)')
    a(f's_add_u32 s40, {idxreg}, {base}'); a('s_lshl_b32 s40, s40, 3'); a(f's_add_u32 s40, s40, {FL_END+0x8000}')
    a('v_mov_b32 v30, s40'); a('v_mov_b32 v32, s20'); a('v_mov_b32 v33, s82'); a('global_store_dwordx2 v30, v[32:33], s[4:5]')
    if base==192: a('v_mov_b32 v32, s24'); a('global_store_dword v30, v32, s[4:5] offset:2048')
    a.lab(L)
if __name__=='__main__':
    if len(sys.argv)>2 and sys.argv[2]=='safe': FORCE_SAFE=True
    t=gen(prof=(len(sys.argv)>2 and sys.argv[2]=='prof'))
    out=sys.argv[1] if len(sys.argv)>1 else 'cdna_kernels/'+NAME+'.s'
    open(out,'w').write(t); print(len(t.split('\n')),'lines',len(t),'bytes ->',out)
```

```python
from asmgen import *
from layout import *
SCALE=0x3db504f3
L2E=0x3fb8aa3b
LDS_A=0
LDS_F=10240
LDS_ML=14336
LDS_R=14848
LDS_GO=21504
LDS_ML2=21760
STG_BLK=1088; STG_BUF=32*STG_BLK

def wr(idx,n):
    if idx<256:
        assert idx+n<=256
        return f'a[{idx}:{idx+n-1}]'
    b=192+idx-256
    return f'v[{b}:{b+n-1}]'
def V(b,n=1): return f'v{b}' if n==1 else f'v[{b}:{b+n-1}]'

def interleave(a, mains, fillers, per=2, start=0):
    f=list(fillers)
    for i,m in enumerate(mains):
        a(m)
        if i>=start and not m.startswith('s_waitcnt'):
            for _ in range(per):
                if f: a(f.pop(0))
    for x in f: a(x)

T0,T1,T2,T3,T4,T5=30,31,32,33,34,35
vG=2; vAW=3; vAR=4; vIDX=5; vSEL=6
GL=36; AF=56; GD=56; ACC=96

def masks(a):
    a('s_mov_b32 s60, 0x00ff00ff'); a('s_mov_b32 s61, 0x00ff00ff')
    a('s_mov_b32 s62, 0'); a('s_mov_b32 s63, 0x00ff00ff')
    a('s_mov_b32 s64, -1'); a('s_mov_b32 s65, 0')
    a('s_mov_b32 s72, 0xff00ff00'); a('s_mov_b32 s73, 0xff00ff00')
    a('s_mov_b32 s66, 0x3e0293ee'); a('s_mov_b32 s67, 0x3e0293ee')
    a('s_mov_b32 s70, 0xfffffffe')

def load_weights(a, srcs, trs, NR=10):
    def issue(r):
        srcs(r)
        a(f's_mul_i32 s44, s3, {8*STG_BLK}')
        a(f's_add_u32 s44, s44, {(r%4)*STG_BUF}')
        a(f'v_mov_b32 v{T5}, v{T4}')
        for i in range(8):
            a(f's_add_u32 m0, s44, {i*STG_BLK}')
            a(f'global_load_lds_dwordx4 v{T5}, s[40:41]')
            if i<7: a(f'v_add_u32 v{T5}, s43, v{T5}')
    for r in range(4): issue(r)
    if ARRIVE: ARRIVE(a,32)
    for r in range(NR):
        a(f's_waitcnt vmcnt({8*min(NR-1-r,3)})')
        a('s_barrier')
        trs(r,(r%4)*STG_BUF)
        a('s_waitcnt lgkmcnt(0)')
        a('s_barrier')
        if r+4<NR: issue(r+4)

def tr_addr16(a, dst):
    a(f'v_lshrrev_b32 v{T0}, 4, v1'); a(f'v_mul_u32_u24 v{dst}, {2*STG_BLK}, v{T0}')
    a(f'v_bfe_u32 v{T0}, v1, 2, 2'); a(f'v_lshl_add_u32 v{dst}, v{T0}, 8, v{dst}')
    a(f'v_and_b32 v{T0}, 3, v1'); a(f'v_lshl_add_u32 v{dst}, v{T0}, 3, v{dst}')
    a('s_lshl_b32 s40, s3, 6'); a(f'v_add_u32 v{dst}, s40, v{dst}')
def tr_B16(a, vaddr, bufoff, blocks):
    a(f'v_add_u32 v{T3}, {bufoff}, v{vaddr}')
    for (m,tp,idx) in blocks:
        for hB in range(2):
            for half in range(2):
                off=(m*16+8*hB+half)*STG_BLK+32*tp
                a(f'ds_read_b64_tr_b16 {wr(idx+hB*4+half*2,2)}, v{T3} offset:{off}')

vG3=184; vAW3=185; vSELH=186
SELH=None
DELAY_VO=0; DELAY_QK=0; NU_MID=6
VO_GATE=True; VO_D2=None; G_D2=0; P_TIMED=None; KMOD=' sc1'; EXP=set(); EW_P=0; EW_G=0; Z_DELAY=5; PF_A=6; PF_PACE=1; W3_DELAY=12; EWP_POS='pre'
def common_consts(a, selh, nw=4):
    n,g,x,y=T0,T1,T2,T3
    a(f'v_and_b32 v{n}, 15, v1'); a(f'v_lshrrev_b32 v{g}, 4, v1')
    a(f'v_lshrrev_b32 v{x}, 2, v{n}'); a(f'v_lshlrev_b32 v{x}, 4, v{x}')
    a(f'v_lshrrev_b32 v{y}, 1, v{g}'); a(f'v_lshl_add_u32 v{x}, v{y}, 3, v{x}')
    a(f'v_bfe_u32 v{y}, v{n}, 1, 1'); a(f'v_lshl_add_u32 v{x}, v{y}, 2, v{x}')
    a(f'v_and_b32 v{y}, 1, v{g}'); a(f'v_lshl_add_u32 v{x}, v{y}, 1, v{x}')
    a(f'v_and_b32 v{y}, 1, v{n}'); a(f'v_add_u32 v{x}, v{x}, v{y}')
    a(f'v_lshlrev_b32 v{x}, 4, v{x}')
    a('s_lshl_b32 s40, s3, 10'); a('s_add_u32 s41, s40, 4096')
    a(f'v_add_u32 v{vG}, s41, v{x}')
    a(f'v_lshlrev_b32 v{vAR}, 4, v1'); a(f'v_add_u32 v{vAW}, s40, v{vAR}')
    if nw==4:
        a('s_cmp_lt_u32 s3, 2'); a('s_cselect_b32 s42, 4096, 0')
        a(f'v_add_u32 v{vG3}, s42, v{vG}'); a('s_add_u32 s42, s42, 4096'); a(f'v_add_u32 v{vAW3}, s42, v{vAW}')
    else:
        a('s_movk_i32 s43, 2048'); a('s_cmp_eq_u32 s3, 0'); a('s_cselect_b32 s42, 5120, s43')
        a(f'v_add_u32 v{vG3}, s42, v{vG}'); a('s_add_u32 s42, s42, 4096'); a(f'v_add_u32 v{vAW3}, s42, v{vAW}')
    a(f'v_mov_b32 v{vIDX}, 0x4444'); a(f'v_mov_b32 v{x}, 0xeeee'); a(f'v_cmp_lt_u32 vcc, 7, v{n}'); a(f'v_cndmask_b32 v{vIDX}, v{vIDX}, v{x}, vcc')
    a(f'v_lshrrev_b32 v{x}, 3, v{n}'); a(f'v_and_b32 v{y}, 1, v{g}'); a(f'v_cmp_eq_u32 s[40:41], v{x}, v{y}')
    a(f'v_and_b32 v{x}, 1, v{n}'); a(f'v_lshlrev_b32 v{x}, 4, v{x}'); a(f'v_mov_b32 v{y}, 0x3f80'); a(f'v_lshlrev_b32 v{x}, v{x}, v{y}')
    a(f'v_cndmask_b32 v{x}, 0, v{x}, s[40:41]')
    a(f'v_bfe_u32 v{y}, v{n}, 1, 2')
    a(f'v_cmp_gt_u32 s[42:43], 2, v{g}')
    for d in range(4):
        a(f'v_cmp_eq_u32 vcc, {d}, v{y}'); a(f'v_cndmask_b32 v{T4}, 0, v{x}, vcc')
        a(f'v_cndmask_b32 v{vSEL+d}, 0, v{T4}, s[42:43]'); a(f'v_cndmask_b32 v{selh+d}, v{T4}, 0, s[42:43]')

def g_bases(stepadd):
    return [f's_add_u32 s44, s30, {stepadd&0xffffffff}','s_and_b32 s44, s44, 3',f's_mul_i32 s44, s44, {P_SLOT}',f's_add_u32 s44, s44, {P_OFF}',
            's_add_u32 s45, s44, s18','s_add_u32 s36, s4, s45','s_addc_u32 s37, s5, 0','s_add_u32 s45, s44, s19','s_add_u32 s38, s4, s45','s_addc_u32 s39, s5, 0']
vLP=None
def lp_const(a, reg):
    a(f'v_and_b32 v{T0}, 15, v1'); a(f'v_lshlrev_b32 v{T0}, 2, v{T0}')
    a('s_lshl_b32 s40, s15, 7'); a(f's_add_u32 s40, s40, {GF_OFF}'); a(f'v_add_u32 v{reg}, s40, v{T0}')
    a(f'v_mov_b32 v{T0}, {LDS_GO}'); a(f'v_mov_b32 v{T2}, 0'); a(f'v_mov_b32 v{T3}, 0'); a(f'ds_write_b64 v{T0}, {V(T2,2)}')
    a(f'v_mov_b32 v{T4}, 0'); a(f'v_mov_b32 v{T5}, 0'); a(f'v_lshlrev_b32 v{T0}, 4, v1'); a(f'ds_write_b128 v{T0}, {V(T2,4)} offset:{LDS_ML2}')
    a('s_waitcnt lgkmcnt(0)'); a('s_barrier')
POLL_DEPTH=3
def flag_gate(a, vflag, goaddr, dbg=False):
    Lq=a.nl('Fq'); Lw=a.nl('Fw'); Lo=a.nl('Fo'); Lk=a.nl('Fk')
    R=[T1,T3,T4][:POLL_DEPTH]; D=len(R)
    a('s_add_u32 s40, s30, 1')
    a(f'v_mov_b32 v{T2}, {goaddr}')
    a('s_cmp_lg_u32 s3, 0'); a(f's_cbranch_scc1 {Lw}')
    a('s_mov_b64 exec, 0xffff')
    for i,r in enumerate(R):
        a(f'global_load_dword v{r}, v{vflag}, s[4:5] sc1')
        if i<D-1: a('s_nop 15')
    a.lab(Lq)
    for i,r in enumerate(R):
        a(f's_waitcnt vmcnt({D-1})')
        a(f'v_cmp_gt_u32 vcc, s40, v{r}'); a(f's_cbranch_vccz {Lk}')
        a(f'global_load_dword v{r}, v{vflag}, s[4:5] sc1')
    a('s_add_u32 s100, s100, 1'); a('s_cmp_lt_u32 s100, 0x1000000'); a(f's_cbranch_scc1 {Lq}'); a('s_endpgm')
    a.lab(Lk)
    a(f'v_mov_b32 v{T0}, s40'); a(f'ds_write_b32 v{T2}, v{T0}')
    a('s_mov_b64 exec, -1')
    a(f's_branch {Lo}')
    a.lab(Lw)
    a(f'ds_read_b32 v{T1}, v{T2}'); a('s_waitcnt lgkmcnt(0)'); a(f'v_cmp_gt_u32 vcc, s40, v{T1}'); a.retry('s_cbranch_vccnz',Lw)
    a.lab(Lo)

def G_phase(a, selh, delay=0, nw=4, mid=None, L=36, R=80, D=56, lp=None, gate=True, d2o=None):
    nl=3 if nw==4 else 4
    offs=[-4096,0] if nw==4 else [-4096,-1024,2048]
    lds=[0,4096] if nw==4 else [0,3072,6144]
    Lskip=a.nl('Gs')
    def loads(dst,base):
        for i,o in enumerate(offs): a(f'global_load_dwordx4 {V(dst+4*i,4)}, v{vG}, s[{base}:{base+1}] offset:{o} sc1')
        a(f'global_load_dwordx4 {V(dst+4*(nl-1),4)}, v{vG3}, s[{base}:{base+1}] sc1')
    def check(src):
        regs=[src+2*i for i in range(2*nl)]
        a(f'v_max3_u32 v{T0}, v{regs[0]}, v{regs[1]}, v{regs[2]}'); k=3
        while k+1<len(regs): a(f'v_max3_u32 v{T0}, v{T0}, v{regs[k]}, v{regs[k+1]}'); k+=2
        if k<len(regs): a(f'v_max_u32 v{T0}, v{T0}, v{regs[k]}')
        a(f'v_cmp_eq_u32 vcc, -1, v{T0}')
    if nw==3: a('s_cmp_eq_u32 s3, 3'); a(f's_cbranch_scc1 {Lskip}')
    if gate: flag_gate(a,lp,LDS_GO)
    stamp(a,12)
    def loads2(dst,base):
        for i,o in enumerate(offs): a(f'global_load_dwordx4 {V(dst+4*i,4)}, v{vG}, s[{base}:{base+1}] offset:{o} sc1')
        a(f'global_load_dwordx4 {V(dst+4*(nl-1),4)}, v{vG3}, s[{base}:{base+1}] sc1')
    d2=min(delay,G_D2 if d2o is None else d2o)
    Lnd=a.nl('nd')
    if not gate and nw==4 and delay-d2>0: a('s_cmp_eq_u32 s3, 3'); a(f's_cbranch_scc1 {Lnd}')
    for _ in range(delay-d2): a('s_sleep 1')
    a.lab(Lnd)
    loads2(L,36)
    for _ in range(d2): a('s_sleep 1')
    loads2(R,38); a(f's_waitcnt vmcnt({nl})')
    Ll=a.nl('Gl'); Llo=a.nl('Glo')
    a.lab(Ll)
    check(L); a(f's_cbranch_vccz {Llo}')
    loads(L,36); a('s_waitcnt vmcnt(0)'); a('s_add_u32 s100, s100, 1'); a('s_cmp_lt_u32 s100, 0x1000000'); a(f's_cbranch_scc1 {Ll}'); a('s_endpgm')
    a.lab(Llo)
    for i in range(nl):
        for nu in range(2): a(f'v_mfma_f32_16x16x32_bf16 {V(D+8*i+4*nu,4)}, {V(L+4*i,4)}, {V(vSEL if nu==0 else selh,4)}, 0')
    a('s_waitcnt vmcnt(0)')
    Lr=a.nl('Gr'); Lro=a.nl('Gro')
    a.lab(Lr)
    if STAMPS==True: a('s_add_u32 s97, s97, 1')
    check(R); a(f's_cbranch_vccz {Lro}')
    loads(R,38); a('s_waitcnt vmcnt(0)'); a('s_add_u32 s100, s100, 1'); a('s_cmp_lt_u32 s100, 0x1000000'); a(f's_cbranch_scc1 {Lr}'); a('s_endpgm')
    a.lab(Lro)
    stamp(a,0)
    def fin_i(i):
        for q in range(4): a(f'v_cvt_pk_bf16_f32 v{L+4*i+q}, v{D+8*i+2*q}, v{D+8*i+2*q+1}')
        if i<nl-1: a(f'ds_write_b128 v{vAW}, {V(L+4*i,4)} offset:{lds[i]}')
        else: a(f'ds_write_b128 v{vAW3}, {V(L+4*i,4)}')
    for i in range(nl):
        for nu in range(2): a(f'v_mfma_f32_16x16x32_bf16 {V(D+8*i+4*nu,4)}, {V(R+4*i,4)}, {V(vSEL if nu==0 else selh,4)}, {V(D+8*i+4*nu,4)}')
        if i>=2: fin_i(i-2)
    fin_i(nl-2); fin_i(nl-1)
    a('s_waitcnt lgkmcnt(0)')
    a.lab(Lskip)
    a('s_barrier')
    stamp(a,1)
    for t in range(10):
        a(f'ds_read_b128 {V(AF+4*t,4)}, v{vAR} offset:{t*1024}')
GREM=80; GDD=56

def half_sum_pack(t0, t1, out):
    L=[]
    for i in range(4): L.append(f'v_permlane32_swap_b32 v{t0+i}, v{t1+i}')
    L.append(f'v_pk_add_f32 {V(t0,2)}, {V(t0,2)}, {V(t1,2)}')
    L.append(f'v_pk_add_f32 {V(t0+2,2)}, {V(t0+2,2)}, {V(t1+2,2)}')
    if out is not None:
        L.append(f'v_cvt_pk_bf16_f32 v{out}, v{t0}, v{t0+1}')
        L.append(f'v_cvt_pk_bf16_f32 v{out+1}, v{t0+2}, v{t0+3}')
    return L

def slot_base(dst, off, slotsz, stepreg, add=0, tmp='s44'):
    L=[]
    if add: L+= [f's_add_u32 {tmp}, {stepreg}, {add&0xffffffff}', f's_and_b32 {tmp}, {tmp}, 3']
    else: L.append(f's_and_b32 {tmp}, {stepreg}, 3')
    L+=[f's_mul_i32 {tmp}, {tmp}, {slotsz}', f's_add_u32 {tmp}, {tmp}, {off}', f's_add_u32 s{dst}, s4, {tmp}', f's_addc_u32 s{dst+1}, s5, 0']
    return L
def poll_flag(a, offreg_s):
    Lw=a.nl('pf')
    a(f'v_mov_b32 v{T0}, {offreg_s}')
    a.lab(Lw)
    a(f'global_load_dword v{T1}, v{T0}, s[4:5] sc1'); a('s_waitcnt vmcnt(0)')
    a(f'v_cmp_eq_u32 vcc, 0, v{T1}')
    a.retry('s_cbranch_vccnz',Lw)
def emit(a,L):
    for x in L: a(x)

STAMPS=False
ARRIVE=None
SYNC=None
EVSTEP=30
def stamp(a,i):
    if not STAMPS: return
    if STAMPS=='ev':
        L=a.nl('ev')
        a(f's_cmp_lg_u32 s30, {EVSTEP}'); a(f's_cbranch_scc1 {L} ; @fwd')
        a('s_memrealtime s[82:83]'); a('s_waitcnt lgkmcnt(0)'); a(f's_mov_b32 s{84+i}, s82')
        a(f'{L}: ; @end')
        return
    a('s_memtime s[82:83]'); a('s_waitcnt lgkmcnt(0)'); a('s_sub_u32 s99, s82, s98'); a(f's_add_u32 s{84+i}, s{84+i}, s99'); a('s_mov_b32 s98, s82')
def stamp_init(a):
    if not STAMPS: return
    for i in range(14): a(f's_mov_b32 s{84+i}, 0')
    a('s_memtime s[82:83]'); a('s_waitcnt lgkmcnt(0)'); a('s_mov_b32 s98, s82')
def stamp_dump(a, cond_regs, base):
    if not STAMPS: return
    L=a.nl('sd')
    if STAMPS=='ev':
        a('s_lshl_b32 s40, s15, 4'); a('s_add_u32 s40, s40, s14'); a('s_lshl_b32 s40, s40, 2'); a('s_add_u32 s40, s40, s3'); a('s_lshl_b32 s40, s40, 6')
        a(f's_add_u32 s40, s40, {base if base==FL_END else FL_END+8192}')
    else:
        a('s_or_b32 s40, s15, s14'); a('s_cmp_lg_u32 s40, 0'); a(f's_cbranch_scc1 {L}')
        a('s_lshl_b32 s40, s3, 6'); a(f's_add_u32 s40, s40, {base}')
    a('v_mov_b32 v30, s40')
    for i in range(14):
        a(f'v_mov_b32 v31, s{84+i}'); a(f'global_store_dword v30, v31, s[4:5] offset:{4*i}')
    if STAMPS=='ev': a('v_mov_b32 v31, s81'); a('global_store_dword v30, v31, s[4:5] offset:56')
    a.lab(L)

CSC=0x3e0293ee
def softmax_part1(a, D, S, vBI, vMW, EX):
    m,l=EX,EX+2; u=T4
    a(f'v_pk_add_f32 {V(D,2)}, {V(D,2)}, {V(vBI,2)}'); a(f'v_pk_add_f32 {V(D+2,2)}, {V(D+2,2)}, {V(vBI,2)}')
    a(f'v_max3_f32 v{m}, v{D}, v{D+1}, v{D+2}'); a(f'v_max_f32 v{m}, v{m}, v{D+3}')
    a(f'v_mov_b32 v{u}, v{m}'); a(f'v_permlane16_swap_b32 v{m}, v{u}'); a(f'v_max_f32 v{m}, v{m}, v{u}')
    a(f'v_mov_b32 v{u}, v{m}'); a(f'v_permlane32_swap_b32 v{m}, v{u}'); a(f'v_max_f32 v{m}, v{m}, v{u}')
    a(f'v_pk_mul_f32 {V(T2,2)}, {V(m,2)}, s[66:67] op_sel_hi:[0,1]')
    a(f'v_pk_fma_f32 {V(S,2)}, {V(D,2)}, s[66:67], {V(T2,2)} neg_lo:[0,0,1] neg_hi:[0,0,1]')
    a(f'v_pk_fma_f32 {V(S+2,2)}, {V(D+2,2)}, s[66:67], {V(T2,2)} neg_lo:[0,0,1] neg_hi:[0,0,1]')
    for i in range(4): a(f'v_exp_f32 v{S+i}, v{S+i}')
    a(f'v_pk_add_f32 {V(T2,2)}, {V(S,2)}, {V(S+2,2)}'); a(f'v_add_f32 v{l}, v{T2}, v{T3}')
    a(f'v_mov_b32 v{u}, v{l}'); a(f'v_permlane16_swap_b32 v{l}, v{u}'); a(f'v_add_f32 v{l}, v{l}, v{u}')
    a(f'v_mov_b32 v{u}, v{l}'); a(f'v_permlane32_swap_b32 v{l}, v{u}'); a(f'v_add_f32 v{l}, v{l}, v{u}')
    a(f'ds_write_b128 v{vMW}, {V(EX,4)}')

def gen_QK(a, safe=False, nsteps=NSTEP, prof=None):
    ST=' sc1' if safe else ''
    vFW=10; vFR=11; vKX=12; vPS=13; vKM=23; vMW=24; vMR=25
    vSL=26; vSH=27; vNI=28; vPF=14; vZC=15; SEN2=132; ZC=164
    KX=112; vR=180; SELH=186; DUM=128
    SEN=112
    FF=56
    SD=36; SE=40; ML=44; EX=160
    GLx=36
    n,g,x,y=T0,T1,T2,T3
    a.c('================ QK role ================')
    masks(a)
    a('s_load_dwordx2 s[8:9], s[0:1], %d'%KA['Wq']); a('s_load_dwordx2 s[10:11], s[0:1], %d'%KA['Wk'])
    a('s_waitcnt lgkmcnt(0)')
    a(f'v_lshrrev_b32 v{T4}, 4, v1'); a(f'v_lshlrev_b32 v{T4}, 13, v{T4}'); a(f'v_and_b32 v{T5}, 15, v1'); a(f'v_lshl_add_u32 v{T4}, v{T5}, 4, v{T4}')
    a('s_cmp_lt_u32 s3, 2'); a('s_cselect_b32 s12, s8, s10'); a('s_cselect_b32 s13, s9, s11')
    a('s_and_b32 s40, s3, 1'); a('s_lshl_b32 s40, s40, 18')
    a('s_lshl_b32 s41, s16, 8'); a('s_add_u32 s40, s40, s41')
    a('s_add_u32 s12, s12, s40'); a('s_addc_u32 s13, s13, 0')
    a('s_mov_b32 s43, 32768')
    def srcs(r):
        a(f's_add_u32 s40, s12, {r*64*8192}'); a('s_addc_u32 s41, s13, 0')
    tr_addr16(a,vFW)
    def trs(r,bufoff):
        tr_B16(a,vFW,bufoff,[(0,0,(0*10+r)*8),(0,1,(1*10+r)*8),(1,0,(2*10+r)*8),(1,1,(3*10+r)*8)])
    load_weights(a,srcs,trs)
    if SYNC: SYNC(a)
    common_consts(a,SELH,3); lp_const(a,29)
    a('s_mul_i32 s18, s15, 10240'); a('s_sub_u32 s19, 1, s15'); a('s_mul_i32 s19, s19, 10240'); a('s_add_u32 s19, s19, 20480')
    a(f'v_and_b32 v{n}, 15, v1'); a(f'v_lshrrev_b32 v{g}, 4, v1')
    a(f'v_lshrrev_b32 v{x}, 5, v1'); a(f'v_lshlrev_b32 v{x}, 4, v{x}'); a(f'v_add_u32 v{x}, v{x}, v{n}')
    a('s_lshl_b32 s40, s3, 5'); a(f'v_add_u32 v{x}, s40, v{x}'); a(f'v_lshlrev_b32 v{x}, 5, v{x}')
    a(f'v_and_b32 v{y}, 1, v{g}'); a(f'v_lshl_add_u32 v{x}, v{y}, 3, v{x}'); a(f'v_add_u32 v{vFW}, {LDS_F}, v{x}')
    a(f'v_bfe_u32 v{x}, v1, 2, 2'); a(f'v_lshl_add_u32 v{x}, v{g}, 3, v{x}'); a(f'v_lshlrev_b32 v{x}, 5, v{x}')
    a(f'v_and_b32 v{y}, 3, v1'); a(f'v_lshl_add_u32 v{x}, v{y}, 3, v{x}'); a(f'v_add_u32 v{vFR}, {LDS_F}, v{x}')
    a('s_sub_u32 s40, s3, 1'); a('s_and_b32 s40, s40, 1'); a('s_lshl_b32 s40, s40, 8'); a('s_add_u32 s40, s40, 4096')
    a(f'v_lshlrev_b32 v{x}, 9, v{g}'); a(f'v_lshl_add_u32 v{x}, v{n}, 4, v{x}'); a(f'v_add_u32 v{vKX}, s40, v{x}')
    a(f'v_lshlrev_b32 v{x}, 3, v{g}'); a(f'v_add_u32 v{x}, v{x}, v{n}'); a(f'v_lshlrev_b32 v{x}, 4, v{x}')
    a('s_sub_u32 s40, s3, 1'); a('s_and_b32 s40, s40, 1'); a('s_lshl_b32 s40, s40, 3')
    a('s_lshl_b32 s41, s14, 9'); a('s_add_u32 s40, s40, s41'); a('s_lshl_b32 s41, s15, 13'); a('s_add_u32 s40, s40, s41')
    a(f'v_add_u32 v{vPS}, s40, v{x}')
    a(f'v_and_b32 v{x}, 1, v{g}'); a(f'v_lshlrev_b32 v{x}, 3, v{x}'); a(f'v_lshl_add_u32 v{x}, v{n}, 4, v{x}')
    a('s_lshl_b32 s41, s14, 7'); a('s_lshl_b32 s42, s15, 11'); a('s_add_u32 s41, s41, s42'); a(f's_add_u32 s41, s41, {PM_REL}')
    a(f'v_add_u32 v{x}, s41, v{x}')
    a('s_cmp_eq_u32 s3, 0'); a('s_cselect_b64 vcc, -1, 0'); a(f'v_cndmask_b32 v{vPS}, v{vPS}, v{x}, vcc')
    a('s_lshl_b32 s40, s14, 7'); a('s_lshl_b32 s42, s15, 11'); a('s_add_u32 s40, s40, s42'); a(f's_add_u32 s40, s40, {PM_REL}'); a(f'v_and_b32 v{y}, 7, v1'); a(f'v_lshlrev_b32 v{y}, 4, v{y}'); a(f'v_add_u32 v{vR}, s40, v{y}')
    a('s_lshl_b32 s40, s14, 9'); a('s_lshl_b32 s42, s15, 13'); a('s_add_u32 s40, s40, s42'); a(f'v_and_b32 v{y}, 31, v1'); a(f'v_lshlrev_b32 v{y}, 4, v{y}'); a(f'v_add_u32 v{vR+1}, s40, v{y}')
    a(f'v_lshlrev_b32 v{x}, 7, v{g}'); a(f'v_lshl_add_u32 v{x}, v{n}, 4, v{x}'); a(f'v_subrev_u32 v{vKM}, 128, v{x}')
    a(f'v_lshlrev_b32 v{x}, 4, v{n}'); a(f'v_add_u32 v{vMR}, {LDS_ML2}, v{x}'); a('s_lshl_b32 s40, s3, 8'); a(f'v_add_u32 v{vMW}, s40, v{vMR}')
    a(f'v_lshlrev_b32 v{vPF}, 6, v1')
    a('s_lshl_b32 s40, s15, 8'); a('s_lshl_b32 s41, s14, 2'); a('s_add_u32 s40, s40, s41'); a(f's_add_u32 s40, s40, {PF_OFF}'); a('v_mov_b32 v21, s40')
    a(f'v_mul_u32_u24 v{x}, 12288, v{g}'); a(f'v_lshl_add_u32 v{x}, v{n}, 4, v{x}')
    a('s_mul_i32 s40, s15, 196608'); a('s_mul_i32 s41, s14, 768'); a('s_add_u32 s40, s40, s41'); a('s_mul_i32 s41, s3, 49152'); a('s_add_u32 s40, s40, s41')
    a(f'v_add_u32 v{vZC}, s40, v{x}')
    a('s_movk_i32 s41, 256'); a('s_cmp_lt_u32 s3, 2'); a('s_cselect_b32 s40, 512, s41'); a(f'v_add_u32 v{vZC+1}, s40, v{vZC}')
    for i in range(4): a(f'v_mov_b32 v{SEN2+i}, -1')
    a('s_cmp_eq_u32 s3, 0'); a('s_cselect_b32 s40, -1, 0'); a('s_mov_b32 s41, 0')
    a(f'v_mov_b32 v{x}, 0xff800000'); a(f'v_cndmask_b32 v26, 0, v{x}, s[40:41]'); a('v_mov_b32 v27, v26')
    for i in range(4): a(f'v_mov_b32 v{SEN+i}, -1')
    a('s_cmp_eq_u32 s3, 0'); a('s_cselect_b32 s78, s62, s60'); a('s_cselect_b32 s79, s63, s61')
    def km_flag(add):
        a(f's_add_u32 s46, s30, {add&0xffffffff}'); a('s_lshl_b32 s46, s46, 5'); a('s_add_u32 s46, s46, s16'); a('s_lshl_b32 s46, s46, 2'); a(f's_add_u32 s46, s46, {KMF_OFF}')
        a(f'v_mov_b32 v{T0}, s46'); a(f'v_mov_b32 v{T1}, 1')
        a(f'global_store_dword v{T0}, v{T1}, s[4:5] sc1')
    def km_store():
        for t in range(4):
            a(f'ds_read_b64_tr_b16 {V(FF+4*t,2)}, v{vFR} offset:{t*1024}'); a(f'ds_read_b64_tr_b16 {V(FF+4*t+2,2)}, v{vFR} offset:{t*1024+128}')
        a('s_lshl_b32 s46, s30, 5'); a('s_add_u32 s46, s46, s16'); a('s_lshl_b32 s46, s46, 11'); a(f's_add_u32 s46, s46, {WS_KM}')
        a('s_add_u32 s56, s4, s46'); a('s_addc_u32 s57, s5, 0')
        a('s_waitcnt lgkmcnt(0)')
        a('s_mov_b64 exec, s[72:73]')
        for t in range(4): a(f'global_store_dwordx4 v{vKM}, {V(FF+4*t,4)}, s[56:57] offset:{t*512} sc1')
        a('s_mov_b64 exec, -1')
    def flags_wait(kadd, uadd=None):
        a(f's_add_u32 s45, s30, {kadd}'); a('s_min_u32 s45, s45, 63')
        a('s_lshl_b32 s46, s45, 8'); a('s_lshr_b32 s47, s16, 1'); a('s_add_u32 s47, s47, 16'); a('s_lshl_b32 s47, s47, 2'); a('s_add_u32 s46, s46, s47'); a(f's_add_u32 s46, s46, {QKF_OFF}')
        a(f'v_mov_b32 v{T2}, s46')
        Lw=a.nl('vf'); a.lab(Lw)
        a(f'global_load_dword v{T3}, v{T2}, s[4:5] sc1'); a('s_waitcnt vmcnt(0)')
        a(f'v_cmp_eq_u32 vcc, 0, v{T3}'); a.retry('s_cbranch_vccnz',Lw)
    def prefetch_U(part=None, tgt=None, pace=0):
        if tgt is not None: a(f's_add_u32 s45, s30, {tgt}'); a('s_min_u32 s45, s45, 63')
        a('s_mov_b64 exec, s[64:65]')
        a('s_lshl_b32 s46, s45, 5'); a('s_add_u32 s46, s46, s16'); a('s_lshl_b32 s46, s46, 13'); a(f's_add_u32 s46, s46, {WS_K}'); a('s_add_u32 s48, s4, s46'); a('s_addc_u32 s49, s5, 0')
        for i in range(4):
            a(f'global_load_dword v{DUM}, v{vPF}, s[48:49] offset:{i*2048 if i<2 else i*2048-4096} sc1')
            if i==1: a('s_add_u32 s48, s48, 4096'); a('s_addc_u32 s49, s49, 0')
        a('s_mov_b64 exec, -1')
    def z_copy():
        emit(a,slot_base(54,Z_OFF,Z_SLOT,'s30'))
        a(f's_mul_i32 s44, s30, {ZG_STEP}'); a('s_add_u32 s56, s4, s44'); a('s_addc_u32 s57, s5, 0'); a(f's_add_u32 s56, s56, {WS_ZG}'); a('s_addc_u32 s57, s57, 0')
        Lz=a.nl('zc'); a.lab(Lz)
        a(f'global_load_dwordx4 {V(ZC,4)}, v{vZC}, s[54:55] sc1'); a(f'global_load_dwordx4 {V(ZC+4,4)}, v{vZC}, s[54:55] offset:256 sc1'); a(f'global_load_dwordx4 {V(ZC+8,4)}, v{vZC+1}, s[54:55] sc1')
        a('s_waitcnt vmcnt(0)')
        a(f'v_max3_u32 v{T0}, v{ZC}, v{ZC+2}, v{ZC+4}'); a(f'v_max3_u32 v{T0}, v{T0}, v{ZC+6}, v{ZC+8}'); a(f'v_max_u32 v{T0}, v{T0}, v{ZC+10}')
        a(f'v_cmp_eq_u32 vcc, -1, v{T0}'); a.retry('s_cbranch_vccnz',Lz)
        a(f'global_store_dwordx4 v{vZC}, {V(ZC,4)}, s[56:57] sc1'); a(f'global_store_dwordx4 v{vZC}, {V(ZC+4,4)}, s[56:57] offset:256 sc1'); a(f'global_store_dwordx4 v{vZC+1}, {V(ZC+8,4)}, s[56:57] sc1')
    def z_reset():
        emit(a,slot_base(54,Z_OFF,Z_SLOT,'s30',-1))
        a(f'global_store_dwordx4 v{vZC}, {V(SEN2,4)}, s[54:55]{ST}'); a(f'global_store_dwordx4 v{vZC}, {V(SEN2,4)}, s[54:55] offset:256{ST}'); a(f'global_store_dwordx4 v{vZC+1}, {V(SEN2,4)}, s[54:55]{ST}')
    def z_flag(add):
        a(f's_add_u32 s46, s30, {add&0xffffffff}'); a('s_lshl_b32 s46, s46, 5'); a('s_add_u32 s46, s46, s16'); a('s_lshl_b32 s46, s46, 2'); a(f's_add_u32 s46, s46, {ZF_OFF}')
        a(f'v_mov_b32 v{T0}, s46'); a(f'v_mov_b32 v{T1}, 1')
        a(f'global_store_dword v{T0}, v{T1}, s[4:5] sc1')
    a('s_mov_b32 s30, 0')
    flags_wait(0); flags_wait(1)
    if prof: a('s_memtime s[80:81]'); a('s_memrealtime s[24:25]'); a('s_waitcnt lgkmcnt(0)')
    stamp_init(a)
    Lstep=a.nl('QKstep'); Llast=a.nl('QKlast')
    a.lab(Lstep)
    Lnkx=a.nl('nkx')
    a('s_sub_u32 s46, s3, 1'); a('s_cmp_gt_u32 s46, 1'); a(f's_cbranch_scc1 {Lnkx}')
    a('s_lshl_b32 s46, s30, 5'); a('s_add_u32 s46, s46, s16'); a('s_lshl_b32 s46, s46, 13'); a(f's_add_u32 s46, s46, {WS_K}'); a('s_add_u32 s48, s4, s46'); a('s_addc_u32 s49, s5, 0')
    for t in range(4): a(f'global_load_dwordx4 {V(KX+4*t,4)}, v{vKX}, s[48:49] offset:{t*2048-4096}{KMOD}')
    a.lab(Lnkx)
    emit(a,g_bases(-1)+slot_base(52,PP_OFF,PP_SLOT,'s30')+[f'v_mov_b32 v{ACC+i}, 0' for i in range(16)]+['s_add_u32 s40, s30, 1','v_mov_b32 v22, s40',f'v_mov_b32 v{EX+1}, s40',f'v_mov_b32 v{EX+3}, s40'])
    stamp(a,11)
    G_phase(a,SELH,DELAY_QK,nw=3,L=36,R=144,D=56,lp=29)
    def mf(tl,t): return f'v_smfmac_f32_16x16x64_bf16 {V(ACC+4*tl,4)}, {V(AF+4*t,4)}, {wr((tl*10+t)*8,8)}, v{vIDX}'
    for t in range(5):
        a(f's_waitcnt lgkmcnt({9-t})')
        for tl in range(4): a(mf(tl,t))
    a('s_waitcnt lgkmcnt(0)')
    for t in range(5,10):
        for tl in (0,1): a(mf(tl,t))
    ep=half_sum_pack(ACC,ACC+4,GLx)+[f'ds_write_b64 v{vFW}, {V(GLx,2)}']
    seq=[mf(tl,t) for t in range(5,10) for tl in (2,3)]
    for i,m in enumerate(seq):
        a(m)
        if i>=3 and ep: a(ep.pop(0))
        if i>=5 and ep: a(ep.pop(0))
    emit(a,ep)
    emit(a,half_sum_pack(ACC+8,ACC+12,GLx+2)); a(f'ds_write_b64 v{vFW}, {V(GLx+2,2)} offset:16')
    a('s_waitcnt lgkmcnt(0)'); stamp(a,2); a('s_barrier'); stamp(a,3)
    a(f's_cmp_eq_u32 s30, {nsteps-1}'); a(f's_cbranch_scc1 {Llast}')
    Lw3=a.nl('w3'); Lb3=a.nl('b3'); Lx=a.nl('xs'); Lsm=a.nl('sm')
    a('s_cmp_eq_u32 s3, 3'); a(f's_cbranch_scc1 {Lw3}')
    for t in range(4):
        a(f'ds_read_b64_tr_b16 {V(FF+4*t,2)}, v{vFR} offset:{t*1024}'); a(f'ds_read_b64_tr_b16 {V(FF+4*t+2,2)}, v{vFR} offset:{t*1024+128}')
    a('s_cmp_lg_u32 s3, 0'); a(f's_cbranch_scc1 {Lx}')
    for t in range(4):
        a(f's_waitcnt lgkmcnt({6-2*t})')
        a(f'v_mfma_f32_16x16x32_bf16 {V(SD,4)}, {V(FF+4*t,4)}, {V(FF+4*t,4)}, {"0" if t==0 else V(SD,4)}')
    a(f's_branch {Lsm} ; @in')
    a.lab(Lx)
    for t in range(4):
        a(f's_waitcnt lgkmcnt({6-2*t})')
        a(f'v_mfma_f32_16x16x32_bf16 {V(SD,4)}, {V(KX+4*t,4)}, {V(FF+4*t,4)}, {"0" if t==0 else V(SD,4)}')
    a.lab(Lsm)
    if EWP_POS=='pre0':
        Lne0=a.nl('ne0'); a('s_cmp_lg_u32 s3, 2'); a(f's_cbranch_scc1 {Lne0} ; @fwd'); a('s_mov_b64 exec, 1'); a(f'global_store_dword v21, v22, s[4:5]{ST}'); a('s_mov_b64 exec, -1'); a(f'{Lne0}: ; @end')
    softmax_part1(a,SD,SE,26,vMW,EX)
    if EWP_POS=='pre':
        Lne1=a.nl('ne1'); a('s_cmp_lg_u32 s3, 2'); a(f's_cbranch_scc1 {Lne1} ; @fwd'); a('s_mov_b64 exec, 1'); a(f'global_store_dword v21, v22, s[4:5]{ST}'); a('s_mov_b64 exec, -1'); a(f'{Lne1}: ; @end')
    stamp(a,4)
    Lsh=a.nl('sh'); Lxw=a.nl('xw')
    a.lab(Lxw)
    for k in range(3): a(f'ds_read_b128 {V(ML+4*k,4)}, v{vMR} offset:{k*256}')
    a('s_waitcnt lgkmcnt(0)')
    a(f'v_min3_u32 v{T0}, v{ML+1}, v{ML+3}, v{ML+5}'); a(f'v_min3_u32 v{T0}, v{T0}, v{ML+7}, v{ML+9}'); a(f'v_min_u32 v{T0}, v{T0}, v{ML+11}')
    a(f'v_cmp_gt_u32 vcc, v22, v{T0}'); a.retry('s_cbranch_vccnz',Lxw)
    stamp(a,5)
    if EWP_POS=='post':
        Lne=a.nl('ne'); a('s_cmp_lg_u32 s3, 2'); a(f's_cbranch_scc1 {Lne} ; @fwd'); a('s_mov_b64 exec, 1'); a(f'global_store_dword v21, v22, s[4:5]{ST}'); a('s_mov_b64 exec, -1'); a(f'{Lne}: ; @end')
    nM,l=T1,T4
    a(f'v_max3_f32 v{T0}, v{ML}, v{ML+4}, v{ML+8}')
    a(f'v_mul_f32 v{nM}, s66, v{T0}')
    for k in range(3): a(f'v_fma_f32 v{ML+4*k}, v{ML+4*k}, s66, -v{nM}')
    a(f'v_fma_f32 v{T2}, v{EX}, s66, -v{nM}')
    for k in range(3): a(f'v_exp_f32 v{ML+4*k}, v{ML+4*k}')
    a(f'v_exp_f32 v{T2}, v{T2}')
    a(f'v_mul_f32 v{l}, v{ML}, v{ML+2}'); a(f'v_fmac_f32 v{l}, v{ML+4}, v{ML+6}'); a(f'v_fmac_f32 v{l}, v{ML+8}, v{ML+10}')
    a(f'v_rcp_f32 v{l}, v{l}')
    a(f'v_mul_f32 v{T2}, v{T2}, v{l}')
    a(f'v_pk_mul_f32 {V(SE,2)}, {V(SE,2)}, {V(T2,2)} op_sel_hi:[1,0]'); a(f'v_pk_mul_f32 {V(SE+2,2)}, {V(SE+2,2)}, {V(T2,2)} op_sel_hi:[1,0]')
    a(f'v_cvt_pk_bf16_f32 v{T0}, v{SE}, v{SE+1}'); a(f'v_cvt_pk_bf16_f32 v{T1}, v{SE+2}, v{SE+3}')
    a(f'v_min_u32 v{T0}, s70, v{T0}')
    a('s_mov_b64 exec, s[78:79]')
    a(f'global_store_dwordx2 v{vPS}, {V(T0,2)}, s[52:53]{ST}')
    a('s_mov_b64 exec, -1')
    if STAMPS=='ev':
        stamp(a,7); a('s_waitcnt vmcnt(0)'); stamp(a,8)
    a(f's_branch {Lsh}')
    a.lab(Lw3)
    Lnz=a.nl('nz'); a('s_cmp_eq_u32 s30, 0'); a(f's_cbranch_scc1 {Lnz}'); a('s_waitcnt vmcnt(0)'); z_flag(-1); a.lab(Lnz)
    for _ in range(W3_DELAY): a('s_sleep 1')
    km_store()
    emit(a,slot_base(58,PP_OFF,PP_SLOT,'s30',-1))
    a(f'global_store_dwordx4 v{vR}, {V(SEN,4)}, s[58:59]{ST}')
    a(f'global_store_dwordx4 v{vR+1}, {V(SEN,4)}, s[58:59]{ST}')
    flags_wait(2)
    km_flag(0)
    a.lab(Lsh)
    stamp(a,6)
    if 'noZC' not in EXP: z_copy()
    z_reset()
    stamp(a,10)
    a('s_add_u32 s30, s30, 1')
    a(f's_branch {Lstep}')
    a.lab(Llast)
    Ld=a.nl('d'); Ld2=a.nl('d2'); a('s_cmp_lg_u32 s3, 3'); a(f's_cbranch_scc1 {Ld}')
    a('s_waitcnt vmcnt(0)'); z_flag(-1)
    km_store(); a('s_waitcnt vmcnt(0)'); km_flag(0)
    a.lab(Ld)
    z_copy(); a('s_waitcnt vmcnt(0)'); a('s_barrier')
    a('s_cmp_lg_u32 s3, 3'); a(f's_cbranch_scc1 {Ld2}'); z_flag(0); a.lab(Ld2)
    if prof: prof(a)
    stamp_dump(a,None,FL_END)
    a('s_waitcnt vmcnt(0)')
    a('s_endpgm')

def vo_weight_load(a, vtmp, perm_e=False):
    a('s_load_dwordx2 s[8:9], s[0:1], %d'%KA['Wv']); a('s_load_dwordx2 s[10:11], s[0:1], %d'%KA['Wo'])
    a('s_waitcnt lgkmcnt(0)')
    a('s_lshl_b32 s40, s3, 18'); a('s_lshl_b32 s41, s16, 8'); a('s_add_u32 s40, s40, s41')
    a('s_add_u32 s8, s8, s40'); a('s_addc_u32 s9, s9, 0')
    a('s_mul_i32 s40, s16, 163840'); a('s_mul_i32 s41, s3, 40960'); a('s_add_u32 s40, s40, s41')
    a('s_add_u32 s10, s10, s40'); a('s_addc_u32 s11, s11, 0')
    def srcs(r):
        if r<5:
            a(f's_add_u32 s40, s8, {r*128*8192}'); a('s_addc_u32 s41, s9, 0'); a('s_mov_b32 s43, 32768')
            a(f'v_lshrrev_b32 v{T4}, 4, v1'); a(f'v_lshlrev_b32 v{T4}, 13, v{T4}')
        else:
            a(f's_add_u32 s40, s10, {(r-5)*256}'); a('s_addc_u32 s41, s11, 0'); a('s_mov_b32 s43, 5120')
            a(f'v_lshrrev_b32 v{T4}, 4, v1'); a(f'v_mul_u32_u24 v{T4}, 1280, v{T4}')
        a(f'v_and_b32 v{T5}, 15, v1'); a(f'v_lshl_add_u32 v{T4}, v{T5}, 4, v{T4}')
    tr_addr16(a,vtmp)
    def trs(r,bufoff):
        if r<5: bl=[(m,tp,(tp*10+2*r+m)*8) for m in range(2) for tp in range(2)]
        else:
            cb=r-5; bl=[(m,tp,160+((2*cb+tp)*2+m)*8) for m in range(2) for tp in range(2)]
        tr_B16(a,vtmp,bufoff,bl)
    load_weights(a,srcs,trs)

LDS_U0=40960; LDS_U1=40960+49152
UMOD=' sc1'; U_POS_V=(); U_POS_Z=(0,1,2,3); U_INLINE=True; U_SPLIT=0; U_PACE=0
def gen_VO(a, safe=False, nsteps=NSTEP, prof=None):
    ST=' sc1' if safe else ''
    vTW=10; vTR=11; vPFL=12; vZS=13; vZS2=14; SELH=186
    vL16=15; vPM=16; vZ=17; vZ2=18; vUR=19; vUR1=20; vPX=21; vRW=22; vRR=23; vP=24; vPRm=25; vR=26; vUF=28
    vGF=30-30+190
    LDS_T=LDS_F
    A2=36; ZA=56; ZP=46; ACCV=96
    UF=124; ZF=80; PXF=72; PMF=176; RA=96; SEN=180; GLx=36
    n,g,x,y=T0,T1,T2,T3
    a.c('================ VO role ================')
    masks(a)
    vo_weight_load(a,vTW)
    if SYNC: SYNC(a)
    common_consts(a,SELH,4); lp_const(a,29)
    a('s_mul_i32 s18, s15, 10240'); a('s_sub_u32 s19, 1, s15'); a('s_mul_i32 s19, s19, 10240'); a('s_add_u32 s19, s19, 20480')
    a(f'v_and_b32 v{n}, 15, v1'); a(f'v_lshrrev_b32 v{g}, 4, v1')
    a('s_lshr_b32 s40, s3, 1'); a('s_lshl_b32 s40, s40, 5'); a('s_and_b32 s41, s3, 1'); a('s_lshl_b32 s41, s41, 4'); a('s_add_u32 s40, s40, s41')
    a(f'v_lshrrev_b32 v{x}, 5, v1'); a(f'v_lshlrev_b32 v{x}, 3, v{x}'); a(f'v_add_u32 v{x}, s40, v{x}')
    a(f'v_lshrrev_b32 v{y}, 2, v{n}'); a(f'v_lshl_add_u32 v{x}, v{y}, 1, v{x}'); a(f'v_and_b32 v{y}, 1, v{n}'); a(f'v_add_u32 v{x}, v{x}, v{y}')
    a(f'v_lshlrev_b32 v{x}, 5, v{x}'); a(f'v_bfe_u32 v{y}, v{n}, 1, 1'); a(f'v_lshl_add_u32 v{x}, v{y}, 4, v{x}')
    a(f'v_and_b32 v{y}, 1, v{g}'); a(f'v_lshl_add_u32 v{x}, v{y}, 3, v{x}'); a(f'v_add_u32 v{vTW}, {LDS_T}, v{x}')
    a(f'v_bfe_u32 v{x}, v1, 2, 2'); a(f'v_lshl_add_u32 v{x}, v{g}, 3, v{x}'); a(f'v_lshlrev_b32 v{x}, 5, v{x}')
    a(f'v_and_b32 v{y}, 3, v1'); a(f'v_lshl_add_u32 v{x}, v{y}, 3, v{x}'); a(f'v_add_u32 v{vTR}, {LDS_T}, v{x}')
    a(f'v_lshrrev_b32 v{x}, 5, v1'); a('s_lshl_b32 s40, s3, 1'); a(f'v_add_u32 v{x}, s40, v{x}'); a(f'v_mul_u32_u24 v{x}, 12288, v{x}')
    a('s_mul_i32 s40, s15, 196608'); a('s_mul_i32 s41, s14, 768'); a('s_add_u32 s40, s40, s41'); a(f'v_add_u32 v{x}, s40, v{x}')
    a(f'v_lshl_add_u32 v{x}, v{n}, 4, v{x}'); a(f'v_and_b32 v{y}, 1, v{g}'); a(f'v_lshl_add_u32 v{vZS}, v{y}, 3, v{x}'); a(f'v_add_u32 v{vZS2}, 98304, v{vZS}')
    a(f'v_and_b32 v{x}, 15, v1'); a(f'v_lshlrev_b32 v{x}, 2, v{x}'); a('s_lshl_b32 s40, s15, 8'); a(f's_add_u32 s40, s40, {PF_OFF}'); a(f'v_add_u32 v{vPFL}, s40, v{x}')
    a(f'v_lshlrev_b32 v{vL16}, 4, v1')
    a('s_lshl_b32 s40, s15, 13'); a('s_lshl_b32 s41, s3, 11'); a('s_add_u32 s40, s40, s41'); a(f'v_add_u32 v{vPX}, s40, v{vL16}')
    a('s_lshl_b32 s40, s15, 11'); a('s_lshl_b32 s41, s3, 9'); a('s_add_u32 s40, s40, s41'); a(f's_add_u32 s40, s40, {PM_REL}')
    a(f'v_lshlrev_b32 v{x}, 7, v{g}'); a(f'v_lshl_add_u32 v{x}, v{n}, 4, v{x}'); a(f'v_add_u32 v{vPM}, s40, v{x}')
    a('s_mul_i32 s40, s15, 196608'); a('s_mul_i32 s41, s14, 12288'); a('s_add_u32 s40, s40, s41'); a('s_mul_i32 s41, s3, 3072'); a('s_add_u32 s40, s40, s41')
    a(f'v_mul_u32_u24 v{x}, 768, v{g}'); a(f'v_lshl_add_u32 v{x}, v{n}, 4, v{x}'); a(f'v_add_u32 v{vZ}, s40, v{x}')
    a('s_movk_i32 s41, 256'); a('s_cmp_lt_u32 s14, 8'); a('s_cselect_b32 s40, 512, s41'); a(f'v_add_u32 v{vZ2}, s40, v{vZ}')
    a('s_mul_i32 s41, s3, 12288'); a(f's_add_u32 s41, s41, {LDS_U0}'); a(f'v_add_u32 v{vUR}, s41, v{vL16}'); a(f'v_add_u32 v{vUR1}, 49152, v{vUR}')
    a('s_mul_i32 s40, s3, 1536'); a(f's_add_u32 s40, s40, {LDS_R}'); a(f'v_add_u32 v{vRW}, s40, v{vL16}')
    a('s_cmp_lt_u32 s14, 8'); a('s_cselect_b32 s40, 3, 2'); a('s_mov_b32 s77, s40')
    a(f'v_cmp_gt_u32 vcc, s40, v{g}'); a(f'v_cndmask_b32 v{y}, 0, v{g}, vcc')
    a(f'v_lshlrev_b32 v{y}, 4, v{y}'); a(f'v_add_u32 v{y}, s14, v{y}'); a(f'v_lshlrev_b32 v{y}, 4, v{y}'); a(f'v_add_u32 v{y}, v{y}, v{n}'); a(f'v_lshlrev_b32 v{y}, 4, v{y}')
    a(f'v_add_u32 v{vR}, s18, v{y}'); a(f'v_add_u32 v{vR+1}, 20480, v{vR}')
    a('s_lshl_b32 s40, s15, 7'); a('s_lshl_b32 s41, s14, 2'); a('s_add_u32 s40, s40, s41'); a(f's_add_u32 s40, s40, {GF_OFF}'); a(f'v_mov_b32 v{vGF}, s40')
    a(f'v_and_b32 v{x}, 15, v1'); a(f'v_lshlrev_b32 v{x}, 2, v{x}'); a('s_lshl_b32 s40, s15, 6'); a(f's_add_u32 s40, s40, {UF_OFF}'); a(f'v_add_u32 v{vUF}, s40, v{x}')
    a(f'v_lshrrev_b32 v{n}, 5, v0'); a(f'v_bfe_u32 v{g}, v0, 1, 4'); a(f'v_and_b32 v{x}, 1, v0')
    a(f'v_lshlrev_b32 v{y}, 5, v{n}'); a(f'v_lshl_add_u32 v{y}, v{x}, 4, v{y}'); a(f'v_add_u32 v{y}, v{y}, v{g}'); a(f'v_lshlrev_b32 v{y}, 4, v{y}'); a(f'v_add_u32 v{vRR}, {LDS_R}, v{y}')
    a(f'v_lshlrev_b32 v{y}, 4, v{n}'); a(f'v_add_u32 v{y}, s14, v{y}'); a(f'v_lshlrev_b32 v{y}, 4, v{y}'); a(f'v_add_u32 v{y}, v{y}, v{g}'); a(f'v_lshlrev_b32 v{y}, 4, v{y}')
    a(f'v_lshl_add_u32 v{y}, v{x}, 3, v{y}'); a(f'v_add_u32 v{vP}, s18, v{y}'); a(f'v_add_u32 v{vPRm}, 20480, v{vP}')
    for i in range(4): a(f'v_mov_b32 v{PMF+i}, 0')
    for i in range(4): a(f'v_mov_b32 v{SEN+i}, -1')
    a('s_cmp_eq_u32 s3, 0'); a('s_cselect_b32 s74, -1, 0'); a('s_cselect_b32 s75, -1, 0')
    a('s_cmp_eq_u32 s3, 1'); a('s_cselect_b32 s40, 1, 0'); a('s_cmp_lt_u32 s14, 8'); a('s_cselect_b32 s41, 1, 0'); a('s_and_b32 s40, s40, s41')
    a('s_cmp_eq_u32 s40, 1'); a('s_cselect_b32 s74, -1, s74')
    a('s_or_b32 s76, s74, s75')
    a('s_mul_i32 s33, s15, 786432'); a('s_mul_i32 s40, s14, 49152'); a('s_add_u32 s33, s33, s40'); a('s_mul_i32 s40, s3, 12288'); a('s_add_u32 s33, s33, s40'); a(f's_add_u32 s71, s40, {LDS_U0}')
    a('s_load_dwordx2 s[8:9], s[0:1], %d'%KA['mem0'])
    a(f's_add_u32 s34, s4, {P_OFF+3*P_SLOT}'); a('s_addc_u32 s35, s5, 0')
    a('s_waitcnt lgkmcnt(0)')
    Lskip=a.nl('Pinit'); Lz=a.nl('Pz')
    a('s_cmp_eq_u32 s76, 0'); a(f's_cbranch_scc1 {Lskip}')
    a('s_mov_b64 exec, s[74:75]')
    a(f'v_subrev_u32 v{T0}, s18, v{vP}'); a(f'v_lshrrev_b32 v{T0}, 4, v{T0}'); a(f'v_lshlrev_b32 v{T0}, 1, v{T0}')
    a(f'v_and_b32 v{T1}, 1, v0'); a(f'v_mul_u32_u24 v{T1}, 5120, v{T1}'); a(f'v_add_u32 v{T0}, v{T0}, v{T1}')
    a(f'v_mov_b32 v{T2}, 0'); a(f'v_mov_b32 v{T3}, 0')
    a('s_cmp_lg_u32 s15, 0'); a(f's_cbranch_scc1 {Lz}')
    a(f'global_load_ushort v{T2}, v{T0}, s[8:9]'); a(f'global_load_ushort v{T4}, v{T0}, s[8:9] offset:1280')
    a(f'global_load_ushort v{T3}, v{T0}, s[8:9] offset:2560'); a(f'global_load_ushort v{T5}, v{T0}, s[8:9] offset:3840')
    a('s_waitcnt vmcnt(0)')
    a(f'v_lshl_or_b32 v{T2}, v{T4}, 16, v{T2}'); a(f'v_lshl_or_b32 v{T3}, v{T5}, 16, v{T3}')
    a(f'v_min_u32 v{T2}, s70, v{T2}')
    a.lab(Lz)
    a(f'global_store_dwordx2 v{vP}, {V(T2,2)}, s[34:35]{ST}')
    a(f'global_store_dwordx2 v{vPRm}, {V(T2,2)}, s[34:35] sc1')
    a(f'v_mov_b32 v{T4}, 1'); a(f'global_store_dword v{vGF}, v{T4}, s[4:5]{ST}')
    a('s_mov_b64 exec, -1')
    a.lab(Lskip)
    def uflag(add):
        a(f's_add_u32 s45, s30, {add}'); a('s_min_u32 s45, s45, 63'); a('s_lshl_b32 s46, s45, 7'); a(f'v_add_u32 v{T0}, s46, v{vUF}')
        Lw=a.nl('uf'); a.lab(Lw)
        a(f'global_load_dword v{T1}, v{T0}, s[4:5] sc1'); a('s_waitcnt vmcnt(0)'); a(f'v_cmp_eq_u32 vcc, 0, v{T1}'); a.retry('s_cbranch_vccnz',Lw)
    def pre(add):
        return [f's_add_u32 s45, s30, {add}','s_min_u32 s45, s45, 63',f's_mul_i32 s44, s45, {U_SEG}','s_add_u32 s44, s44, s33','s_add_u32 s28, s4, s44','s_addc_u32 s29, s5, 0',f's_add_u32 s28, s28, {WS_U}','s_addc_u32 s29, s29, 0',
                's_and_b32 s46, s45, 1','s_mul_i32 s46, s46, 49152','s_add_u32 s32, s46, s71']
    def dma_group():
        if 'noU' in EXP: return []
        L=['s_mov_b32 m0, s32',f'global_load_lds_dwordx4 v{vL16}, s[28:29]{UMOD}',f'global_load_lds_dwordx4 v{vL16}, s[28:29] offset:1024{UMOD}']
        Ln=a.nl('dg')
        L+=['s_cmp_lt_u32 s77, 3',f's_cbranch_scc1 {Ln} ; @fwd',f'global_load_lds_dwordx4 v{vL16}, s[28:29] offset:2048{UMOD}',f'{Ln}: ; @end','s_add_u32 s28, s28, 3072','s_addc_u32 s29, s29, 0','s_add_u32 s32, s32, 3072']
        return L
    a('s_mov_b32 s30, 0')
    uflag(0); emit(a,pre(0))
    for _ in range(4): emit(a,dma_group())
    uflag(1)
    stamp_init(a)
    Lstep=a.nl('VOstep'); Llast=a.nl('VOlast')
    a.lab(Lstep)
    emit(a,g_bases(-1)+[f'v_mov_b32 v{ACCV+i}, 0' for i in range(8)]+slot_base(54,Z_OFF,Z_SLOT,'s30')+slot_base(52,PP_OFF,PP_SLOT,'s30')+slot_base(34,P_OFF,P_SLOT,'s30')+slot_base(26,P_OFF,P_SLOT,'s30',-2)+['s_add_u32 s40, s30, 2',f'v_mov_b32 v{vGF+1}, s40']+pre(1))
    stamp(a,11)
    G_phase(a,SELH,DELAY_VO,nw=4,L=36,R=80,D=56,lp=29,gate=VO_GATE,d2o=VO_D2)
    vm=[]
    for t in range(10):
        vm.append(f's_waitcnt lgkmcnt({9-t})')
        for tl in (0,1): vm.append(f'v_smfmac_f32_16x16x64_bf16 {V(ACCV+4*tl,4)}, {V(AF+4*t,4)}, {wr((tl*10+t)*8,8)}, v{vIDX}')
    nm=0
    for m in vm:
        a(m)
        if m.startswith('v_smfmac'):
            nm+=1
            if nm%2==0:
                t=nm//2-1
                for i in range(4): a(f'v_mov_b32 v{AF+4*t+i}, 0')
            if nm in U_POS_V: emit(a,dma_group())
    emit(a,half_sum_pack(ACCV,ACCV+4,44))
    a(f'ds_write_b64 v{vTW}, {V(44,2)}')
    a('s_waitcnt lgkmcnt(0)'); stamp(a,2); a('s_barrier'); stamp(a,3)
    for t2 in range(2):
        a(f'ds_read_b64_tr_b16 {V(A2+4*t2,2)}, v{vTR} offset:{t2*1024}'); a(f'ds_read_b64_tr_b16 {V(A2+4*t2+2,2)}, v{vTR} offset:{t2*1024+128}')
    a('s_waitcnt lgkmcnt(0)')
    def zfin(cb):
        z0=ZA+8*cb
        L=half_sum_pack(z0,z0+4,ZP+2*cb)
        L+=[f'v_min_u32 v{ZP+2*cb}, s70, v{ZP+2*cb}']
        L+=[f'global_store_dwordx2 v{vZS2 if cb%2 else vZS}, {V(ZP+2*cb,2)}, s[54:55] offset:{256*(cb//2)}{ST}']
        return L
    pend=[]
    for cb in range(5):
        z0=ZA+8*cb
        for t2 in range(2):
            for dl in range(2):
                u=2*cb+dl
                a(f'v_smfmac_f32_16x16x64_bf16 {V(z0+4*dl,4)}, {V(A2+4*t2,4)}, {wr(160+(u*2+t2)*8,8)}, v{vIDX}')
                for _ in range(3):
                    if pend and not (t2==0 and dl==0): a(pend.pop(0))
        emit(a,pend); pend=zfin(cb)
        if cb in U_POS_Z: emit(a,dma_group())
    emit(a,pend)
    stamp(a,4)
    a(f's_cmp_eq_u32 s30, {nsteps-1}'); a(f's_cbranch_scc1 {Llast}')
    Lb1=a.nl('ub1'); Lb2=a.nl('ub2')
    a('s_bitcmp1_b32 s30, 0'); a(f's_cbranch_scc1 {Lb1}')
    for j in range(4):
        for k in range(3): a(f'ds_read_b128 {V(UF+(k*4+j)*4,4)}, v{vUR} offset:{j*3072+k*1024}')
    a(f's_branch {Lb2}')
    a.lab(Lb1)
    for j in range(4):
        for k in range(3): a(f'ds_read_b128 {V(UF+(k*4+j)*4,4)}, v{vUR1} offset:{j*3072+k*1024}')
    a.lab(Lb2)
    zl=[f'global_load_dwordx4 {V(ZF,4)}, v{vZ}, s[54:55] sc1', f'global_load_dwordx4 {V(ZF+4,4)}, v{vZ}, s[54:55] offset:256 sc1', f'global_load_dwordx4 {V(ZF+8,4)}, v{vZ2}, s[54:55] sc1']
    for i in range(12): a(f'v_mov_b32 v{RA+i}, 0')
    stamp(a,6)
    flag_gate(a,vPFL,LDS_GO+4,True)
    stamp(a,5)
    Lp=a.nl('Sp'); Lp1=a.nl('Sp1')
    def ploads():
        a(f'global_load_dwordx4 {V(PXF,4)}, v{vPX}, s[52:53] sc1')
        a(f'global_load_dwordx4 {V(PXF+4,4)}, v{vPX}, s[52:53] offset:1024 sc1')
        a('s_mov_b64 exec, s[60:61]')
        a(f'global_load_dwordx4 {V(PMF,4)}, v{vPM}, s[52:53] sc1')
        a('s_mov_b64 exec, -1')
    ploads(); emit(a,zl)
    a('s_waitcnt vmcnt(3) lgkmcnt(0)')
    a(f's_branch {Lp1}')
    a.lab(Lp)
    ploads(); a('s_waitcnt vmcnt(0)')
    a.lab(Lp1)
    stamp(a,8)
    a(f'v_max3_u32 v{T0}, v{PXF}, v{PXF+2}, v{PXF+4}'); a(f'v_max3_u32 v{T0}, v{T0}, v{PXF+6}, v{PMF}'); a(f'v_max_u32 v{T0}, v{T0}, v{PMF+2}')
    a(f'v_cmp_eq_u32 vcc, -1, v{T0}'); a.retry('s_cbranch_vccnz',Lp)
    for q in range(2):
        for k in range(3): a(f'v_smfmac_f32_16x16x64_bf16 {V(RA+4*k,4)}, {V(PXF+4*q,4)}, {V(UF+(k*4+2*q)*4,8)}, v{vIDX}')
    a('s_waitcnt vmcnt(0)')
    Lzp=a.nl('Zp'); Lzo=a.nl('Zo')
    a.lab(Lzp)
    a(f'v_max3_u32 v{T0}, v{ZF}, v{ZF+2}, v{ZF+4}'); a(f'v_max3_u32 v{T0}, v{T0}, v{ZF+6}, v{ZF+8}'); a(f'v_max_u32 v{T0}, v{T0}, v{ZF+10}')
    a(f'v_cmp_eq_u32 vcc, -1, v{T0}'); a(f's_cbranch_vccz {Lzo}')
    emit(a,zl); a('s_waitcnt vmcnt(0)'); a('s_add_u32 s100, s100, 1'); a('s_cmp_lt_u32 s100, 0x1000000'); a(f's_cbranch_scc1 {Lzp}'); a('s_endpgm')
    a.lab(Lzo)
    for k in range(3): a(f'v_mfma_f32_16x16x32_bf16 {V(RA+4*k,4)}, {V(PMF,4)}, {V(ZF+4*k,4)}, {V(RA+4*k,4)}')
    stamp(a,7)
    emit(a,half_sum_pack(RA,RA+4,None))
    a(f'ds_write_b128 v{vRW}, {V(RA,4)}')
    for i in range(4): a(f'v_mov_b32 v{RA+4+i}, v{RA+8+i}')
    emit(a,half_sum_pack(RA+8,RA+4,None))
    a('s_mov_b64 exec, s[64:65]'); a(f'ds_write_b128 v{vRW}, {V(RA+8,4)} offset:1024'); a('s_mov_b64 exec, -1')
    Lew=a.nl('ew'); a('s_cmp_lg_u32 s3, 2'); a(f's_cbranch_scc1 {Lew} ; @fwd'); a('s_mov_b64 exec, 1'); a(f'global_store_dword v{vGF}, v{vGF+1}, s[4:5]{ST}'); a('s_mov_b64 exec, -1'); a(f'{Lew}: ; @end')
    a('s_waitcnt lgkmcnt(0)'); stamp(a,9); a('s_barrier')
    Lnf2=a.nl('nfin'); Lnx=a.nl('nx')
    a('s_cmp_eq_u32 s76, 0'); a(f's_cbranch_scc1 {Lnf2}')
    a('s_mov_b64 exec, s[74:75]')
    for w in range(4): a(f'ds_read_b128 {V(GLx+4*w,4)}, v{vRR} offset:{w*1536}')
    a('s_waitcnt lgkmcnt(2)')
    a(f'v_pk_add_f32 {V(GLx,2)}, {V(GLx,2)}, {V(GLx+4,2)}'); a(f'v_pk_add_f32 {V(GLx+2,2)}, {V(GLx+2,2)}, {V(GLx+6,2)}')
    a('s_waitcnt lgkmcnt(0)')
    a(f'v_pk_add_f32 {V(GLx+8,2)}, {V(GLx+8,2)}, {V(GLx+12,2)}'); a(f'v_pk_add_f32 {V(GLx+10,2)}, {V(GLx+10,2)}, {V(GLx+14,2)}')
    a(f'v_pk_add_f32 {V(GLx,2)}, {V(GLx,2)}, {V(GLx+8,2)}'); a(f'v_pk_add_f32 {V(GLx+2,2)}, {V(GLx+2,2)}, {V(GLx+10,2)}')
    a(f'v_cvt_pk_bf16_f32 v{T0}, v{GLx}, v{GLx+1}'); a(f'v_cvt_pk_bf16_f32 v{T1}, v{GLx+2}, v{GLx+3}')
    a(f'v_min_u32 v{T0}, s70, v{T0}')
    a(f'global_store_dwordx2 v{vP}, {V(T0,2)}, s[34:35]{ST}')
    a(f'global_store_dwordx2 v{vPRm}, {V(T0,2)}, s[34:35] sc1')
    a('s_mov_b64 exec, -1')
    a(f's_branch {Lnx}')
    a.lab(Lnf2)
    a('s_cmp_lg_u32 s3, 3'); a(f's_cbranch_scc1 {Lnx}')
    a(f'global_store_dwordx4 v{vR+1}, {V(SEN,4)}, s[26:27] sc1'); a(f'global_store_dwordx4 v{vR}, {V(SEN,4)}, s[26:27]{ST}')
    uflag(2)
    a.lab(Lnx)
    stamp(a,10)
    a('s_add_u32 s30, s30, 1')
    a(f's_branch {Lstep}')
    a.lab(Llast)
    stamp_dump(a,None,FL_END+1024)
    a('s_waitcnt vmcnt(0)')
    a('s_endpgm')
```

```python
from asmgen import *
from layout import *
from chain import wr,V,load_weights,STG_BLK,STG_BUF,T0,T1,T2,T3,T4,T5,emit,poll_flag,masks,vo_weight_load,SCALE,L2E,interleave
PROF=False
SYNC=None
END=None
PRE=None
def prof_mark(a,r):
    if PROF: a(f's_memtime s[{r}:{r+1}]'); a(f's_memrealtime s[{r+8}:{r+9}]'); a('s_waitcnt lgkmcnt(0)')
def prof_dump(a):
    if not PROF: return
    L=a.nl('pd')
    prof_mark(a,84)
    a('s_cmp_lg_u32 s22, 0'); a(f's_cbranch_scc1 {L}'); a('s_cmp_lg_u32 s3, 0'); a(f's_cbranch_scc1 {L}')
    a('s_sub_u32 s86, s82, s80'); a('s_sub_u32 s87, s84, s82'); a('s_sub_u32 s94, s92, s88')
    a('v_mov_b32 v30, 64'); a('v_mov_b32 v31, s86'); a('global_store_dword v30, v31, s[6:7]'); a('v_mov_b32 v32, s87'); a('global_store_dword v30, v32, s[6:7] offset:4'); a('v_mov_b32 v33, s94'); a('global_store_dword v30, v33, s[6:7] offset:8')
    a.lab(L)

def x_touch(a, parreg):
    a('s_load_dwordx2 s[18:19], s[0:1], %d'%KA['x']); a('s_waitcnt lgkmcnt(0)')
    a(f's_mul_i32 s40, {parreg}, 40960'); a('s_add_u32 s40, s18, s40'); a('s_addc_u32 s41, s19, 0')
    a(f's_mul_i32 s42, s3, 192'); a(f'v_add_u32 v{T0}, s42, v1')
    for i in range(3):
        a(f'v_min_u32 v{T1}, 639, v{T0}'); a(f'v_lshlrev_b32 v{T1}, 6, v{T1}'); a(f'global_load_dword v28, v{T1}, s[40:41]'); a(f'v_add_u32 v{T0}, 64, v{T0}')
XB_SZ=40960

def x_dma_consts(a, vXD):
    a(f'v_lshrrev_b32 v{T0}, 3, v1'); a('s_lshl_b32 s40, s3, 3'); a(f'v_add_u32 v{T0}, s40, v{T0}')
    a(f'v_bfe_u32 v{T1}, v{T0}, 1, 3'); a(f'v_and_b32 v{T2}, 7, v1'); a(f'v_xor_b32 v{T1}, v{T1}, v{T2}')
    a(f'v_mul_u32_u24 v{T0}, 1280, v{T0}'); a(f'v_lshl_add_u32 v{vXD}, v{T1}, 4, v{T0}')
def x_dma(a, vXD, sbase, ldsbuf_s, g):
    return [f's_add_u32 m0, {ldsbuf_s}, {g*4096-g*128}', f'global_load_lds_dwordx4 v{vXD}, s[{sbase}:{sbase+1}] offset:{g*128}']

def gen_E1(a):
    vXD=2; vXR=4
    vOUT=8; vTR=9
    ACC=36
    BF=100
    PK=116
    LX0=0; LX1=XB_SZ
    a.c('================ E1 role ================')
    if PRE: PRE(a)
    x_touch(a,'s15')
    a('s_load_dwordx2 s[8:9], s[0:1], %d'%KA['Wq']); a('s_load_dwordx2 s[10:11], s[0:1], %d'%KA['Wk']); a('s_load_dwordx2 s[18:19], s[0:1], %d'%KA['x'])
    a('s_waitcnt lgkmcnt(0)')
    a('s_cmp_lt_u32 s14, 16'); a('s_cselect_b32 s12, s8, s10'); a('s_cselect_b32 s13, s9, s11')
    a('s_and_b32 s40, s14, 15'); a('s_lshl_b32 s40, s40, 9')
    a('s_lshr_b32 s41, s3, 1'); a('s_lshl_b32 s41, s41, 8'); a('s_add_u32 s40, s40, s41')
    a('s_and_b32 s41, s3, 1'); a('s_lshl_b32 s41, s41, 18'); a('s_add_u32 s40, s40, s41')
    a('s_add_u32 s12, s12, s40'); a('s_addc_u32 s13, s13, 0')
    a(f'v_lshrrev_b32 v{T4}, 4, v1'); a(f'v_lshlrev_b32 v{T4}, 13, v{T4}'); a(f'v_and_b32 v{T5}, 15, v1'); a(f'v_lshl_add_u32 v{T4}, v{T5}, 4, v{T4}')
    a('s_mov_b32 s43, 32768')
    def srcs(r):
        a(f's_add_u32 s40, s12, {r*64*8192}'); a('s_addc_u32 s41, s13, 0')
    a(f'v_lshrrev_b32 v{T0}, 5, v1'); a(f'v_lshlrev_b32 v{T0}, 1, v{T0}'); a('s_lshr_b32 s40, s3, 1'); a('s_lshl_b32 s40, s40, 4'); a(f'v_add_u32 v{T0}, s40, v{T0}')
    a(f'v_mul_u32_u24 v{vTR}, {STG_BLK}, v{T0}')
    a(f'v_bfe_u32 v{T0}, v1, 2, 2'); a(f'v_lshl_add_u32 v{vTR}, v{T0}, 8, v{vTR}')
    a(f'v_bfe_u32 v{T0}, v1, 4, 1'); a(f'v_lshl_add_u32 v{vTR}, v{T0}, 5, v{vTR}')
    a(f'v_and_b32 v{T0}, 3, v1'); a(f'v_lshl_add_u32 v{vTR}, v{T0}, 3, v{vTR}')
    a('s_and_b32 s40, s3, 1'); a('s_lshl_b32 s40, s40, 7'); a(f'v_add_u32 v{vTR}, s40, v{vTR}')
    def trs(r,bufoff):
        a(f'v_add_u32 v{T3}, {bufoff}, v{vTR}')
        for ct in range(2):
            for kk in range(4):
                for half in range(2):
                    idx=(ct*40+4*r+kk)*4+2*half
                    a(f'ds_read_b64_tr_b16 {wr(idx,2)}, v{T3} offset:{(4*kk+half)*STG_BLK+ct*64}')
    load_weights(a,srcs,trs)
    prof_mark(a,82)
    if SYNC: SYNC(a)
    x_dma_consts(a,vXD)
    a(f'v_and_b32 v{T0}, 31, v1'); a(f'v_lshrrev_b32 v{T1}, 5, v1'); a(f'v_bfe_u32 v{T2}, v{T0}, 1, 3')
    for q in range(4):
        a(f'v_add_u32 v{T3}, {2*q}, v{T1}'); a(f'v_xor_b32 v{T3}, v{T3}, v{T2}'); a(f'v_lshlrev_b32 v{T3}, 4, v{T3}'); a(f'v_lshl_add_u32 v{vXR+q}, v{T0}, 7, v{T3}'); a(f'v_add_u32 v{vXR+8+q}, {XB_SZ}, v{vXR+q}')
    a('s_lshr_b32 s40, s3, 1'); a('s_lshl_b32 s40, s40, 13'); a('s_and_b32 s41, s3, 1'); a('s_lshl_b32 s41, s41, 12'); a('s_add_u32 s40, s40, s41')
    a(f'v_lshlrev_b32 v{T3}, 9, v{T1}'); a(f'v_lshl_add_u32 v{T3}, v{T0}, 4, v{T3}'); a(f'v_add_u32 v{vOUT}, s40, v{T3}')
    a('s_cmp_lt_u32 s14, 16'); a(f's_mov_b32 s41, {WS_K}'); a(f's_cselect_b32 s20, {WS_Q}, s41'); a('s_and_b32 s40, s14, 15'); a('s_lshl_b32 s40, s40, 14'); a('s_add_u32 s20, s20, s40')
    a('s_lshl_b32 s21, s3, 10')
    def issue_x(segreg, buf):
        L=[f's_mul_i32 s44, {segreg}, 40960','s_add_u32 s46, s18, s44','s_addc_u32 s47, s19, 0', f's_add_u32 s45, s21, {buf}']
        for g in range(10): L+=x_dma(a,vXD,46,'s45',g)
        return L
    def epilogue(acc):
        L=[]
        for ct in range(2):
            for b in range(4):
                L.append(f'v_cvt_pk_bf16_f32 v{PK+8*ct+2*b}, v{acc+16*ct+4*b}, v{acc+16*ct+4*b+1}')
                L.append(f'v_cvt_pk_bf16_f32 v{PK+8*ct+2*b+1}, v{acc+16*ct+4*b+2}, v{acc+16*ct+4*b+3}')
            for b in (0,2):
                L.append(f'v_permlane32_swap_b32 v{PK+8*ct+2*b}, v{PK+8*ct+2*b+2}')
                L.append(f'v_permlane32_swap_b32 v{PK+8*ct+2*b+1}, v{PK+8*ct+2*b+3}')
            for b in (0,2):
                L.append(f'global_store_dwordx4 v{vOUT}, {V(PK+8*ct+2*b,4)}, s[48:49] offset:{(4*ct+b)*512} sc1')
        return L
    def out_base(segreg):
        return [f's_lshl_b32 s44, {segreg}, 18','s_add_u32 s44, s44, s20','s_add_u32 s48, s4, s44','s_addc_u32 s49, s5, 0']
    def flag(segreg):
        L=a.nl('ef')
        a('s_cmp_lg_u32 s3, 0'); a(f's_cbranch_scc1 {L}')
        a(f's_lshl_b32 s44, {segreg}, 8'); a('s_lshl_b32 s45, s14, 2'); a('s_add_u32 s44, s44, s45'); a(f's_add_u32 s44, s44, {QKF_OFF}')
        a(f'v_mov_b32 v{T0}, s44'); a(f'v_mov_b32 v{T1}, 1'); a(f'global_store_dword v{T0}, v{T1}, s[4:5] sc1')
        a.lab(L)
    def seg_compute(acc, buf, fillers):
        mains=[]
        PD=3
        def rd(k): return f'ds_read_b128 {V(BF+4*(k%4),4)}, v{vXR+(8 if buf else 0)+(k%4)} offset:{(k//4)*4096}'
        for k in range(PD): a(rd(k))
        f=list(fillers)
        for k in range(40):
            if k+PD<40: a(rd(k+PD))
            a(f's_waitcnt lgkmcnt({min(PD,39-k)})')
            for ct in range(2):
                a(f'v_mfma_f32_32x32x16_bf16 {V(acc+16*ct,16)}, {wr((ct*40+k)*4,4)}, {V(BF+4*(k%4),4)}, {"0" if k==0 else V(acc+16*ct,16)}')
                for _ in range(1 if ct==0 else 1):
                    if f and k>=1: a(f.pop(0))
        emit(a,f)
    a('s_mov_b32 s30, s15')
    emit(a,issue_x('s30',LX0))
    a('s_waitcnt vmcnt(0)'); a('s_barrier')
    Lloop=a.nl('E1l'); Lend=a.nl('E1e')
    a('s_add_u32 s31, s30, 2')
    seg_compute(ACC,LX0,issue_x('s31',LX1))
    emit(a,out_base('s30')); emit(a,epilogue(ACC))
    a('s_waitcnt vmcnt(0)'); a('s_barrier'); flag('s30')
    a.lab(Lloop)
    for ph in range(2):
        accC,accP=(ACC+32,ACC) if ph==0 else (ACC,ACC+32)
        bufC,bufN=(LX1,LX0) if ph==0 else (LX0,LX1)
        a('s_add_u32 s32, s31, 2'); a('s_min_u32 s32, s32, 63')
        f=out_base('s30')+epilogue(accP)+issue_x('s32',bufN)
        seg_compute(accC,bufC,f)
        a('s_waitcnt vmcnt(0)'); a('s_barrier')
        flag('s30')
        a('s_mov_b32 s30, s31'); a('s_add_u32 s31, s31, 2')
        Lfin=a.nl('E1f')
        a('s_cmp_ge_u32 s31, 64'); a(f's_cbranch_scc1 {Lend}_{ph}')
    a(f's_branch {Lloop}')
    for ph in range(2):
        accC=(ACC+32) if ph==0 else ACC
        a.lab(f'{Lend}_{ph}')
        emit(a,out_base('s30')); emit(a,epilogue(accC))
        a('s_waitcnt vmcnt(0)'); a('s_barrier'); flag('s30')
        prof_dump(a)
        if END: END(a)
        a('s_waitcnt vmcnt(0)'); a('s_endpgm')


def gen_VU(a):
    vXD=2; vXR=4
    vAW=8; vAR=9; vUS=10; vTMP=11
    VA=36
    BF=52
    AFR=68
    UA=100
    UP=116
    LX0=0; LX1=XB_SZ; LA=2*XB_SZ
    a.c('================ VU role ================')
    x_touch(a,'s17')
    vo_weight_load(a,vTMP)
    prof_mark(a,82)
    if SYNC: SYNC(a)
    a('s_load_dwordx2 s[18:19], s[0:1], %d'%KA['x'])
    x_dma_consts(a,vXD)
    n,g=T0,T1
    a(f'v_and_b32 v{n}, 15, v1'); a(f'v_lshrrev_b32 v{g}, 4, v1')
    a(f'v_bfe_u32 v{T2}, v{n}, 2, 1'); a(f'v_lshlrev_b32 v{T2}, 4, v{T2}'); a(f'v_lshrrev_b32 v{T3}, 3, v{n}'); a(f'v_lshl_add_u32 v{T2}, v{T3}, 3, v{T2}')
    a(f'v_bfe_u32 v{T3}, v{n}, 1, 1'); a(f'v_lshl_add_u32 v{T2}, v{T3}, 2, v{T2}'); a(f'v_and_b32 v{T3}, 1, v{n}'); a(f'v_add_u32 v{T2}, v{T2}, v{T3}')
    for tau in range(2):
        for kp in range(2):
            r=vXR+tau*2+kp
            a(f'v_add_u32 v{T3}, {2*tau}, v{T2}'); a(f'v_bfe_u32 v{T4}, v{T3}, 1, 3'); a(f'v_add_u32 v{T5}, {4*kp}, v{g}'); a(f'v_xor_b32 v{T4}, v{T4}, v{T5}')
            a(f'v_lshlrev_b32 v{T4}, 4, v{T4}'); a(f'v_lshl_add_u32 v{r}, v{T3}, 7, v{T4}'); a(f'v_add_u32 v{r+8}, {XB_SZ}, v{r}')
    a(f'v_lshrrev_b32 v{T2}, 1, v{g}'); a(f'v_lshl_add_u32 v{T2}, v{T2}, 4, v{n}'); a(f'v_lshlrev_b32 v{T2}, 4, v{T2}'); a(f'v_and_b32 v{T3}, 1, v{g}'); a(f'v_lshl_add_u32 v{T2}, v{T3}, 3, v{T2}')
    a('s_lshl_b32 s40, s3, 11'); a(f's_add_u32 s40, s40, {LA}'); a(f'v_add_u32 v{vAW}, s40, v{T2}')
    a(f'v_lshlrev_b32 v{T2}, 4, v1'); a(f'v_add_u32 v{vAR}, {LA}, v{T2}')
    a('s_mul_i32 s40, s15, 786432'); a('s_mul_i32 s41, s3, 98304'); a('s_add_u32 s40, s40, s41'); a('s_mul_i32 s41, s14, 3072'); a('s_add_u32 s40, s40, s41')
    a(f'v_add_u32 v{vUS}, s40, v{T2}')
    a('s_lshl_b32 s21, s3, 10')
    a('s_waitcnt lgkmcnt(0)')
    def issue_x(segreg, buf):
        L=[f's_mul_i32 s44, {segreg}, 40960','s_add_u32 s46, s18, s44','s_addc_u32 s47, s19, 0', f's_add_u32 s45, s21, {buf}']
        for gg in range(10): L+=x_dma(a,vXD,46,'s45',gg)
        return L
    def flag(segreg):
        L=a.nl('uf')
        a('s_cmp_lg_u32 s3, 0'); a(f's_cbranch_scc1 {L}')
        a(f's_lshl_b32 s44, {segreg}, 7'); a('s_lshl_b32 s45, s16, 2'); a('s_add_u32 s44, s44, s45'); a(f's_add_u32 s44, s44, {UF_OFF}')
        a(f'v_mov_b32 v{T0}, s44'); a(f'v_mov_b32 v{T1}, 1'); a(f'global_store_dword v{T0}, v{T1}, s[4:5] sc1')
        a.lab(L)
    def seg(buf, fillers):
        def rd(k):
            return [f'ds_read_b128 {V(BF+8*(k%2)+4*tau,4)}, v{vXR+(8 if buf else 0)+tau*2+(k%2)} offset:{(k//2)*4096}' for tau in range(2)]
        emit(a,rd(0))
        f=list(fillers)
        for k in range(20):
            if k+1<20: emit(a,rd(k+1))
            a(f's_waitcnt lgkmcnt({2 if k+1<20 else 0})')
            t,hB=k//2,k%2
            for dl in range(2):
                for tau in range(2):
                    acc=VA+(dl*2+tau)*4
                    a(f'v_mfma_f32_16x16x32_bf16 {V(acc,4)}, {wr((dl*10+t)*8+4*hB,4)}, {V(BF+8*(k%2)+4*tau,4)}, {"0" if k==0 else V(acc,4)}')
                if f: a(f.pop(0))
                if f: a(f.pop(0))
        emit(a,f)
        for dl in range(2):
            for tau in range(2):
                acc=VA+(dl*2+tau)*4
                a(f'v_cvt_pk_bf16_f32 v{T0+0}, v{acc}, v{acc+1}'); a(f'v_cvt_pk_bf16_f32 v{T1}, v{acc+2}, v{acc+3}')
                a(f'ds_write_b64 v{vAW}, {V(T0,2)} offset:{dl*512+tau*1024}')
        a('s_waitcnt lgkmcnt(0)'); a('s_barrier')
        for t in range(4):
            for tau in range(2): a(f'ds_read_b128 {V(AFR+(t*2+tau)*4,4)}, v{vAR} offset:{(t*2+tau)*1024}')
        a(f's_mul_i32 s44, s30, {U_SEG}'); a('s_add_u32 s50, s4, s44'); a('s_addc_u32 s51, s5, 0'); a(f's_add_u32 s50, s50, {WS_U}'); a('s_addc_u32 s51, s51, 0')
        a('s_waitcnt lgkmcnt(0)')
        def fin(u):
            cb,dl=u//2,u%2
            acc=UA+8*(u%2); pk=UP+4*(u%2)
            for tau in range(2):
                a(f'v_cvt_pk_bf16_f32 v{pk+2*tau}, v{acc+4*tau}, v{acc+4*tau+1}'); a(f'v_cvt_pk_bf16_f32 v{pk+2*tau+1}, v{acc+4*tau+2}, v{acc+4*tau+3}')
            c=(8*(cb%2)+dl)*49152+(cb//2)*1024
            a(f's_add_u32 s52, s50, {c}'); a('s_addc_u32 s53, s51, 0')
            a(f'global_store_dwordx4 v{vUS}, {V(pk,4)}, s[52:53] sc1')
        for u in range(10):
            acc=UA+8*(u%2)
            for t in range(4):
                for tau in range(2):
                    widx=160+(u*2+t//2)*8+4*(t%2)
                    a(f'v_mfma_f32_16x16x32_bf16 {V(acc+4*tau,4)}, {V(AFR+(t*2+tau)*4,4)}, {wr(widx,4)}, {"0" if t==0 else V(acc+4*tau,4)}')
                if t==1 and u>0: fin(u-1)
        fin(9)
    a('s_mov_b32 s30, s17')
    emit(a,issue_x('s30',LX0))
    a('s_waitcnt vmcnt(0)'); a('s_barrier')
    Ll=a.nl('VUl'); Le=a.nl('VUe')
    a.lab(Ll)
    for ph in range(2):
        bufC,bufN=(LX0,LX1) if ph==0 else (LX1,LX0)
        a('s_add_u32 s32, s30, 2'); a('s_min_u32 s32, s32, 63')
        seg(bufC,issue_x('s32',bufN))
        a('s_waitcnt vmcnt(0)'); a('s_barrier')
        flag('s30')
        a('s_add_u32 s30, s30, 2'); a('s_cmp_ge_u32 s30, 64'); a(f's_cbranch_scc1 {Le}')
    a(f's_branch {Ll}')
    a.lab(Le)
    prof_dump(a)
    if END: END(a)
    a('s_waitcnt vmcnt(0)'); a('s_endpgm')

def gen_E2(a, ngroups, loop=True):
    vQ=2; vK=3; vKM=4; vD=5; vPX=6; vPM=7; vSL=8; vSH=9; vNI=10
    QF=36
    KF=68
    SD=116
    S=140
    a.c('================ E2 role ================')
    n,g=T0,T1
    a(f'v_and_b32 v{n}, 15, v1'); a(f'v_lshrrev_b32 v{g}, 4, v1')
    a(f'v_lshlrev_b32 v{T2}, 9, v{g}'); a(f'v_lshl_add_u32 v{vQ}, v{n}, 4, v{T2}'); a(f'v_add_u32 v{vQ}, 4096, v{vQ}')
    a(f'v_bfe_u32 v{T2}, v{n}, 2, 1'); a(f'v_lshlrev_b32 v{T2}, 4, v{T2}'); a(f'v_lshrrev_b32 v{T3}, 3, v{n}'); a(f'v_lshl_add_u32 v{T2}, v{T3}, 3, v{T2}')
    a(f'v_bfe_u32 v{T3}, v{n}, 1, 1'); a(f'v_lshl_add_u32 v{T2}, v{T3}, 2, v{T2}'); a(f'v_and_b32 v{T3}, 1, v{n}'); a(f'v_add_u32 v{T2}, v{T2}, v{T3}')
    a(f'v_lshlrev_b32 v{T2}, 4, v{T2}'); a(f'v_lshl_add_u32 v{vK}, v{g}, 9, v{T2}'); a(f'v_add_u32 v{vK}, 4096, v{vK}')
    a(f'v_and_b32 v{T2}, 7, v{n}'); a(f'v_lshlrev_b32 v{T2}, 4, v{T2}'); a(f'v_lshl_add_u32 v{vKM}, v{g}, 7, v{T2}')
    a(f'v_and_b32 v{T2}, 1, v{g}'); a(f'v_lshlrev_b32 v{T2}, 4, v{T2}'); a(f'v_lshrrev_b32 v{T3}, 1, v{g}'); a(f'v_lshl_add_u32 v{T2}, v{T3}, 3, v{T2}'); a(f'v_sub_u32 v{vD}, v{n}, v{T2}')
    a(f'v_lshlrev_b32 v{vPX}, 4, v1')
    a(f'v_lshlrev_b32 v{T2}, 4, v{n}'); a(f'v_and_b32 v{T3}, 1, v{g}'); a(f'v_lshl_add_u32 v{T2}, v{T3}, 3, v{T2}'); a(f'v_add_u32 v{vPM}, 2048, v{T2}')
    a(f'v_mov_b32 v{vSL}, 0x05040c0c'); a(f'v_mov_b32 v{vSH}, 0x07060c0c'); a(f'v_mov_b32 v{vNI}, 0xff800000')
    a('s_mov_b32 s40, 0'); a('s_mov_b32 s41, -1'); a(f'v_mov_b32 v{T2}, 0x03020100'); a(f'v_cndmask_b32 v{vSL}, v{vSL}, v{T2}, s[40:41]'); a(f'v_cndmask_b32 v{vSH}, v{vSH}, v{T2}, s[40:41]')
    a(f's_mov_b32 s66, {SCALE}'); a(f's_mov_b32 s67, {SCALE}'); a(f's_mov_b32 s68, {L2E}')
    a('s_mov_b32 s64, -1'); a('s_mov_b32 s65, 0')
    a('s_lshl_b32 s16, s24, 2'); a('s_add_u32 s16, s16, s3')
    a('s_mov_b32 s30, s23')
    Ll=a.nl('E2l'); Le=a.nl('E2e')
    a.lab(Ll)
    a('s_lshl_b32 s44, s30, 5'); a('s_add_u32 s44, s44, s16'); a('s_lshl_b32 s44, s44, 2'); a(f's_add_u32 s44, s44, {KMF_OFF}'); a(f'v_mov_b32 v{T0}, s44')
    a('s_lshl_b32 s44, s30, 8'); a('s_lshr_b32 s45, s16, 1'); a('s_lshl_b32 s45, s45, 2'); a('s_add_u32 s44, s44, s45'); a(f's_add_u32 s44, s44, {QKF_OFF}'); a(f'v_mov_b32 v{T1}, s44')
    Lw=a.nl('e2w'); a.lab(Lw)
    a(f'global_load_dword v{T2}, v{T0}, s[4:5] sc1'); a(f'global_load_dword v{T3}, v{T1}, s[4:5] sc1'); a(f'global_load_dword v{T4}, v{T1}, s[4:5] offset:64 sc1')
    a('s_waitcnt vmcnt(0)'); a(f'v_min_u32 v{T2}, v{T2}, v{T3}'); a(f'v_min_u32 v{T2}, v{T2}, v{T4}'); a(f'v_cmp_eq_u32 vcc, 0, v{T2}')
    Lgo=a.nl('e2g'); a(f's_cbranch_vccz {Lgo}'); a('s_sleep 2'); a('s_add_u32 s100, s100, 16'); a('s_cmp_lt_u32 s100, 0x1000000'); a(f's_cbranch_scc1 {Lw}'); a('s_endpgm'); a.lab(Lgo)
    a('s_lshl_b32 s44, s30, 5'); a('s_add_u32 s44, s44, s16')
    a('s_lshl_b32 s45, s44, 13'); a('s_add_u32 s46, s4, s45'); a('s_addc_u32 s47, s5, 0')
    a(f's_add_u32 s48, s46, {WS_K}'); a('s_addc_u32 s49, s47, 0')
    a('s_lshl_b32 s45, s44, 11'); a(f's_add_u32 s45, s45, {WS_KM}'); a('s_add_u32 s50, s4, s45'); a('s_addc_u32 s51, s5, 0')
    a('s_mul_i32 s45, s44, 2560'); a(f's_add_u32 s45, s45, {WS_PR}'); a('s_add_u32 s52, s4, s45'); a('s_addc_u32 s53, s5, 0')
    for t in range(4):
        a(f'global_load_dwordx4 {V(KF+4*t,4)}, v{vKM}, s[50:51] offset:{t*512} sc1')
        for tau in range(2): a(f'global_load_dwordx4 {V(KF+((1+tau)*4+t)*4,4)}, v{vK}, s[48:49] offset:{t*2048-4096+tau*32} sc1')
        for rho in range(2): a(f'global_load_dwordx4 {V(QF+(rho*4+t)*4,4)}, v{vQ}, s[46:47] offset:{t*2048-4096+rho*256} sc1')
    for t in range(4):
        a(f's_waitcnt vmcnt({5*(3-t)})')
        for rho in range(2):
            for tl in range(3):
                d=SD+(rho*3+tl)*4
                a(f'v_mfma_f32_16x16x32_bf16 {V(d,4)}, {V(KF+(tl*4+t)*4,4)}, {V(QF+(rho*4+t)*4,4)}, {"0" if t==0 else V(d,4)}')
    for rho in range(2):
        D=SD+rho*12
        for p in range(6):
            a(f'v_cvt_pk_bf16_f32 v{T0}, v{D+2*p}, v{D+2*p+1}')
            a(f'v_lshlrev_b32 v{S+2*p}, 16, v{T0}'); a(f'v_and_b32 v{S+2*p+1}, 0xffff0000, v{T0}')
            a(f'v_pk_mul_f32 {V(S+2*p,2)}, {V(S+2*p,2)}, s[66:67]')
            a(f'v_cvt_pk_bf16_f32 v{T0}, v{S+2*p}, v{S+2*p+1}')
            if p<2:
                a(f'v_perm_b32 v{S+2*p}, v{T0}, v{vNI}, v{vSL}'); a(f'v_perm_b32 v{S+2*p+1}, v{T0}, v{vNI}, v{vSH}')
            else:
                a(f'v_lshlrev_b32 v{S+2*p}, 16, v{T0}'); a(f'v_and_b32 v{S+2*p+1}, 0xffff0000, v{T0}')
        a(f'v_add_u32 v{T1}, {16*rho}, v{vD}')
        for tau in range(2):
            for i in range(4):
                c=4*(i>>1)+2*tau+(i&1)
                a(f'v_cmp_le_i32 vcc, {c}, v{T1}'); a(f'v_cndmask_b32 v{S+4+4*tau+i}, v{vNI}, v{S+4+4*tau+i}, vcc')
        m,u,l=T2,T3,T4
        a(f'v_max3_f32 v{m}, v{S}, v{S+1}, v{S+2}')
        for p in range(4): a(f'v_max3_f32 v{m}, v{m}, v{S+3+2*p}, v{S+4+2*p}')
        a(f'v_max_f32 v{m}, v{m}, v{S+11}')
        a(f'v_mov_b32 v{u}, v{m}'); a(f'v_permlane16_swap_b32 v{m}, v{u}'); a(f'v_max_f32 v{m}, v{m}, v{u}')
        a(f'v_mov_b32 v{u}, v{m}'); a(f'v_permlane32_swap_b32 v{m}, v{u}'); a(f'v_max_f32 v{m}, v{m}, v{u}')
        a(f'v_mul_f32 v{m}, s68, v{m}')
        for i in range(12): a(f'v_fma_f32 v{S+i}, v{S+i}, s68, -v{m}')
        for i in range(12): a(f'v_exp_f32 v{S+i}, v{S+i}')
        a(f'v_add_f32 v{l}, v{S}, v{S+1}')
        for i in range(2,12): a(f'v_add_f32 v{l}, v{l}, v{S+i}')
        a(f'v_mov_b32 v{u}, v{l}'); a(f'v_permlane16_swap_b32 v{l}, v{u}'); a(f'v_add_f32 v{l}, v{l}, v{u}')
        a(f'v_mov_b32 v{u}, v{l}'); a(f'v_permlane32_swap_b32 v{l}, v{u}'); a(f'v_add_f32 v{l}, v{l}, v{u}')
        a(f'v_rcp_f32 v{l}, v{l}')
        for i in range(12): a(f'v_mul_f32 v{S+i}, v{S+i}, v{l}')
        a(f'v_cvt_pk_bf16_f32 v{D}, v{S}, v{S+1}'); a(f'v_cvt_pk_bf16_f32 v{D+1}, v{S+2}, v{S+3}')
        for p in range(4): a(f'v_cvt_pk_bf16_f32 v{D+4+p}, v{S+4+2*p}, v{S+5+2*p}')
        a(f'global_store_dwordx4 v{vPX}, {V(D+4,4)}, s[52:53] offset:{rho*1024} sc1')
        a('s_mov_b64 exec, s[64:65]')
        a(f'global_store_dwordx2 v{vPM}, {V(D,2)}, s[52:53] offset:{rho*256} sc1')
        a('s_mov_b64 exec, -1')
    a('s_waitcnt vmcnt(0)')
    a('s_lshl_b32 s44, s30, 5'); a('s_add_u32 s44, s44, s16'); a('s_lshl_b32 s44, s44, 2'); a(f's_add_u32 s44, s44, {PRF_OFF}')
    a(f'v_mov_b32 v{T0}, s44'); a(f'v_mov_b32 v{T1}, 1'); a(f'global_store_dword v{T0}, v{T1}, s[4:5] sc1')
    a(f's_add_u32 s30, s30, {ngroups}'); a('s_cmp_lt_u32 s30, 64'); a(f's_cbranch_scc1 {Ll}')

def gen_E3(a, ngroups):
    vU=2; vZ=3; vPX=4; vPM=5; vO=6; vDM=7
    AF=36
    BF=196
    ACC=228
    a.c('================ E3 role ================')
    a('s_load_dwordx2 s[18:19], s[0:1], %d'%KA['out'])
    n,g=T0,T1
    a(f'v_and_b32 v{n}, 15, v1'); a(f'v_lshrrev_b32 v{g}, 4, v1')
    a('s_lshl_b32 s25, s24, 2'); a('s_add_u32 s25, s25, s3')
    a('s_and_b32 s26, s25, 15'); a('s_lshr_b32 s27, s25, 4')
    a('s_mul_i32 s40, s26, 49152'); a('s_lshl_b32 s41, s27, 10'); a('s_add_u32 s40, s40, s41'); a(f'v_lshlrev_b32 v{vDM}, 4, v1'); a(f'v_add_u32 v{vU}, s40, v{vDM}')
    a('s_mul_i32 s40, s26, 12288'); a('s_lshl_b32 s41, s27, 8'); a('s_add_u32 s40, s40, s41')
    a(f'v_mul_u32_u24 v{T2}, 768, v{g}'); a(f'v_lshl_add_u32 v{T2}, v{n}, 4, v{T2}'); a(f'v_add_u32 v{vZ}, s40, v{T2}')
    a(f'v_mov_b32 v{vPX}, v{vDM}')
    a(f'v_mul_u32_u24 v{T2}, 2560, v{g}'); a(f'v_lshl_add_u32 v{T2}, v{n}, 4, v{T2}'); a(f'v_add_u32 v{vPM}, 2048, v{T2}')
    a(f'v_mul_u32_u24 v{T2}, 2560, v{n}'); a(f'v_lshl_add_u32 v{T2}, v{g}, 3, v{T2}'); a('s_lshl_b32 s40, s25, 5'); a('s_add_u32 s40, s40, 1280'); a(f'v_add_u32 v{vO}, s40, v{T2}')
    a(f'v_add_u32 v8, 65536, v{vPX}'); a(f'v_add_u32 v9, 57344, v{vPM}')
    a('s_waitcnt lgkmcnt(0)')
    a('s_mov_b32 s30, s23')
    Ll=a.nl('E3l')
    a.lab(Ll)
    def waitflags(offs):
        a('s_lshl_b32 s44, s30, 7'); a(f'v_and_b32 v{T0}, 31, v1'); a(f'v_lshlrev_b32 v{T0}, 2, v{T0}'); a(f'v_add_u32 v{T0}, s44, v{T0}')
        for i,o in enumerate(offs): a(f'v_add_u32 v{T1+i}, {o}, v{T0}')
        Lw=a.nl('e3w'); a.lab(Lw)
        for i,o in enumerate(offs): a(f'global_load_dword v{T3+i}, v{T1+i}, s[4:5] sc1')
        a(f's_waitcnt vmcnt(0)')
        if len(offs)==2: a(f'v_min_u32 v{T3}, v{T3}, v{T4}')
        a(f'v_cmp_eq_u32 vcc, 0, v{T3}')
        Lgo=a.nl('e3g'); a(f's_cbranch_vccz {Lgo}'); a('s_sleep 2'); a('s_add_u32 s100, s100, 16'); a('s_cmp_lt_u32 s100, 0x1000000'); a(f's_cbranch_scc1 {Lw}'); a('s_endpgm'); a.lab(Lgo)
    waitflags([UF_OFF])
    a(f's_mul_i32 s44, s30, {U_SEG}'); a('s_add_u32 s48, s4, s44'); a('s_addc_u32 s49, s5, 0'); a(f's_add_u32 s48, s48, {WS_U}'); a('s_addc_u32 s49, s49, 0')
    for i in range(32):
        off=(i//16)*786432+(i%16)*3072
        a(f's_add_u32 s52, s48, {off}'); a('s_addc_u32 s53, s49, 0'); a(f'global_load_dwordx4 {V(AF+4*i,4)}, v{vU}, s[52:53] sc1')
    waitflags([PRF_OFF,ZF_OFF])
    a('s_barrier')
    a('s_mul_i32 s44, s30, 81920'); a(f's_add_u32 s44, s44, {WS_PR}'); a('s_mul_i32 s45, s3, 20480'); a('s_add_u32 s44, s44, s45'); a('s_add_u32 s46, s4, s44'); a('s_addc_u32 s47, s5, 0')
    for i in range(20):
        if i%4==0 and i>0: a('s_add_u32 s46, s46, 4096'); a('s_addc_u32 s47, s47, 0')
        a(f's_add_u32 m0, s45, {i*1024-(i%4)*1024}'); a(f'global_load_lds_dwordx4 v{vDM}, s[46:47] offset:{(i%4)*1024} sc1')
    a(f's_mul_i32 s44, s30, {ZG_STEP}'); a('s_add_u32 s50, s4, s44'); a('s_addc_u32 s51, s5, 0'); a(f's_add_u32 s50, s50, {WS_ZG}'); a('s_addc_u32 s51, s51, 0')
    for t in range(8):
        off=(t//4)*196608+(t%4)*4*768
        a(f's_add_u32 s52, s50, {off}'); a('s_addc_u32 s53, s51, 0'); a(f'global_load_dwordx4 {V(AF+4*(32+t),4)}, v{vZ}, s[52:53] sc1')
    a('s_waitcnt vmcnt(8)'); a('s_barrier')
    def bread(i,rho):
        r=V(BF+4*((2*i+rho)%8),4)
        if i<32:
            off=i*2560+rho*1024
            return (f'ds_read_b128 {r}, v{vPX} offset:{off}' if off<65536 else f'ds_read_b128 {r}, v8 offset:{off-65536}')
        t=i-32; off=t*4*2560+rho*256
        return (f'ds_read_b128 {r}, v{vPM} offset:{off}' if off<65536-7680 else f'ds_read_b128 {r}, v9 offset:{off-57344}')
    PD=3
    for i in range(PD): a(bread(i,0)); a(bread(i,1))
    for i in range(40):
        if i+PD<40: a(bread(i+PD,0)); a(bread(i+PD,1))
        if i==32: a('s_waitcnt vmcnt(0)')
        a(f's_waitcnt lgkmcnt({2*min(PD,39-i)})')
        for rho in range(2):
            a(f'v_mfma_f32_16x16x32_bf16 {V(ACC+4*rho,4)}, {V(AF+4*i,4)}, {V(BF+4*((2*i+rho)%8),4)}, {"0" if i==0 else V(ACC+4*rho,4)}')
    a('s_mul_i32 s44, s30, 81920'); a('s_add_u32 s52, s18, s44'); a('s_addc_u32 s53, s19, 0')
    for rho in range(2):
        a(f'v_cvt_pk_bf16_f32 v{T0+2*rho}, v{ACC+4*rho}, v{ACC+4*rho+1}'); a(f'v_cvt_pk_bf16_f32 v{T0+2*rho+1}, v{ACC+4*rho+2}, v{ACC+4*rho+3}')
    a(f'global_store_dwordx2 v{vO}, {V(T0,2)}, s[52:53]')
    a(f'v_add_u32 v{T4}, 40960, v{vO}')
    a(f'global_store_dwordx2 v{T4}, {V(T2,2)}, s[52:53]')
    a(f's_add_u32 s30, s30, {ngroups}'); a('s_cmp_lt_u32 s30, 64'); a(f's_cbranch_scc1 {Ll}')
```

```python
from asmgen import *
from layout import *
SCALE=0x3db504f3
L2E=0x3fb8aa3b
LDS_A=0
LDS_F=10240
LDS_ML=14336
LDS_R=14848
LDS_GO=21504
LDS_ML2=21760
STG_BLK=1088; STG_BUF=32*STG_BLK

def wr(idx,n):
    if idx<256:
        assert idx+n<=256
        return f'a[{idx}:{idx+n-1}]'
    b=192+idx-256
    return f'v[{b}:{b+n-1}]'
def V(b,n=1): return f'v{b}' if n==1 else f'v[{b}:{b+n-1}]'

def interleave(a, mains, fillers, per=2, start=0):
    f=list(fillers)
    for i,m in enumerate(mains):
        a(m)
        if i>=start and not m.startswith('s_waitcnt'):
            for _ in range(per):
                if f: a(f.pop(0))
    for x in f: a(x)

T0,T1,T2,T3,T4,T5=30,31,32,33,34,35
vG=2; vAW=3; vAR=4; vIDX=5; vSEL=6
GL=36; AF=56; GD=56; ACC=96

def masks(a):
    a('s_mov_b32 s60, 0x00ff00ff'); a('s_mov_b32 s61, 0x00ff00ff')
    a('s_mov_b32 s62, 0'); a('s_mov_b32 s63, 0x00ff00ff')
    a('s_mov_b32 s64, -1'); a('s_mov_b32 s65, 0')
    a('s_mov_b32 s72, 0xff00ff00'); a('s_mov_b32 s73, 0xff00ff00')
    a('s_mov_b32 s66, 0x3e0293ee'); a('s_mov_b32 s67, 0x3e0293ee')
    a('s_mov_b32 s70, 0xfffffffe')

def load_weights(a, srcs, trs, NR=10):
    def issue(r):
        srcs(r)
        a(f's_mul_i32 s44, s3, {8*STG_BLK}')
        a(f's_add_u32 s44, s44, {(r%4)*STG_BUF}')
        a(f'v_mov_b32 v{T5}, v{T4}')
        for i in range(8):
            a(f's_add_u32 m0, s44, {i*STG_BLK}')
            a(f'global_load_lds_dwordx4 v{T5}, s[40:41]')
            if i<7: a(f'v_add_u32 v{T5}, s43, v{T5}')
    for r in range(4): issue(r)
    if ARRIVE: ARRIVE(a,32)
    for r in range(NR):
        a(f's_waitcnt vmcnt({8*min(NR-1-r,3)})')
        a('s_barrier')
        trs(r,(r%4)*STG_BUF)
        a('s_waitcnt lgkmcnt(0)')
        a('s_barrier')
        if r+4<NR: issue(r+4)

def tr_addr16(a, dst):
    a(f'v_lshrrev_b32 v{T0}, 4, v1'); a(f'v_mul_u32_u24 v{dst}, {2*STG_BLK}, v{T0}')
    a(f'v_bfe_u32 v{T0}, v1, 2, 2'); a(f'v_lshl_add_u32 v{dst}, v{T0}, 8, v{dst}')
    a(f'v_and_b32 v{T0}, 3, v1'); a(f'v_lshl_add_u32 v{dst}, v{T0}, 3, v{dst}')
    a('s_lshl_b32 s40, s3, 6'); a(f'v_add_u32 v{dst}, s40, v{dst}')
def tr_B16(a, vaddr, bufoff, blocks):
    a(f'v_add_u32 v{T3}, {bufoff}, v{vaddr}')
    for (m,tp,idx) in blocks:
        for hB in range(2):
            for half in range(2):
                off=(m*16+8*hB+half)*STG_BLK+32*tp
                a(f'ds_read_b64_tr_b16 {wr(idx+hB*4+half*2,2)}, v{T3} offset:{off}')

vG3=184; vAW3=185; vSELH=186
SELH=None
DELAY_VO=0; DELAY_QK=0; NU_MID=6
VO_GATE=True; VO_D2=None; G_D2=0; P_TIMED=None; KMOD=' sc1'; EXP=set(); EW_P=0; EW_G=0; Z_DELAY=5; PF_A=6; PF_PACE=1; W3_DELAY=12; EWP_POS='pre'
def common_consts(a, selh, nw=4):
    n,g,x,y=T0,T1,T2,T3
    a(f'v_and_b32 v{n}, 15, v1'); a(f'v_lshrrev_b32 v{g}, 4, v1')
    a(f'v_lshrrev_b32 v{x}, 2, v{n}'); a(f'v_lshlrev_b32 v{x}, 4, v{x}')
    a(f'v_lshrrev_b32 v{y}, 1, v{g}'); a(f'v_lshl_add_u32 v{x}, v{y}, 3, v{x}')
    a(f'v_bfe_u32 v{y}, v{n}, 1, 1'); a(f'v_lshl_add_u32 v{x}, v{y}, 2, v{x}')
    a(f'v_and_b32 v{y}, 1, v{g}'); a(f'v_lshl_add_u32 v{x}, v{y}, 1, v{x}')
    a(f'v_and_b32 v{y}, 1, v{n}'); a(f'v_add_u32 v{x}, v{x}, v{y}')
    a(f'v_lshlrev_b32 v{x}, 4, v{x}')
    a('s_lshl_b32 s40, s3, 10'); a('s_add_u32 s41, s40, 4096')
    a(f'v_add_u32 v{vG}, s41, v{x}')
    a(f'v_lshlrev_b32 v{vAR}, 4, v1'); a(f'v_add_u32 v{vAW}, s40, v{vAR}')
    if nw==4:
        a('s_cmp_lt_u32 s3, 2'); a('s_cselect_b32 s42, 4096, 0')
        a(f'v_add_u32 v{vG3}, s42, v{vG}'); a('s_add_u32 s42, s42, 4096'); a(f'v_add_u32 v{vAW3}, s42, v{vAW}')
    else:
        a('s_movk_i32 s43, 2048'); a('s_cmp_eq_u32 s3, 0'); a('s_cselect_b32 s42, 5120, s43')
        a(f'v_add_u32 v{vG3}, s42, v{vG}'); a('s_add_u32 s42, s42, 4096'); a(f'v_add_u32 v{vAW3}, s42, v{vAW}')
    a(f'v_mov_b32 v{vIDX}, 0x4444'); a(f'v_mov_b32 v{x}, 0xeeee'); a(f'v_cmp_lt_u32 vcc, 7, v{n}'); a(f'v_cndmask_b32 v{vIDX}, v{vIDX}, v{x}, vcc')
    a(f'v_lshrrev_b32 v{x}, 3, v{n}'); a(f'v_and_b32 v{y}, 1, v{g}'); a(f'v_cmp_eq_u32 s[40:41], v{x}, v{y}')
    a(f'v_and_b32 v{x}, 1, v{n}'); a(f'v_lshlrev_b32 v{x}, 4, v{x}'); a(f'v_mov_b32 v{y}, 0x3f80'); a(f'v_lshlrev_b32 v{x}, v{x}, v{y}')
    a(f'v_cndmask_b32 v{x}, 0, v{x}, s[40:41]')
    a(f'v_bfe_u32 v{y}, v{n}, 1, 2')
    a(f'v_cmp_gt_u32 s[42:43], 2, v{g}')
    for d in range(4):
        a(f'v_cmp_eq_u32 vcc, {d}, v{y}'); a(f'v_cndmask_b32 v{T4}, 0, v{x}, vcc')
        a(f'v_cndmask_b32 v{vSEL+d}, 0, v{T4}, s[42:43]'); a(f'v_cndmask_b32 v{selh+d}, v{T4}, 0, s[42:43]')

def g_bases(stepadd):
    return [f's_add_u32 s44, s30, {stepadd&0xffffffff}','s_and_b32 s44, s44, 3',f's_mul_i32 s44, s44, {P_SLOT}',f's_add_u32 s44, s44, {P_OFF}',
            's_add_u32 s45, s44, s18','s_add_u32 s36, s4, s45','s_addc_u32 s37, s5, 0','s_add_u32 s45, s44, s19','s_add_u32 s38, s4, s45','s_addc_u32 s39, s5, 0']
vLP=None
def lp_const(a, reg):
    a(f'v_and_b32 v{T0}, 15, v1'); a(f'v_lshlrev_b32 v{T0}, 2, v{T0}')
    a('s_lshl_b32 s40, s15, 7'); a(f's_add_u32 s40, s40, {GF_OFF}'); a(f'v_add_u32 v{reg}, s40, v{T0}')
    a(f'v_mov_b32 v{T0}, {LDS_GO}'); a(f'v_mov_b32 v{T2}, 0'); a(f'v_mov_b32 v{T3}, 0'); a(f'ds_write_b64 v{T0}, {V(T2,2)}')
    a(f'v_mov_b32 v{T4}, 0'); a(f'v_mov_b32 v{T5}, 0'); a(f'v_lshlrev_b32 v{T0}, 4, v1'); a(f'ds_write_b128 v{T0}, {V(T2,4)} offset:{LDS_ML2}')
    a('s_waitcnt lgkmcnt(0)'); a('s_barrier')
POLL_DEPTH=3
PREM_MOD=' sc1'; PREM_FIRST=False
QK_NW=3
def flag_gate(a, vflag, goaddr, dbg=False):
    Lq=a.nl('Fq'); Lw=a.nl('Fw'); Lo=a.nl('Fo'); Lk=a.nl('Fk')
    R=[T1,T3,T4][:POLL_DEPTH]; D=len(R)
    a('s_add_u32 s40, s30, 1')
    a(f'v_mov_b32 v{T2}, {goaddr}')
    a('s_cmp_lg_u32 s3, 0'); a(f's_cbranch_scc1 {Lw}')
    a('s_mov_b64 exec, 0xffff')
    for i,r in enumerate(R):
        a(f'global_load_dword v{r}, v{vflag}, s[4:5] sc1')
        if i<D-1: a('s_nop 15')
    a.lab(Lq)
    for i,r in enumerate(R):
        a(f's_waitcnt vmcnt({D-1})')
        a(f'v_cmp_gt_u32 vcc, s40, v{r}'); a(f's_cbranch_vccz {Lk}')
        a(f'global_load_dword v{r}, v{vflag}, s[4:5] sc1')
    a('s_add_u32 s100, s100, 1'); a('s_cmp_lt_u32 s100, 0x1000000'); a(f's_cbranch_scc1 {Lq}'); a('s_endpgm')
    a.lab(Lk)
    a(f'v_mov_b32 v{T0}, s40'); a(f'ds_write_b32 v{T2}, v{T0}')
    a('s_mov_b64 exec, -1')
    a(f's_branch {Lo}')
    a.lab(Lw)
    a(f'ds_read_b32 v{T1}, v{T2}'); a('s_waitcnt lgkmcnt(0)'); a(f'v_cmp_gt_u32 vcc, s40, v{T1}'); a.retry('s_cbranch_vccnz',Lw)
    a.lab(Lo)

def G_phase(a, selh, delay=0, nw=4, mid=None, L=36, R=80, D=56, lp=None, gate=True, d2o=None):
    nl=3 if nw==4 else 4
    offs=[-4096,0] if nw==4 else [-4096,-1024,2048]
    lds=[0,4096] if nw==4 else [0,3072,6144]
    Lskip=a.nl('Gs')
    def loads(dst,base):
        for i,o in enumerate(offs): a(f'global_load_dwordx4 {V(dst+4*i,4)}, v{vG}, s[{base}:{base+1}] offset:{o} sc1')
        a(f'global_load_dwordx4 {V(dst+4*(nl-1),4)}, v{vG3}, s[{base}:{base+1}] sc1')
    def check(src):
        regs=[src+2*i for i in range(2*nl)]
        a(f'v_max3_u32 v{T0}, v{regs[0]}, v{regs[1]}, v{regs[2]}'); k=3
        while k+1<len(regs): a(f'v_max3_u32 v{T0}, v{T0}, v{regs[k]}, v{regs[k+1]}'); k+=2
        if k<len(regs): a(f'v_max_u32 v{T0}, v{T0}, v{regs[k]}')
        a(f'v_cmp_eq_u32 vcc, -1, v{T0}')
    if nw==3: a('s_cmp_eq_u32 s3, 3'); a(f's_cbranch_scc1 {Lskip}')
    if gate: flag_gate(a,lp,LDS_GO)
    stamp(a,12)
    def loads2(dst,base):
        for i,o in enumerate(offs): a(f'global_load_dwordx4 {V(dst+4*i,4)}, v{vG}, s[{base}:{base+1}] offset:{o} sc1')
        a(f'global_load_dwordx4 {V(dst+4*(nl-1),4)}, v{vG3}, s[{base}:{base+1}] sc1')
    d2=min(delay,G_D2 if d2o is None else d2o)
    Lnd=a.nl('nd')
    if not gate and nw==4 and delay-d2>0: a('s_cmp_eq_u32 s3, 3'); a(f's_cbranch_scc1 {Lnd}')
    for _ in range(delay-d2): a('s_sleep 1')
    a.lab(Lnd)
    loads2(L,36)
    for _ in range(d2): a('s_sleep 1')
    loads2(R,38); a(f's_waitcnt vmcnt({nl})')
    Ll=a.nl('Gl'); Llo=a.nl('Glo')
    a.lab(Ll)
    check(L); a(f's_cbranch_vccz {Llo}')
    loads(L,36); a('s_waitcnt vmcnt(0)'); a('s_add_u32 s100, s100, 1'); a('s_cmp_lt_u32 s100, 0x1000000'); a(f's_cbranch_scc1 {Ll}'); a('s_endpgm')
    a.lab(Llo)
    for i in range(nl):
        for nu in range(2): a(f'v_mfma_f32_16x16x32_bf16 {V(D+8*i+4*nu,4)}, {V(L+4*i,4)}, {V(vSEL if nu==0 else selh,4)}, 0')
    a('s_waitcnt vmcnt(0)')
    Lr=a.nl('Gr'); Lro=a.nl('Gro')
    a.lab(Lr)
    if STAMPS==True: a('s_add_u32 s97, s97, 1')
    check(R); a(f's_cbranch_vccz {Lro}')
    loads(R,38); a('s_waitcnt vmcnt(0)'); a('s_add_u32 s100, s100, 1'); a('s_cmp_lt_u32 s100, 0x1000000'); a(f's_cbranch_scc1 {Lr}'); a('s_endpgm')
    a.lab(Lro)
    stamp(a,0)
    def fin_i(i):
        for q in range(4): a(f'v_cvt_pk_bf16_f32 v{L+4*i+q}, v{D+8*i+2*q}, v{D+8*i+2*q+1}')
        if i<nl-1: a(f'ds_write_b128 v{vAW}, {V(L+4*i,4)} offset:{lds[i]}')
        else: a(f'ds_write_b128 v{vAW3}, {V(L+4*i,4)}')
    for i in range(nl):
        for nu in range(2): a(f'v_mfma_f32_16x16x32_bf16 {V(D+8*i+4*nu,4)}, {V(R+4*i,4)}, {V(vSEL if nu==0 else selh,4)}, {V(D+8*i+4*nu,4)}')
        if i>=2: fin_i(i-2)
    fin_i(nl-2); fin_i(nl-1)
    a('s_waitcnt lgkmcnt(0)')
    a.lab(Lskip)
    a('s_barrier')
    stamp(a,1)
    for t in range(10):
        a(f'ds_read_b128 {V(AF+4*t,4)}, v{vAR} offset:{t*1024}')
GREM=80; GDD=56

def half_sum_pack(t0, t1, out):
    L=[]
    for i in range(4): L.append(f'v_permlane32_swap_b32 v{t0+i}, v{t1+i}')
    L.append(f'v_pk_add_f32 {V(t0,2)}, {V(t0,2)}, {V(t1,2)}')
    L.append(f'v_pk_add_f32 {V(t0+2,2)}, {V(t0+2,2)}, {V(t1+2,2)}')
    if out is not None:
        L.append(f'v_cvt_pk_bf16_f32 v{out}, v{t0}, v{t0+1}')
        L.append(f'v_cvt_pk_bf16_f32 v{out+1}, v{t0+2}, v{t0+3}')
    return L

def slot_base(dst, off, slotsz, stepreg, add=0, tmp='s44'):
    L=[]
    if add: L+= [f's_add_u32 {tmp}, {stepreg}, {add&0xffffffff}', f's_and_b32 {tmp}, {tmp}, 3']
    else: L.append(f's_and_b32 {tmp}, {stepreg}, 3')
    L+=[f's_mul_i32 {tmp}, {tmp}, {slotsz}', f's_add_u32 {tmp}, {tmp}, {off}', f's_add_u32 s{dst}, s4, {tmp}', f's_addc_u32 s{dst+1}, s5, 0']
    return L
def poll_flag(a, offreg_s):
    Lw=a.nl('pf')
    a(f'v_mov_b32 v{T0}, {offreg_s}')
    a.lab(Lw)
    a(f'global_load_dword v{T1}, v{T0}, s[4:5] sc1'); a('s_waitcnt vmcnt(0)')
    a(f'v_cmp_eq_u32 vcc, 0, v{T1}')
    a.retry('s_cbranch_vccnz',Lw)
def emit(a,L):
    for x in L: a(x)

STAMPS=False
ARRIVE=None
SYNC=None
EVSTEP=30
def stamp(a,i):
    if not STAMPS: return
    if STAMPS=='ev':
        L=a.nl('ev')
        a(f's_cmp_lg_u32 s30, {EVSTEP}'); a(f's_cbranch_scc1 {L} ; @fwd')
        a('s_memrealtime s[82:83]'); a('s_waitcnt lgkmcnt(0)'); a(f's_mov_b32 s{84+i}, s82')
        a(f'{L}: ; @end')
        return
    a('s_memtime s[82:83]'); a('s_waitcnt lgkmcnt(0)'); a('s_sub_u32 s99, s82, s98'); a(f's_add_u32 s{84+i}, s{84+i}, s99'); a('s_mov_b32 s98, s82')
def stamp_init(a):
    if not STAMPS: return
    for i in range(14): a(f's_mov_b32 s{84+i}, 0')
    a('s_memtime s[82:83]'); a('s_waitcnt lgkmcnt(0)'); a('s_mov_b32 s98, s82')
def stamp_dump(a, cond_regs, base):
    if not STAMPS: return
    L=a.nl('sd')
    if STAMPS=='ev':
        a('s_lshl_b32 s40, s15, 4'); a('s_add_u32 s40, s40, s14'); a('s_lshl_b32 s40, s40, 2'); a('s_add_u32 s40, s40, s3'); a('s_lshl_b32 s40, s40, 6')
        a(f's_add_u32 s40, s40, {base if base==FL_END else FL_END+8192}')
    else:
        a('s_or_b32 s40, s15, s14'); a('s_cmp_lg_u32 s40, 0'); a(f's_cbranch_scc1 {L}')
        a('s_lshl_b32 s40, s3, 6'); a(f's_add_u32 s40, s40, {base}')
    a('v_mov_b32 v30, s40')
    for i in range(14):
        a(f'v_mov_b32 v31, s{84+i}'); a(f'global_store_dword v30, v31, s[4:5] offset:{4*i}')
    if STAMPS=='ev': a('v_mov_b32 v31, s81'); a('global_store_dword v30, v31, s[4:5] offset:56')
    a.lab(L)

CSC=0x3e0293ee
def softmax_part1(a, D, S, vBI, vMW, EX):
    m,l=EX,EX+2; u=T4
    a(f'v_pk_add_f32 {V(D,2)}, {V(D,2)}, {V(vBI,2)}'); a(f'v_pk_add_f32 {V(D+2,2)}, {V(D+2,2)}, {V(vBI,2)}')
    a(f'v_max3_f32 v{m}, v{D}, v{D+1}, v{D+2}'); a(f'v_max_f32 v{m}, v{m}, v{D+3}')
    a(f'v_mov_b32 v{u}, v{m}'); a(f'v_permlane16_swap_b32 v{m}, v{u}'); a(f'v_max_f32 v{m}, v{m}, v{u}')
    a(f'v_mov_b32 v{u}, v{m}'); a(f'v_permlane32_swap_b32 v{m}, v{u}'); a(f'v_max_f32 v{m}, v{m}, v{u}')
    a(f'v_pk_mul_f32 {V(T2,2)}, {V(m,2)}, s[66:67] op_sel_hi:[0,1]')
    a(f'v_pk_fma_f32 {V(S,2)}, {V(D,2)}, s[66:67], {V(T2,2)} neg_lo:[0,0,1] neg_hi:[0,0,1]')
    a(f'v_pk_fma_f32 {V(S+2,2)}, {V(D+2,2)}, s[66:67], {V(T2,2)} neg_lo:[0,0,1] neg_hi:[0,0,1]')
    for i in range(4): a(f'v_exp_f32 v{S+i}, v{S+i}')
    a(f'v_pk_add_f32 {V(T2,2)}, {V(S,2)}, {V(S+2,2)}'); a(f'v_add_f32 v{l}, v{T2}, v{T3}')
    a(f'v_mov_b32 v{u}, v{l}'); a(f'v_permlane16_swap_b32 v{l}, v{u}'); a(f'v_add_f32 v{l}, v{l}, v{u}')
    a(f'v_mov_b32 v{u}, v{l}'); a(f'v_permlane32_swap_b32 v{l}, v{u}'); a(f'v_add_f32 v{l}, v{l}, v{u}')
    a(f'ds_write_b128 v{vMW}, {V(EX,4)}')

def gen_QK(a, safe=False, nsteps=NSTEP, prof=None):
    ST=' sc1' if safe else ''
    vFW=10; vFR=11; vKX=12; vPS=13; vKM=23; vMW=24; vMR=25
    vSL=26; vSH=27; vNI=28; vPF=14; vZC=15; SEN2=132; ZC=164
    KX=112; vR=180; SELH=186; DUM=128
    SEN=112
    FF=56
    SD=36; SE=40; ML=44; EX=160
    GLx=36
    n,g,x,y=T0,T1,T2,T3
    a.c('================ QK role ================')
    masks(a)
    a('s_load_dwordx2 s[8:9], s[0:1], %d'%KA['Wq']); a('s_load_dwordx2 s[10:11], s[0:1], %d'%KA['Wk'])
    a('s_waitcnt lgkmcnt(0)')
    a(f'v_lshrrev_b32 v{T4}, 4, v1'); a(f'v_lshlrev_b32 v{T4}, 13, v{T4}'); a(f'v_and_b32 v{T5}, 15, v1'); a(f'v_lshl_add_u32 v{T4}, v{T5}, 4, v{T4}')
    a('s_cmp_lt_u32 s3, 2'); a('s_cselect_b32 s12, s8, s10'); a('s_cselect_b32 s13, s9, s11')
    a('s_and_b32 s40, s3, 1'); a('s_lshl_b32 s40, s40, 18')
    a('s_lshl_b32 s41, s16, 8'); a('s_add_u32 s40, s40, s41')
    a('s_add_u32 s12, s12, s40'); a('s_addc_u32 s13, s13, 0')
    a('s_mov_b32 s43, 32768')
    def srcs(r):
        a(f's_add_u32 s40, s12, {r*64*8192}'); a('s_addc_u32 s41, s13, 0')
    tr_addr16(a,vFW)
    def trs(r,bufoff):
        tr_B16(a,vFW,bufoff,[(0,0,(0*10+r)*8),(0,1,(1*10+r)*8),(1,0,(2*10+r)*8),(1,1,(3*10+r)*8)])
    load_weights(a,srcs,trs)
    if SYNC: SYNC(a)
    common_consts(a,SELH,QK_NW); lp_const(a,29)
    a('s_mul_i32 s18, s15, 10240'); a('s_sub_u32 s19, 1, s15'); a('s_mul_i32 s19, s19, 10240'); a('s_add_u32 s19, s19, 20480')
    a(f'v_and_b32 v{n}, 15, v1'); a(f'v_lshrrev_b32 v{g}, 4, v1')
    a(f'v_lshrrev_b32 v{x}, 5, v1'); a(f'v_lshlrev_b32 v{x}, 4, v{x}'); a(f'v_add_u32 v{x}, v{x}, v{n}')
    a('s_lshl_b32 s40, s3, 5'); a(f'v_add_u32 v{x}, s40, v{x}'); a(f'v_lshlrev_b32 v{x}, 5, v{x}')
    a(f'v_and_b32 v{y}, 1, v{g}'); a(f'v_lshl_add_u32 v{x}, v{y}, 3, v{x}'); a(f'v_add_u32 v{vFW}, {LDS_F}, v{x}')
    a(f'v_bfe_u32 v{x}, v1, 2, 2'); a(f'v_lshl_add_u32 v{x}, v{g}, 3, v{x}'); a(f'v_lshlrev_b32 v{x}, 5, v{x}')
    a(f'v_and_b32 v{y}, 3, v1'); a(f'v_lshl_add_u32 v{x}, v{y}, 3, v{x}'); a(f'v_add_u32 v{vFR}, {LDS_F}, v{x}')
    a('s_sub_u32 s40, s3, 1'); a('s_and_b32 s40, s40, 1'); a('s_lshl_b32 s40, s40, 8'); a('s_add_u32 s40, s40, 4096')
    a(f'v_lshlrev_b32 v{x}, 9, v{g}'); a(f'v_lshl_add_u32 v{x}, v{n}, 4, v{x}'); a(f'v_add_u32 v{vKX}, s40, v{x}')
    a(f'v_lshlrev_b32 v{x}, 3, v{g}'); a(f'v_add_u32 v{x}, v{x}, v{n}'); a(f'v_lshlrev_b32 v{x}, 4, v{x}')
    a('s_sub_u32 s40, s3, 1'); a('s_and_b32 s40, s40, 1'); a('s_lshl_b32 s40, s40, 3')
    a('s_lshl_b32 s41, s14, 9'); a('s_add_u32 s40, s40, s41'); a('s_lshl_b32 s41, s15, 13'); a('s_add_u32 s40, s40, s41')
    a(f'v_add_u32 v{vPS}, s40, v{x}')
    a(f'v_and_b32 v{x}, 1, v{g}'); a(f'v_lshlrev_b32 v{x}, 3, v{x}'); a(f'v_lshl_add_u32 v{x}, v{n}, 4, v{x}')
    a('s_lshl_b32 s41, s14, 7'); a('s_lshl_b32 s42, s15, 11'); a('s_add_u32 s41, s41, s42'); a(f's_add_u32 s41, s41, {PM_REL}')
    a(f'v_add_u32 v{x}, s41, v{x}')
    a('s_cmp_eq_u32 s3, 0'); a('s_cselect_b64 vcc, -1, 0'); a(f'v_cndmask_b32 v{vPS}, v{vPS}, v{x}, vcc')
    a('s_lshl_b32 s40, s14, 7'); a('s_lshl_b32 s42, s15, 11'); a('s_add_u32 s40, s40, s42'); a(f's_add_u32 s40, s40, {PM_REL}'); a(f'v_and_b32 v{y}, 7, v1'); a(f'v_lshlrev_b32 v{y}, 4, v{y}'); a(f'v_add_u32 v{vR}, s40, v{y}')
    a('s_lshl_b32 s40, s14, 9'); a('s_lshl_b32 s42, s15, 13'); a('s_add_u32 s40, s40, s42'); a(f'v_and_b32 v{y}, 31, v1'); a(f'v_lshlrev_b32 v{y}, 4, v{y}'); a(f'v_add_u32 v{vR+1}, s40, v{y}')
    a(f'v_lshlrev_b32 v{x}, 7, v{g}'); a(f'v_lshl_add_u32 v{x}, v{n}, 4, v{x}'); a(f'v_subrev_u32 v{vKM}, 128, v{x}')
    a(f'v_lshlrev_b32 v{x}, 4, v{n}'); a(f'v_add_u32 v{vMR}, {LDS_ML2}, v{x}'); a('s_lshl_b32 s40, s3, 8'); a(f'v_add_u32 v{vMW}, s40, v{vMR}')
    a(f'v_lshlrev_b32 v{vPF}, 6, v1')
    a('s_lshl_b32 s40, s15, 8'); a('s_lshl_b32 s41, s14, 2'); a('s_add_u32 s40, s40, s41'); a(f's_add_u32 s40, s40, {PF_OFF}'); a('v_mov_b32 v21, s40')
    a(f'v_mul_u32_u24 v{x}, 12288, v{g}'); a(f'v_lshl_add_u32 v{x}, v{n}, 4, v{x}')
    a('s_mul_i32 s40, s15, 196608'); a('s_mul_i32 s41, s14, 768'); a('s_add_u32 s40, s40, s41'); a('s_mul_i32 s41, s3, 49152'); a('s_add_u32 s40, s40, s41')
    a(f'v_add_u32 v{vZC}, s40, v{x}')
    a('s_movk_i32 s41, 256'); a('s_cmp_lt_u32 s3, 2'); a('s_cselect_b32 s40, 512, s41'); a(f'v_add_u32 v{vZC+1}, s40, v{vZC}')
    for i in range(4): a(f'v_mov_b32 v{SEN2+i}, -1')
    a('s_cmp_eq_u32 s3, 0'); a('s_cselect_b32 s40, -1, 0'); a('s_mov_b32 s41, 0')
    a(f'v_mov_b32 v{x}, 0xff800000'); a(f'v_cndmask_b32 v26, 0, v{x}, s[40:41]'); a('v_mov_b32 v27, v26')
    for i in range(4): a(f'v_mov_b32 v{SEN+i}, -1')
    a('s_cmp_eq_u32 s3, 0'); a('s_cselect_b32 s78, s62, s60'); a('s_cselect_b32 s79, s63, s61')
    def km_flag(add):
        a(f's_add_u32 s46, s30, {add&0xffffffff}'); a('s_lshl_b32 s46, s46, 5'); a('s_add_u32 s46, s46, s16'); a('s_lshl_b32 s46, s46, 2'); a(f's_add_u32 s46, s46, {KMF_OFF}')
        a(f'v_mov_b32 v{T0}, s46'); a(f'v_mov_b32 v{T1}, 1')
        a(f'global_store_dword v{T0}, v{T1}, s[4:5] sc1')
    def km_store():
        for t in range(4):
            a(f'ds_read_b64_tr_b16 {V(FF+4*t,2)}, v{vFR} offset:{t*1024}'); a(f'ds_read_b64_tr_b16 {V(FF+4*t+2,2)}, v{vFR} offset:{t*1024+128}')
        a('s_lshl_b32 s46, s30, 5'); a('s_add_u32 s46, s46, s16'); a('s_lshl_b32 s46, s46, 11'); a(f's_add_u32 s46, s46, {WS_KM}')
        a('s_add_u32 s56, s4, s46'); a('s_addc_u32 s57, s5, 0')
        a('s_waitcnt lgkmcnt(0)')
        a('s_mov_b64 exec, s[72:73]')
        for t in range(4): a(f'global_store_dwordx4 v{vKM}, {V(FF+4*t,4)}, s[56:57] offset:{t*512} sc1')
        a('s_mov_b64 exec, -1')
    def flags_wait(kadd, uadd=None):
        a(f's_add_u32 s45, s30, {kadd}'); a('s_min_u32 s45, s45, 63')
        a('s_lshl_b32 s46, s45, 8'); a('s_lshr_b32 s47, s16, 1'); a('s_add_u32 s47, s47, 16'); a('s_lshl_b32 s47, s47, 2'); a('s_add_u32 s46, s46, s47'); a(f's_add_u32 s46, s46, {QKF_OFF}')
        a(f'v_mov_b32 v{T2}, s46')
        Lw=a.nl('vf'); a.lab(Lw)
        a(f'global_load_dword v{T3}, v{T2}, s[4:5] sc1'); a('s_waitcnt vmcnt(0)')
        a(f'v_cmp_eq_u32 vcc, 0, v{T3}'); a.retry('s_cbranch_vccnz',Lw)
    def prefetch_U(part=None, tgt=None, pace=0):
        if tgt is not None: a(f's_add_u32 s45, s30, {tgt}'); a('s_min_u32 s45, s45, 63')
        a('s_mov_b64 exec, s[64:65]')
        a('s_lshl_b32 s46, s45, 5'); a('s_add_u32 s46, s46, s16'); a('s_lshl_b32 s46, s46, 13'); a(f's_add_u32 s46, s46, {WS_K}'); a('s_add_u32 s48, s4, s46'); a('s_addc_u32 s49, s5, 0')
        for i in range(4):
            a(f'global_load_dword v{DUM}, v{vPF}, s[48:49] offset:{i*2048 if i<2 else i*2048-4096} sc1')
            if i==1: a('s_add_u32 s48, s48, 4096'); a('s_addc_u32 s49, s49, 0')
        a('s_mov_b64 exec, -1')
    def z_copy():
        emit(a,slot_base(54,Z_OFF,Z_SLOT,'s30'))
        a(f's_mul_i32 s44, s30, {ZG_STEP}'); a('s_add_u32 s56, s4, s44'); a('s_addc_u32 s57, s5, 0'); a(f's_add_u32 s56, s56, {WS_ZG}'); a('s_addc_u32 s57, s57, 0')
        Lz=a.nl('zc'); a.lab(Lz)
        a(f'global_load_dwordx4 {V(ZC,4)}, v{vZC}, s[54:55] sc1'); a(f'global_load_dwordx4 {V(ZC+4,4)}, v{vZC}, s[54:55] offset:256 sc1'); a(f'global_load_dwordx4 {V(ZC+8,4)}, v{vZC+1}, s[54:55] sc1')
        a('s_waitcnt vmcnt(0)')
        a(f'v_max3_u32 v{T0}, v{ZC}, v{ZC+2}, v{ZC+4}'); a(f'v_max3_u32 v{T0}, v{T0}, v{ZC+6}, v{ZC+8}'); a(f'v_max_u32 v{T0}, v{T0}, v{ZC+10}')
        a(f'v_cmp_eq_u32 vcc, -1, v{T0}'); a.retry('s_cbranch_vccnz',Lz)
        a(f'global_store_dwordx4 v{vZC}, {V(ZC,4)}, s[56:57] sc1'); a(f'global_store_dwordx4 v{vZC}, {V(ZC+4,4)}, s[56:57] offset:256 sc1'); a(f'global_store_dwordx4 v{vZC+1}, {V(ZC+8,4)}, s[56:57] sc1')
    def z_reset():
        emit(a,slot_base(54,Z_OFF,Z_SLOT,'s30',-1))
        a(f'global_store_dwordx4 v{vZC}, {V(SEN2,4)}, s[54:55]{ST}'); a(f'global_store_dwordx4 v{vZC}, {V(SEN2,4)}, s[54:55] offset:256{ST}'); a(f'global_store_dwordx4 v{vZC+1}, {V(SEN2,4)}, s[54:55]{ST}')
    def z_flag(add):
        a(f's_add_u32 s46, s30, {add&0xffffffff}'); a('s_lshl_b32 s46, s46, 5'); a('s_add_u32 s46, s46, s16'); a('s_lshl_b32 s46, s46, 2'); a(f's_add_u32 s46, s46, {ZF_OFF}')
        a(f'v_mov_b32 v{T0}, s46'); a(f'v_mov_b32 v{T1}, 1')
        a(f'global_store_dword v{T0}, v{T1}, s[4:5] sc1')
    a('s_mov_b32 s30, 0')
    if prof: a('s_memtime s[80:81]'); a('s_memrealtime s[24:25]'); a('s_waitcnt lgkmcnt(0)')
    stamp_init(a)
    Lstep=a.nl('QKstep'); Llast=a.nl('QKlast')
    a.lab(Lstep)
    Lnkx=a.nl('nkx')
    def kx_loads():
        a('s_lshl_b32 s46, s30, 5'); a('s_add_u32 s46, s46, s16'); a('s_lshl_b32 s46, s46, 13'); a(f's_add_u32 s46, s46, {WS_K}'); a('s_add_u32 s48, s4, s46'); a('s_addc_u32 s49, s5, 0')
        for t in range(4): a(f'global_load_dwordx4 {V(KX+4*t,4)}, v{vKX}, s[48:49] offset:{t*2048-4096}{KMOD}')
    a('s_sub_u32 s46, s3, 1'); a('s_cmp_gt_u32 s46, 1'); a(f's_cbranch_scc1 {Lnkx}')
    a('s_cmp_eq_u32 s30, 0'); a(f's_cbranch_scc1 {Lnkx}')
    Lk1=a.nl('k1'); a('s_cmp_lg_u32 s30, 1'); a(f's_cbranch_scc1 {Lk1}'); flags_wait(0); a.lab(Lk1)
    kx_loads()
    a.lab(Lnkx)
    emit(a,g_bases(-1)+slot_base(52,PP_OFF,PP_SLOT,'s30')+[f'v_mov_b32 v{ACC+i}, 0' for i in range(16)]+['s_add_u32 s40, s30, 1','v_mov_b32 v22, s40',f'v_mov_b32 v{EX+1}, s40',f'v_mov_b32 v{EX+3}, s40'])
    stamp(a,11)
    G_phase(a,SELH,DELAY_QK,nw=QK_NW,L=36,R=144,D=56,lp=29)
    def mf(tl,t): return f'v_smfmac_f32_16x16x64_bf16 {V(ACC+4*tl,4)}, {V(AF+4*t,4)}, {wr((tl*10+t)*8,8)}, v{vIDX}'
    for t in range(5):
        a(f's_waitcnt lgkmcnt({9-t})')
        for tl in range(4): a(mf(tl,t))
    a('s_waitcnt lgkmcnt(0)')
    for t in range(5,10):
        for tl in (0,1): a(mf(tl,t))
    ep=half_sum_pack(ACC,ACC+4,GLx)+[f'ds_write_b64 v{vFW}, {V(GLx,2)}']
    seq=[mf(tl,t) for t in range(5,10) for tl in (2,3)]
    for i,m in enumerate(seq):
        a(m)
        if i>=3 and ep: a(ep.pop(0))
        if i>=5 and ep: a(ep.pop(0))
    emit(a,ep)
    emit(a,half_sum_pack(ACC+8,ACC+12,GLx+2)); a(f'ds_write_b64 v{vFW}, {V(GLx+2,2)} offset:16')
    a('s_waitcnt lgkmcnt(0)'); stamp(a,2); a('s_barrier'); stamp(a,3)
    a(f's_cmp_eq_u32 s30, {nsteps-1}'); a(f's_cbranch_scc1 {Llast}')
    Lw3=a.nl('w3'); Lb3=a.nl('b3'); Lx=a.nl('xs'); Lsm=a.nl('sm')
    a('s_cmp_eq_u32 s3, 3'); a(f's_cbranch_scc1 {Lw3}')
    for t in range(4):
        a(f'ds_read_b64_tr_b16 {V(FF+4*t,2)}, v{vFR} offset:{t*1024}'); a(f'ds_read_b64_tr_b16 {V(FF+4*t+2,2)}, v{vFR} offset:{t*1024+128}')
    a('s_cmp_lg_u32 s3, 0'); a(f's_cbranch_scc1 {Lx}')
    for t in range(4):
        a(f's_waitcnt lgkmcnt({6-2*t})')
        a(f'v_mfma_f32_16x16x32_bf16 {V(SD,4)}, {V(FF+4*t,4)}, {V(FF+4*t,4)}, {"0" if t==0 else V(SD,4)}')
    a(f's_branch {Lsm} ; @in')
    a.lab(Lx)
    Lk0=a.nl('k0'); a('s_cmp_lg_u32 s30, 0'); a(f's_cbranch_scc1 {Lk0}'); flags_wait(0); kx_loads(); a('s_waitcnt vmcnt(0)'); a.lab(Lk0)
    for t in range(4):
        a(f's_waitcnt lgkmcnt({6-2*t})')
        a(f'v_mfma_f32_16x16x32_bf16 {V(SD,4)}, {V(KX+4*t,4)}, {V(FF+4*t,4)}, {"0" if t==0 else V(SD,4)}')
    a.lab(Lsm)
    if EWP_POS=='pre0':
        Lne0=a.nl('ne0'); a('s_cmp_lg_u32 s3, 2'); a(f's_cbranch_scc1 {Lne0} ; @fwd'); a('s_mov_b64 exec, 1'); a(f'global_store_dword v21, v22, s[4:5]{ST}'); a('s_mov_b64 exec, -1'); a(f'{Lne0}: ; @end')
    softmax_part1(a,SD,SE,26,vMW,EX)
    if EWP_POS=='pre':
        Lne1=a.nl('ne1'); a('s_cmp_lg_u32 s3, 2'); a(f's_cbranch_scc1 {Lne1} ; @fwd'); a('s_mov_b64 exec, 1'); a(f'global_store_dword v21, v22, s[4:5]{ST}'); a('s_mov_b64 exec, -1'); a(f'{Lne1}: ; @end')
    stamp(a,4)
    Lsh=a.nl('sh'); Lxw=a.nl('xw')
    a.lab(Lxw)
    for k in range(3): a(f'ds_read_b128 {V(ML+4*k,4)}, v{vMR} offset:{k*256}')
    a('s_waitcnt lgkmcnt(0)')
    a(f'v_min3_u32 v{T0}, v{ML+1}, v{ML+3}, v{ML+5}'); a(f'v_min3_u32 v{T0}, v{T0}, v{ML+7}, v{ML+9}'); a(f'v_min_u32 v{T0}, v{T0}, v{ML+11}')
    a(f'v_cmp_gt_u32 vcc, v22, v{T0}'); a.retry('s_cbranch_vccnz',Lxw)
    stamp(a,5)
    if EWP_POS=='post':
        Lne=a.nl('ne'); a('s_cmp_lg_u32 s3, 2'); a(f's_cbranch_scc1 {Lne} ; @fwd'); a('s_mov_b64 exec, 1'); a(f'global_store_dword v21, v22, s[4:5]{ST}'); a('s_mov_b64 exec, -1'); a(f'{Lne}: ; @end')
    nM,l=T1,T4
    a(f'v_max3_f32 v{T0}, v{ML}, v{ML+4}, v{ML+8}')
    a(f'v_mul_f32 v{nM}, s66, v{T0}')
    for k in range(3): a(f'v_fma_f32 v{ML+4*k}, v{ML+4*k}, s66, -v{nM}')
    a(f'v_fma_f32 v{T2}, v{EX}, s66, -v{nM}')
    for k in range(3): a(f'v_exp_f32 v{ML+4*k}, v{ML+4*k}')
    a(f'v_exp_f32 v{T2}, v{T2}')
    a(f'v_mul_f32 v{l}, v{ML}, v{ML+2}'); a(f'v_fmac_f32 v{l}, v{ML+4}, v{ML+6}'); a(f'v_fmac_f32 v{l}, v{ML+8}, v{ML+10}')
    a(f'v_rcp_f32 v{l}, v{l}')
    a(f'v_mul_f32 v{T2}, v{T2}, v{l}')
    a(f'v_pk_mul_f32 {V(SE,2)}, {V(SE,2)}, {V(T2,2)} op_sel_hi:[1,0]'); a(f'v_pk_mul_f32 {V(SE+2,2)}, {V(SE+2,2)}, {V(T2,2)} op_sel_hi:[1,0]')
    a(f'v_cvt_pk_bf16_f32 v{T0}, v{SE}, v{SE+1}'); a(f'v_cvt_pk_bf16_f32 v{T1}, v{SE+2}, v{SE+3}')
    a(f'v_min_u32 v{T0}, s70, v{T0}')
    a('s_mov_b64 exec, s[78:79]')
    a(f'global_store_dwordx2 v{vPS}, {V(T0,2)}, s[52:53]{ST}')
    a('s_mov_b64 exec, -1')
    if STAMPS=='ev':
        stamp(a,7); a('s_waitcnt vmcnt(0)'); stamp(a,8)
    a(f's_branch {Lsh}')
    a.lab(Lw3)
    Lnz=a.nl('nz'); a('s_cmp_eq_u32 s30, 0'); a(f's_cbranch_scc1 {Lnz}'); a('s_waitcnt vmcnt(0)'); z_flag(-1); a.lab(Lnz)
    for _ in range(W3_DELAY): a('s_sleep 1')
    km_store()
    emit(a,slot_base(58,PP_OFF,PP_SLOT,'s30',-1))
    a(f'global_store_dwordx4 v{vR}, {V(SEN,4)}, s[58:59]{ST}')
    a(f'global_store_dwordx4 v{vR+1}, {V(SEN,4)}, s[58:59]{ST}')
    flags_wait(2)
    km_flag(0)
    a.lab(Lsh)
    stamp(a,6)
    if 'noZC' not in EXP: z_copy()
    z_reset()
    stamp(a,10)
    a('s_add_u32 s30, s30, 1')
    a(f's_branch {Lstep}')
    a.lab(Llast)
    Ld=a.nl('d'); Ld2=a.nl('d2'); a('s_cmp_lg_u32 s3, 3'); a(f's_cbranch_scc1 {Ld}')
    a('s_waitcnt vmcnt(0)'); z_flag(-1)
    km_store(); a('s_waitcnt vmcnt(0)'); km_flag(0)
    a.lab(Ld)
    z_copy(); a('s_waitcnt vmcnt(0)'); a('s_barrier')
    a('s_cmp_lg_u32 s3, 3'); a(f's_cbranch_scc1 {Ld2}'); z_flag(0); a.lab(Ld2)
    if prof: prof(a)
    stamp_dump(a,None,FL_END)
    a('s_waitcnt vmcnt(0)')
    a('s_endpgm')

def vo_weight_load(a, vtmp, perm_e=False):
    a('s_load_dwordx2 s[8:9], s[0:1], %d'%KA['Wv']); a('s_load_dwordx2 s[10:11], s[0:1], %d'%KA['Wo'])
    a('s_waitcnt lgkmcnt(0)')
    a('s_lshl_b32 s40, s3, 18'); a('s_lshl_b32 s41, s16, 8'); a('s_add_u32 s40, s40, s41')
    a('s_add_u32 s8, s8, s40'); a('s_addc_u32 s9, s9, 0')
    a('s_mul_i32 s40, s16, 163840'); a('s_mul_i32 s41, s3, 40960'); a('s_add_u32 s40, s40, s41')
    a('s_add_u32 s10, s10, s40'); a('s_addc_u32 s11, s11, 0')
    def srcs(r):
        if r<5:
            a(f's_add_u32 s40, s8, {r*128*8192}'); a('s_addc_u32 s41, s9, 0'); a('s_mov_b32 s43, 32768')
            a(f'v_lshrrev_b32 v{T4}, 4, v1'); a(f'v_lshlrev_b32 v{T4}, 13, v{T4}')
        else:
            a(f's_add_u32 s40, s10, {(r-5)*256}'); a('s_addc_u32 s41, s11, 0'); a('s_mov_b32 s43, 5120')
            a(f'v_lshrrev_b32 v{T4}, 4, v1'); a(f'v_mul_u32_u24 v{T4}, 1280, v{T4}')
        a(f'v_and_b32 v{T5}, 15, v1'); a(f'v_lshl_add_u32 v{T4}, v{T5}, 4, v{T4}')
    tr_addr16(a,vtmp)
    def trs(r,bufoff):
        if r<5: bl=[(m,tp,(tp*10+2*r+m)*8) for m in range(2) for tp in range(2)]
        else:
            cb=r-5; bl=[(m,tp,160+((2*cb+tp)*2+m)*8) for m in range(2) for tp in range(2)]
        tr_B16(a,vtmp,bufoff,bl)
    load_weights(a,srcs,trs)

LDS_U0=40960; LDS_U1=40960+49152
U_STAG=False; STAG_V=(1,3,5,7,9,11,13,15,17,19); STAG_Z=(2,4,6,8,10,12)
UMOD=' sc1'; U_POS_V=(); U_POS_Z=(0,1,2,3); U_INLINE=True; U_SPLIT=0; U_PACE=0
def gen_VO(a, safe=False, nsteps=NSTEP, prof=None):
    ST=' sc1' if safe else ''
    vTW=10; vTR=11; vPFL=12; vZS=13; vZS2=14; SELH=186
    vL16=15; vPM=16; vZ=17; vZ2=18; vUR=19; vUR1=20; vPX=21; vRW=22; vRR=23; vP=24; vPRm=25; vR=26; vUF=28
    vGF=30-30+190
    LDS_T=LDS_F
    A2=36; ZA=56; ZP=46; ACCV=96
    UF=124; ZF=80; PXF=72; PMF=176; RA=96; SEN=180; GLx=36
    n,g,x,y=T0,T1,T2,T3
    a.c('================ VO role ================')
    masks(a)
    vo_weight_load(a,vTW)
    if SYNC: SYNC(a)
    common_consts(a,SELH,4); lp_const(a,29)
    a('s_mul_i32 s18, s15, 10240'); a('s_sub_u32 s19, 1, s15'); a('s_mul_i32 s19, s19, 10240'); a('s_add_u32 s19, s19, 20480')
    a(f'v_and_b32 v{n}, 15, v1'); a(f'v_lshrrev_b32 v{g}, 4, v1')
    a('s_lshr_b32 s40, s3, 1'); a('s_lshl_b32 s40, s40, 5'); a('s_and_b32 s41, s3, 1'); a('s_lshl_b32 s41, s41, 4'); a('s_add_u32 s40, s40, s41')
    a(f'v_lshrrev_b32 v{x}, 5, v1'); a(f'v_lshlrev_b32 v{x}, 3, v{x}'); a(f'v_add_u32 v{x}, s40, v{x}')
    a(f'v_lshrrev_b32 v{y}, 2, v{n}'); a(f'v_lshl_add_u32 v{x}, v{y}, 1, v{x}'); a(f'v_and_b32 v{y}, 1, v{n}'); a(f'v_add_u32 v{x}, v{x}, v{y}')
    a(f'v_lshlrev_b32 v{x}, 5, v{x}'); a(f'v_bfe_u32 v{y}, v{n}, 1, 1'); a(f'v_lshl_add_u32 v{x}, v{y}, 4, v{x}')
    a(f'v_and_b32 v{y}, 1, v{g}'); a(f'v_lshl_add_u32 v{x}, v{y}, 3, v{x}'); a(f'v_add_u32 v{vTW}, {LDS_T}, v{x}')
    a(f'v_bfe_u32 v{x}, v1, 2, 2'); a(f'v_lshl_add_u32 v{x}, v{g}, 3, v{x}'); a(f'v_lshlrev_b32 v{x}, 5, v{x}')
    a(f'v_and_b32 v{y}, 3, v1'); a(f'v_lshl_add_u32 v{x}, v{y}, 3, v{x}'); a(f'v_add_u32 v{vTR}, {LDS_T}, v{x}')
    a(f'v_lshrrev_b32 v{x}, 5, v1'); a('s_lshl_b32 s40, s3, 1'); a(f'v_add_u32 v{x}, s40, v{x}'); a(f'v_mul_u32_u24 v{x}, 12288, v{x}')
    a('s_mul_i32 s40, s15, 196608'); a('s_mul_i32 s41, s14, 768'); a('s_add_u32 s40, s40, s41'); a(f'v_add_u32 v{x}, s40, v{x}')
    a(f'v_lshl_add_u32 v{x}, v{n}, 4, v{x}'); a(f'v_and_b32 v{y}, 1, v{g}'); a(f'v_lshl_add_u32 v{vZS}, v{y}, 3, v{x}'); a(f'v_add_u32 v{vZS2}, 98304, v{vZS}')
    a(f'v_and_b32 v{x}, 15, v1'); a(f'v_lshlrev_b32 v{x}, 2, v{x}'); a('s_lshl_b32 s40, s15, 8'); a(f's_add_u32 s40, s40, {PF_OFF}'); a(f'v_add_u32 v{vPFL}, s40, v{x}')
    a(f'v_lshlrev_b32 v{vL16}, 4, v1')
    a('s_lshl_b32 s40, s15, 13'); a('s_lshl_b32 s41, s3, 11'); a('s_add_u32 s40, s40, s41'); a(f'v_add_u32 v{vPX}, s40, v{vL16}')
    a('s_lshl_b32 s40, s15, 11'); a('s_lshl_b32 s41, s3, 9'); a('s_add_u32 s40, s40, s41'); a(f's_add_u32 s40, s40, {PM_REL}')
    a(f'v_lshlrev_b32 v{x}, 7, v{g}'); a(f'v_lshl_add_u32 v{x}, v{n}, 4, v{x}'); a(f'v_add_u32 v{vPM}, s40, v{x}')
    a('s_mul_i32 s40, s15, 196608'); a('s_mul_i32 s41, s14, 12288'); a('s_add_u32 s40, s40, s41'); a('s_mul_i32 s41, s3, 3072'); a('s_add_u32 s40, s40, s41')
    a(f'v_mul_u32_u24 v{x}, 768, v{g}'); a(f'v_lshl_add_u32 v{x}, v{n}, 4, v{x}'); a(f'v_add_u32 v{vZ}, s40, v{x}')
    a('s_movk_i32 s41, 256'); a('s_cmp_lt_u32 s14, 8'); a('s_cselect_b32 s40, 512, s41'); a(f'v_add_u32 v{vZ2}, s40, v{vZ}')
    a('s_mul_i32 s41, s3, 12288'); a(f's_add_u32 s41, s41, {LDS_U0}'); a(f'v_add_u32 v{vUR}, s41, v{vL16}'); a(f'v_add_u32 v{vUR1}, 49152, v{vUR}')
    a('s_mul_i32 s40, s3, 1536'); a(f's_add_u32 s40, s40, {LDS_R}'); a(f'v_add_u32 v{vRW}, s40, v{vL16}')
    a('s_cmp_lt_u32 s14, 8'); a('s_cselect_b32 s40, 3, 2'); a('s_mov_b32 s77, s40')
    a(f'v_cmp_gt_u32 vcc, s40, v{g}'); a(f'v_cndmask_b32 v{y}, 0, v{g}, vcc')
    a(f'v_lshlrev_b32 v{y}, 4, v{y}'); a(f'v_add_u32 v{y}, s14, v{y}'); a(f'v_lshlrev_b32 v{y}, 4, v{y}'); a(f'v_add_u32 v{y}, v{y}, v{n}'); a(f'v_lshlrev_b32 v{y}, 4, v{y}')
    a(f'v_add_u32 v{vR}, s18, v{y}'); a(f'v_add_u32 v{vR+1}, 20480, v{vR}')
    a('s_lshl_b32 s40, s15, 7'); a('s_lshl_b32 s41, s14, 2'); a('s_add_u32 s40, s40, s41'); a(f's_add_u32 s40, s40, {GF_OFF}'); a(f'v_mov_b32 v{vGF}, s40')
    a(f'v_and_b32 v{x}, 15, v1'); a(f'v_lshlrev_b32 v{x}, 2, v{x}'); a('s_lshl_b32 s40, s15, 6'); a(f's_add_u32 s40, s40, {UF_OFF}'); a(f'v_add_u32 v{vUF}, s40, v{x}')
    a(f'v_lshrrev_b32 v{n}, 5, v0'); a(f'v_bfe_u32 v{g}, v0, 1, 4'); a(f'v_and_b32 v{x}, 1, v0')
    a(f'v_lshlrev_b32 v{y}, 5, v{n}'); a(f'v_lshl_add_u32 v{y}, v{x}, 4, v{y}'); a(f'v_add_u32 v{y}, v{y}, v{g}'); a(f'v_lshlrev_b32 v{y}, 4, v{y}'); a(f'v_add_u32 v{vRR}, {LDS_R}, v{y}')
    a(f'v_lshlrev_b32 v{y}, 4, v{n}'); a(f'v_add_u32 v{y}, s14, v{y}'); a(f'v_lshlrev_b32 v{y}, 4, v{y}'); a(f'v_add_u32 v{y}, v{y}, v{g}'); a(f'v_lshlrev_b32 v{y}, 4, v{y}')
    a(f'v_lshl_add_u32 v{y}, v{x}, 3, v{y}'); a(f'v_add_u32 v{vP}, s18, v{y}'); a(f'v_add_u32 v{vPRm}, 20480, v{vP}')
    for i in range(4): a(f'v_mov_b32 v{PMF+i}, 0')
    for i in range(4): a(f'v_mov_b32 v{SEN+i}, -1')
    a('s_cmp_eq_u32 s3, 0'); a('s_cselect_b32 s74, -1, 0'); a('s_cselect_b32 s75, -1, 0')
    a('s_cmp_eq_u32 s3, 1'); a('s_cselect_b32 s40, 1, 0'); a('s_cmp_lt_u32 s14, 8'); a('s_cselect_b32 s41, 1, 0'); a('s_and_b32 s40, s40, s41')
    a('s_cmp_eq_u32 s40, 1'); a('s_cselect_b32 s74, -1, s74')
    a('s_or_b32 s76, s74, s75')
    a('s_mul_i32 s33, s15, 786432'); a('s_mul_i32 s40, s14, 49152'); a('s_add_u32 s33, s33, s40'); a('s_mul_i32 s40, s3, 12288'); a('s_add_u32 s33, s33, s40'); a(f's_add_u32 s71, s40, {LDS_U0}')
    a('s_load_dwordx2 s[8:9], s[0:1], %d'%KA['mem0'])
    a(f's_add_u32 s34, s4, {P_OFF+3*P_SLOT}'); a('s_addc_u32 s35, s5, 0')
    a('s_waitcnt lgkmcnt(0)')
    Lskip=a.nl('Pinit'); Lz=a.nl('Pz')
    a('s_cmp_eq_u32 s76, 0'); a(f's_cbranch_scc1 {Lskip}')
    a('s_mov_b64 exec, s[74:75]')
    a(f'v_subrev_u32 v{T0}, s18, v{vP}'); a(f'v_lshrrev_b32 v{T0}, 4, v{T0}'); a(f'v_lshlrev_b32 v{T0}, 1, v{T0}')
    a(f'v_and_b32 v{T1}, 1, v0'); a(f'v_mul_u32_u24 v{T1}, 5120, v{T1}'); a(f'v_add_u32 v{T0}, v{T0}, v{T1}')
    a(f'v_mov_b32 v{T2}, 0'); a(f'v_mov_b32 v{T3}, 0')
    a('s_cmp_lg_u32 s15, 0'); a(f's_cbranch_scc1 {Lz}')
    a(f'global_load_ushort v{T2}, v{T0}, s[8:9]'); a(f'global_load_ushort v{T4}, v{T0}, s[8:9] offset:1280')
    a(f'global_load_ushort v{T3}, v{T0}, s[8:9] offset:2560'); a(f'global_load_ushort v{T5}, v{T0}, s[8:9] offset:3840')
    a('s_waitcnt vmcnt(0)')
    a(f'v_lshl_or_b32 v{T2}, v{T4}, 16, v{T2}'); a(f'v_lshl_or_b32 v{T3}, v{T5}, 16, v{T3}')
    a(f'v_min_u32 v{T2}, s70, v{T2}')
    a.lab(Lz)
    a(f'global_store_dwordx2 v{vP}, {V(T2,2)}, s[34:35]{ST}')
    a(f'global_store_dwordx2 v{vPRm}, {V(T2,2)}, s[34:35] sc1')
    a(f'v_mov_b32 v{T4}, 1'); a(f'global_store_dword v{vGF}, v{T4}, s[4:5]{ST}')
    a('s_mov_b64 exec, -1')
    a.lab(Lskip)
    def uflag(add):
        a(f's_add_u32 s45, s30, {add}'); a('s_min_u32 s45, s45, 63'); a('s_lshl_b32 s46, s45, 7'); a(f'v_add_u32 v{T0}, s46, v{vUF}')
        Lw=a.nl('uf'); a.lab(Lw)
        a(f'global_load_dword v{T1}, v{T0}, s[4:5] sc1'); a('s_waitcnt vmcnt(0)'); a(f'v_cmp_eq_u32 vcc, 0, v{T1}'); a.retry('s_cbranch_vccnz',Lw)
    def pre(add):
        return [f's_add_u32 s45, s30, {add}','s_min_u32 s45, s45, 63',f's_mul_i32 s44, s45, {U_SEG}','s_add_u32 s44, s44, s33','s_add_u32 s28, s4, s44','s_addc_u32 s29, s5, 0',f's_add_u32 s28, s28, {WS_U}','s_addc_u32 s29, s29, 0',
                's_and_b32 s46, s45, 1','s_mul_i32 s46, s46, 49152','s_add_u32 s32, s46, s71']
    def dma_group(w=None):
        if 'noU' in EXP: return []
        L=[]
        Lsk=a.nl('dw')
        if w is not None: L+=[f's_cmp_lg_u32 s3, {w}',f's_cbranch_scc1 {Lsk} ; @fwd']
        L+=['s_mov_b32 m0, s32',f'global_load_lds_dwordx4 v{vL16}, s[28:29]{UMOD}',f'global_load_lds_dwordx4 v{vL16}, s[28:29] offset:1024{UMOD}']
        Ln=a.nl('dg')
        L+=['s_cmp_lt_u32 s77, 3',f's_cbranch_scc1 {Ln} ; @fwd',f'global_load_lds_dwordx4 v{vL16}, s[28:29] offset:2048{UMOD}',f'{Ln}: ; @end','s_add_u32 s28, s28, 3072','s_addc_u32 s29, s29, 0','s_add_u32 s32, s32, 3072']
        if w is not None: L+=[f'{Lsk}: ; @end']
        return L
    def guard0(L):
        Lg=a.nl('g0'); return ['s_cmp_eq_u32 s30, 0',f's_cbranch_scc1 {Lg} ; @fwd']+L+[f'{Lg}: ; @end']
    a('s_mov_b32 s30, 0')
    stamp_init(a)
    Lstep=a.nl('VOstep'); Llast=a.nl('VOlast')
    a.lab(Lstep)
    emit(a,g_bases(-1)+[f'v_mov_b32 v{ACCV+i}, 0' for i in range(8)]+slot_base(54,Z_OFF,Z_SLOT,'s30')+slot_base(52,PP_OFF,PP_SLOT,'s30')+slot_base(34,P_OFF,P_SLOT,'s30')+slot_base(26,P_OFF,P_SLOT,'s30',-2)+['s_add_u32 s40, s30, 2',f'v_mov_b32 v{vGF+1}, s40']+pre(1))
    stamp(a,11)
    G_phase(a,SELH,DELAY_VO,nw=4,L=36,R=80,D=56,lp=29,gate=VO_GATE,d2o=VO_D2)
    vm=[]
    for t in range(10):
        vm.append(f's_waitcnt lgkmcnt({9-t})')
        for tl in (0,1): vm.append(f'v_smfmac_f32_16x16x64_bf16 {V(ACCV+4*tl,4)}, {V(AF+4*t,4)}, {wr((tl*10+t)*8,8)}, v{vIDX}')
    nm=0
    for m in vm:
        a(m)
        if m.startswith('v_smfmac'):
            nm+=1
            if nm%2==0:
                t=nm//2-1
                for i in range(4): a(f'v_mov_b32 v{AF+4*t+i}, 0')
            if U_STAG:
                if nm in STAG_V: emit(a,dma_group(STAG_V.index(nm)%4))
            elif nm in U_POS_V: emit(a,guard0(dma_group()))
    emit(a,half_sum_pack(ACCV,ACCV+4,44))
    a(f'ds_write_b64 v{vTW}, {V(44,2)}')
    a('s_waitcnt lgkmcnt(0)'); stamp(a,2); a('s_barrier'); stamp(a,3)
    for t2 in range(2):
        a(f'ds_read_b64_tr_b16 {V(A2+4*t2,2)}, v{vTR} offset:{t2*1024}'); a(f'ds_read_b64_tr_b16 {V(A2+4*t2+2,2)}, v{vTR} offset:{t2*1024+128}')
    a('s_waitcnt lgkmcnt(0)')
    def zfin(cb):
        z0=ZA+8*cb
        L=half_sum_pack(z0,z0+4,ZP+2*cb)
        L+=[f'v_min_u32 v{ZP+2*cb}, s70, v{ZP+2*cb}']
        L+=[f'global_store_dwordx2 v{vZS2 if cb%2 else vZS}, {V(ZP+2*cb,2)}, s[54:55] offset:{256*(cb//2)}{ST}']
        return L
    pend=[]
    for cb in range(5):
        z0=ZA+8*cb
        for t2 in range(2):
            for dl in range(2):
                u=2*cb+dl
                a(f'v_smfmac_f32_16x16x64_bf16 {V(z0+4*dl,4)}, {V(A2+4*t2,4)}, {wr(160+(u*2+t2)*8,8)}, v{vIDX}')
                for _ in range(3):
                    if pend and not (t2==0 and dl==0): a(pend.pop(0))
                zi=4*cb+2*t2+dl+1
                if U_STAG and zi in STAG_Z: emit(a,dma_group((len(STAG_V)+STAG_Z.index(zi))%4))
        emit(a,pend); pend=zfin(cb)
        if not U_STAG and cb in U_POS_Z: emit(a,guard0(dma_group()))
    emit(a,pend)
    stamp(a,4)
    a(f's_cmp_eq_u32 s30, {nsteps-1}'); a(f's_cbranch_scc1 {Llast}')
    Lu0=a.nl('u0'); a('s_cmp_lg_u32 s30, 0'); a(f's_cbranch_scc1 {Lu0}')
    uflag(0); emit(a,pre(0))
    for _ in range(4): emit(a,dma_group())
    a('s_waitcnt vmcnt(0)'); a('s_barrier')
    a.lab(Lu0)
    Lb1=a.nl('ub1'); Lb2=a.nl('ub2')
    a('s_bitcmp1_b32 s30, 0'); a(f's_cbranch_scc1 {Lb1}')
    for j in range(4):
        for k in range(3): a(f'ds_read_b128 {V(UF+(k*4+j)*4,4)}, v{vUR} offset:{j*3072+k*1024}')
    a(f's_branch {Lb2}')
    a.lab(Lb1)
    for j in range(4):
        for k in range(3): a(f'ds_read_b128 {V(UF+(k*4+j)*4,4)}, v{vUR1} offset:{j*3072+k*1024}')
    a.lab(Lb2)
    zl=[f'global_load_dwordx4 {V(ZF,4)}, v{vZ}, s[54:55] sc1', f'global_load_dwordx4 {V(ZF+4,4)}, v{vZ}, s[54:55] offset:256 sc1', f'global_load_dwordx4 {V(ZF+8,4)}, v{vZ2}, s[54:55] sc1']
    for i in range(12): a(f'v_mov_b32 v{RA+i}, 0')
    stamp(a,6)
    flag_gate(a,vPFL,LDS_GO+4,True)
    stamp(a,5)
    Lp=a.nl('Sp'); Lp1=a.nl('Sp1')
    def ploads():
        a(f'global_load_dwordx4 {V(PXF,4)}, v{vPX}, s[52:53] sc1')
        a(f'global_load_dwordx4 {V(PXF+4,4)}, v{vPX}, s[52:53] offset:1024 sc1')
        a('s_mov_b64 exec, s[60:61]')
        a(f'global_load_dwordx4 {V(PMF,4)}, v{vPM}, s[52:53] sc1')
        a('s_mov_b64 exec, -1')
    ploads(); emit(a,zl)
    a('s_waitcnt vmcnt(3) lgkmcnt(0)')
    a(f's_branch {Lp1}')
    a.lab(Lp)
    ploads(); a('s_waitcnt vmcnt(0)')
    a.lab(Lp1)
    stamp(a,8)
    a(f'v_max3_u32 v{T0}, v{PXF}, v{PXF+2}, v{PXF+4}'); a(f'v_max3_u32 v{T0}, v{T0}, v{PXF+6}, v{PMF}'); a(f'v_max_u32 v{T0}, v{T0}, v{PMF+2}')
    a(f'v_cmp_eq_u32 vcc, -1, v{T0}'); a.retry('s_cbranch_vccnz',Lp)
    for q in range(2):
        for k in range(3): a(f'v_smfmac_f32_16x16x64_bf16 {V(RA+4*k,4)}, {V(PXF+4*q,4)}, {V(UF+(k*4+2*q)*4,8)}, v{vIDX}')
    a('s_waitcnt vmcnt(0)')
    Lzp=a.nl('Zp'); Lzo=a.nl('Zo')
    a.lab(Lzp)
    a(f'v_max3_u32 v{T0}, v{ZF}, v{ZF+2}, v{ZF+4}'); a(f'v_max3_u32 v{T0}, v{T0}, v{ZF+6}, v{ZF+8}'); a(f'v_max_u32 v{T0}, v{T0}, v{ZF+10}')
    a(f'v_cmp_eq_u32 vcc, -1, v{T0}'); a(f's_cbranch_vccz {Lzo}')
    emit(a,zl); a('s_waitcnt vmcnt(0)'); a('s_add_u32 s100, s100, 1'); a('s_cmp_lt_u32 s100, 0x1000000'); a(f's_cbranch_scc1 {Lzp}'); a('s_endpgm')
    a.lab(Lzo)
    for k in range(3): a(f'v_mfma_f32_16x16x32_bf16 {V(RA+4*k,4)}, {V(PMF,4)}, {V(ZF+4*k,4)}, {V(RA+4*k,4)}')
    stamp(a,7)
    emit(a,half_sum_pack(RA,RA+4,None))
    a(f'ds_write_b128 v{vRW}, {V(RA,4)}')
    for i in range(4): a(f'v_mov_b32 v{RA+4+i}, v{RA+8+i}')
    emit(a,half_sum_pack(RA+8,RA+4,None))
    a('s_mov_b64 exec, s[64:65]'); a(f'ds_write_b128 v{vRW}, {V(RA+8,4)} offset:1024'); a('s_mov_b64 exec, -1')
    Lew=a.nl('ew'); a('s_cmp_lg_u32 s3, 2'); a(f's_cbranch_scc1 {Lew} ; @fwd'); a('s_mov_b64 exec, 1'); a(f'global_store_dword v{vGF}, v{vGF+1}, s[4:5]{ST}'); a('s_mov_b64 exec, -1'); a(f'{Lew}: ; @end')
    a('s_waitcnt lgkmcnt(0)'); stamp(a,9); a('s_barrier')
    Lnf2=a.nl('nfin'); Lnx=a.nl('nx')
    a('s_cmp_eq_u32 s76, 0'); a(f's_cbranch_scc1 {Lnf2}')
    a('s_mov_b64 exec, s[74:75]')
    for w in range(4): a(f'ds_read_b128 {V(GLx+4*w,4)}, v{vRR} offset:{w*1536}')
    a('s_waitcnt lgkmcnt(2)')
    a(f'v_pk_add_f32 {V(GLx,2)}, {V(GLx,2)}, {V(GLx+4,2)}'); a(f'v_pk_add_f32 {V(GLx+2,2)}, {V(GLx+2,2)}, {V(GLx+6,2)}')
    a('s_waitcnt lgkmcnt(0)')
    a(f'v_pk_add_f32 {V(GLx+8,2)}, {V(GLx+8,2)}, {V(GLx+12,2)}'); a(f'v_pk_add_f32 {V(GLx+10,2)}, {V(GLx+10,2)}, {V(GLx+14,2)}')
    a(f'v_pk_add_f32 {V(GLx,2)}, {V(GLx,2)}, {V(GLx+8,2)}'); a(f'v_pk_add_f32 {V(GLx+2,2)}, {V(GLx+2,2)}, {V(GLx+10,2)}')
    a(f'v_cvt_pk_bf16_f32 v{T0}, v{GLx}, v{GLx+1}'); a(f'v_cvt_pk_bf16_f32 v{T1}, v{GLx+2}, v{GLx+3}')
    a(f'v_min_u32 v{T0}, s70, v{T0}')
    if PREM_FIRST:
        a(f'global_store_dwordx2 v{vPRm}, {V(T0,2)}, s[34:35]{PREM_MOD}'); a(f'global_store_dwordx2 v{vP}, {V(T0,2)}, s[34:35]{ST}')
    else:
        a(f'global_store_dwordx2 v{vP}, {V(T0,2)}, s[34:35]{ST}'); a(f'global_store_dwordx2 v{vPRm}, {V(T0,2)}, s[34:35]{PREM_MOD}')
    a('s_mov_b64 exec, -1')
    a(f's_branch {Lnx}')
    a.lab(Lnf2)
    a('s_cmp_lg_u32 s3, 3'); a(f's_cbranch_scc1 {Lnx}')
    a(f'global_store_dwordx4 v{vR+1}, {V(SEN,4)}, s[26:27] sc1'); a(f'global_store_dwordx4 v{vR}, {V(SEN,4)}, s[26:27]{ST}')
    uflag(2)
    a.lab(Lnx)
    Lu1=a.nl('u1'); a('s_cmp_lg_u32 s30, 0'); a(f's_cbranch_scc1 {Lu1}')
    uflag(1); emit(a,pre(1))
    for _ in range(4): emit(a,dma_group())
    a.lab(Lu1)
    stamp(a,10)
    a('s_add_u32 s30, s30, 1')
    a(f's_branch {Lstep}')
    a.lab(Llast)
    stamp_dump(a,None,FL_END+1024)
    a('s_waitcnt vmcnt(0)')
    a('s_endpgm')
```

```python
import sys
from asmgen import *
from layout import *
import chain, ext, parta, hazard
NAME='concat_heads__ssm_conv_s4__memory_aug_recurrent_mem_tr__prompt'
KN=NAME+'_kernel'
XA,XB=0,1
PROFW=None
def sync_check(a):
    if PROFW: prof_end(a,PROFW[0],PROFW[1])
    L=a.nl('sc'); Lok=a.nl('sco')
    a('v_mov_b32 v30, 64')
    a.lab(L)
    a('global_load_dword v31, v30, s[6:7] sc1'); a('s_waitcnt vmcnt(0)'); a('v_readfirstlane_b32 s40, v31')
    a('s_cmp_ge_u32 s40, 256'); Lg=a.nl('scg'); a(f's_cbranch_scc1 {Lg}'); a('s_sleep 4'); a('s_add_u32 s100, s100, 64'); a('s_cmp_lt_u32 s100, 0x1000000'); a(f's_cbranch_scc1 {L}'); a('s_endpgm')
    a.lab(Lg)
    a('s_cmp_lg_u32 s101, 0'); a(f's_cbranch_scc1 {Lok}')
    a('v_and_b32 v30, 7, v1'); a('v_lshlrev_b32 v30, 2, v30')
    a('global_load_dword v31, v30, s[6:7] sc1'); a('s_waitcnt vmcnt(0)')
    a(f'v_cmp_ne_u32 vcc, {32 if not FORCE_SAFE else 33}, v31'); a(f's_cbranch_vccz {Lok}')
    a('s_mov_b32 s101, 1'); a('s_lshr_b32 s12, s2, 5'); a('s_and_b32 s17, s2, 31'); a('s_barrier'); a('s_branch L_dispatch')
    a.lab(Lok)
FORCE_SAFE=False
CH_SLEEP=0
PAR_SLEEP=0
def q_delay(a):
    L=a.nl('qd'); Lo=a.nl('qdo')
    a('s_cmp_ge_u32 s14, 16'); a(f's_cbranch_scc1 {Lo}')
    a('s_cmp_lg_u32 s101, 0'); a(f's_cbranch_scc1 {Lo}')
    arrive(a,0)
    a('s_mov_b32 s99, 1')
    a('v_mov_b32 v30, 192')
    a.lab(L)
    a('global_load_dword v31, v30, s[6:7] sc1'); a('s_waitcnt vmcnt(0)'); a('v_readfirstlane_b32 s40, v31')
    a('s_cmp_ge_u32 s40, 64'); a(f's_cbranch_scc1 {Lo}'); a('s_sleep 32'); a('s_add_u32 s100, s100, 256'); a('s_cmp_lt_u32 s100, 0x40000'); a(f's_cbranch_scc1 {L}')
    a.lab(Lo)
def chain_loaded(a):
    L=a.nl('cl')
    a('s_cmp_lg_u32 s3, 0'); a(f's_cbranch_scc1 {L}')
    a('v_mov_b32 v30, 192'); a('v_mov_b32 v31, 1'); a('s_mov_b64 exec, 1'); a('global_atomic_add v30, v31, s[6:7]'); a('s_mov_b64 exec, -1')
    a.lab(L)
def arrive(a, younger):
    L=a.nl('arr')
    a('s_cmp_lg_u32 s101, 0'); a(f's_cbranch_scc1 {L}')
    a('s_cmp_lg_u32 s99, 0'); a(f's_cbranch_scc1 {L}')
    a(f's_waitcnt vmcnt({younger})'); a('s_barrier')
    a('s_cmp_lg_u32 s3, 0'); a(f's_cbranch_scc1 {L}')
    a('v_mov_b32 v30, 64'); a('v_mov_b32 v31, 1'); a('s_mov_b64 exec, 1'); a('global_atomic_add v30, v31, s[6:7]'); a('s_mov_b64 exec, -1')
    a.lab(L)
def gen(stamps=False, prof=False, **kw):
    chain.STAMPS=stamps; chain.ARRIVE=arrive
    chain.DELAY_VO=8; chain.DELAY_QK=4; chain.W3_DELAY=14; chain.G_D2=2; chain.QK_NW=4; chain.GATE_BAR_P=True; chain.GATE_BAR_G=True; chain.ALIGN=True; chain.LATE_START=True; chain.B3_BAR=True; chain.EW_BY3=6; chain.W3_AFTER=6; chain.EWP_POS='pre'; chain.VO_GATE=False; chain.VO_D2=5; chain.U_POS_V=(4,10,16); chain.U_POS_Z=(0,); chain.POLL_DEPTH=3
    for k,v in kw.items(): setattr(chain,k,v)
    a=Asm()
    hdr=open('cdna_kernels/'+NAME+'.s.ref').read().split('\n')
    for l in hdr:
        if l.startswith('; @launch'): break
        a(l)
    a('; @launch grid=(256,1,1) block=(256,1,1) lds=163840')
    a('.amdgcn_target "amdgcn-amd-amdhsa--gfx950"')
    a(kernel_header(KN))
    a('s_cmp_ge_u32 s2, 256'); a('s_cbranch_scc1 L_exit')
    if prof: a('s_memrealtime s[20:21]')
    a(f's_load_dwordx2 s[4:5], s[0:1], {KA["ws"]}'); a(f's_load_dwordx2 s[6:7], s[0:1], {KA["dbg"]}')
    a('s_getreg_b32 s12, hwreg(HW_REG_XCC_ID, 0, 4)')
    a('v_and_b32 v1, 63, v0'); a('v_lshrrev_b32 v30, 6, v0'); a('v_readfirstlane_b32 s3, v30')
    a('s_mov_b32 s101, 0'); a('s_mov_b32 s100, 0'); a('s_mov_b32 s99, 0')
    a('s_waitcnt lgkmcnt(0)')
    a('s_cmp_lg_u32 s3, 0'); a('s_cbranch_scc1 L_tk')
    a('s_lshl_b32 s14, s12, 2'); a('v_mov_b32 v30, s14'); a('v_mov_b32 v31, 1')
    a('s_mov_b64 exec, 1')
    a('global_atomic_add v32, v30, v31, s[6:7] sc0'); a('s_waitcnt vmcnt(0)')
    a('v_mov_b32 v30, 0'); a('ds_write_b32 v30, v32'); a('s_mov_b64 exec, -1'); a('s_waitcnt lgkmcnt(0)')
    a('s_branch L_tk2')
    a.lab('L_tk')
    nsent=(SENT_END-SENT_BEGIN)//256; assert nsent%16==0 and nsent<=3*3072
    a(f's_mul_i32 s40, s2, {nsent}'); a(f's_add_u32 s40, s40, {SENT_BEGIN}')
    a('v_subrev_u32 v33, 64, v0'); a('v_lshlrev_b32 v33, 4, v33'); a('v_add_u32 v34, s40, v33')
    for i in range(4): a(f'v_mov_b32 v{36+i}, -1')
    a('global_store_dwordx4 v34, v[36:39], s[4:5] sc1')
    a('global_store_dwordx4 v34, v[36:39], s[4:5] offset:3072 sc1')
    a(f'v_cmp_gt_u32 vcc, {nsent-6144}, v33'); a('s_and_saveexec_b64 s[42:43], vcc'); a('s_cbranch_execz L_i2')
    a('v_add_u32 v34, 6144, v34'); a('global_store_dwordx4 v34, v[36:39], s[4:5] sc1')
    a.lab('L_i2'); a('s_mov_b64 exec, s[42:43]')
    nfl=(FL_END-FL_OFF)//256; assert nfl%16==0
    a(f's_mul_i32 s40, s2, {nfl}'); a(f's_add_u32 s40, s40, {FL_OFF}'); a('v_add_u32 v34, s40, v33')
    for i in range(4): a(f'v_mov_b32 v{40+i}, 0')
    a(f'v_cmp_gt_u32 vcc, {nfl}, v33'); a('s_and_saveexec_b64 s[42:43], vcc'); a('s_cbranch_execz L_i3')
    a('global_store_dwordx4 v34, v[40:43], s[4:5] sc1')
    a.lab('L_i3'); a('s_mov_b64 exec, s[42:43]')
    a.lab('L_tk2')
    a('s_barrier')
    a('v_mov_b32 v30, 0'); a('ds_read_b32 v32, v30'); a('s_waitcnt lgkmcnt(0)')
    a('v_readfirstlane_b32 s17, v32')
    a('s_barrier')
    a.lab('L_dispatch')
    a('s_cmp_gt_u32 s12, 7'); a('s_cbranch_scc1 L_odd')
    a('s_cmp_lt_u32 s12, 2'); a('s_cbranch_scc1 L_chain')
    a('s_cmp_lt_u32 s12, 4'); a('s_cbranch_scc1 L_e1')
    a('s_cmp_lt_u32 s12, 6'); a('s_cbranch_scc1 L_vu')
    a('s_sub_u32 s40, s12, 6'); a('s_lshl_b32 s29, s40, 5'); a('s_add_u32 s29, s29, s17'); a('s_and_b32 s29, s29, 63')
    arrive(a,0)
    sync_check(a)
    a('s_mov_b32 s23, s29')
    parta.gen_A(a,64)
    if prof: prof_end(a,'s29',0)
    a('s_barrier')
    a('s_cmp_ge_u32 s29, 24'); a('s_cbranch_scc1 L_e3')
    a('s_lshr_b32 s23, s29, 3'); a('s_and_b32 s24, s29, 7')
    ext.gen_E2(a,3); a('s_waitcnt vmcnt(0)')
    if prof: prof_end(a,'s29',64)
    a('s_endpgm')
    a.lab('L_e3')
    a('s_sub_u32 s41, s29, 24'); a('s_mul_hi_u32 s23, s41, 429496730'); a('s_mul_i32 s40, s23, 10'); a('s_sub_u32 s24, s41, s40')
    ext.gen_E3(a,4); a('s_waitcnt vmcnt(0)')
    if prof: prof_end(a,'s29',64)
    a('s_endpgm')
    a.lab('L_odd')
    arrive(a,0)
    sync_check(a)
    a('s_endpgm')
    a.lab('L_e1')
    a('s_and_b32 s17, s17, 31')
    a('s_lshr_b32 s14, s17, 1'); a('s_cmp_eq_u32 s12, 2'); a('s_cselect_b32 s40, 16, 0'); a('s_add_u32 s14, s14, s40'); a('s_and_b32 s15, s17, 1')
    global PROFW
    ext.SYNC=sync_check
    PROFW=('s14',512+128) if prof else None
    ext.END=(lambda a: prof_end(a,'s14',128+0)) if prof else None
    if PAR_SLEEP:
        Lps=a.nl('ps'); a('s_cmp_eq_u32 s15, 0'); a(f's_cbranch_scc1 {Lps}'); a(f's_sleep {PAR_SLEEP}'); a.lab(Lps)
    ext.PRE=q_delay
    ext.gen_E1(a)
    a.lab('L_vu')
    a('s_and_b32 s17, s17, 31')
    a('s_sub_u32 s15, s12, 4'); a('s_lshr_b32 s14, s17, 1'); a('s_lshl_b32 s16, s15, 4'); a('s_add_u32 s16, s16, s14'); a('s_and_b32 s17, s17, 1')
    ext.END=(lambda a: prof_end(a,'s16',160)) if prof else None
    if PAR_SLEEP:
        Lps=a.nl('ps'); a('s_cmp_eq_u32 s17, 0'); a(f's_cbranch_scc1 {Lps}'); a(f's_sleep {PAR_SLEEP}'); a.lab(Lps)
    PROFW=('s16',512+160) if prof else None
    ext.gen_VU(a)
    a.lab('L_chain')
    if CH_SLEEP: a(f's_sleep {CH_SLEEP}')
    a('s_and_b32 s17, s17, 31')
    a('s_mov_b32 s15, s12'); a('s_and_b32 s14, s17, 15'); a('s_lshl_b32 s16, s15, 4'); a('s_add_u32 s16, s16, s14')
    chain.SYNC=lambda a: (chain_loaded(a), sync_check(a))
    a('s_cmp_lg_u32 s101, 0'); a('s_cbranch_scc1 L_chain_safe')
    a('s_cmp_ge_u32 s17, 16'); a('s_cbranch_scc1 L_vo')
    PROFW=('s16',512+192) if prof else None
    chain.gen_QK(a,False,NSTEP,(lambda a: prof_end(a,'s16',192)) if prof else None)
    PROFW=('s16',512+224) if prof else None
    a.lab('L_vo'); chain.gen_VO(a,False)
    PROFW=None
    a.lab('L_chain_safe')
    a('s_cmp_ge_u32 s17, 16'); a('s_cbranch_scc1 L_vo_s')
    chain.gen_QK(a,True)
    a.lab('L_vo_s'); chain.gen_VO(a,True)
    a.lab('L_exit')
    a('s_endpgm')
    a(kernel_desc(KN))
    a.lines=[l for l in a.lines if l is not None]
    t,n=hazard.fix(a.text())
    return t
def prof_end(a, idxreg, base):
    L=a.nl('pe')
    a('s_cmp_lg_u32 s3, 0'); a(f's_cbranch_scc1 {L}')
    a('s_memrealtime s[82:83]'); a('s_waitcnt lgkmcnt(0)')
    a(f's_add_u32 s40, {idxreg}, {base}'); a('s_lshl_b32 s40, s40, 3'); a(f's_add_u32 s40, s40, {FL_END+0x8000}')
    a('v_mov_b32 v30, s40'); a('v_mov_b32 v32, s20'); a('v_mov_b32 v33, s82'); a('global_store_dwordx2 v30, v[32:33], s[4:5]')
    if base==192: a('v_mov_b32 v32, s24'); a('global_store_dword v30, v32, s[4:5] offset:2048')
    a.lab(L)
if __name__=='__main__':
    if len(sys.argv)>2 and sys.argv[2]=='safe': FORCE_SAFE=True
    t=gen(prof=(len(sys.argv)>2 and sys.argv[2]=='prof'))
    out=sys.argv[1] if len(sys.argv)>1 else 'cdna_kernels/'+NAME+'.s'
    open(out,'w').write(t); print(len(t.split('\n')),'lines',len(t),'bytes ->',out)
```

```python
from asmgen import *
from layout import *
SCALE=0x3db504f3
L2E=0x3fb8aa3b
LDS_A=0
LDS_F=10240
LDS_ML=14336
LDS_R=14848
LDS_GO=21504
LDS_ML2=21760
STG_BLK=1088; STG_BUF=32*STG_BLK

def wr(idx,n):
    if idx<256:
        assert idx+n<=256
        return f'a[{idx}:{idx+n-1}]'
    b=192+idx-256
    return f'v[{b}:{b+n-1}]'
def V(b,n=1): return f'v{b}' if n==1 else f'v[{b}:{b+n-1}]'

def interleave(a, mains, fillers, per=2, start=0):
    f=list(fillers)
    for i,m in enumerate(mains):
        a(m)
        if i>=start and not m.startswith('s_waitcnt'):
            for _ in range(per):
                if f: a(f.pop(0))
    for x in f: a(x)

T0,T1,T2,T3,T4,T5=30,31,32,33,34,35
vG=2; vAW=3; vAR=4; vIDX=5; vSEL=6
GL=36; AF=56; GD=56; ACC=96

def masks(a):
    a('s_mov_b32 s60, 0x00ff00ff'); a('s_mov_b32 s61, 0x00ff00ff')
    a('s_mov_b32 s62, 0'); a('s_mov_b32 s63, 0x00ff00ff')
    a('s_mov_b32 s64, -1'); a('s_mov_b32 s65, 0')
    a('s_mov_b32 s72, 0xff00ff00'); a('s_mov_b32 s73, 0xff00ff00')
    a('s_mov_b32 s66, 0x3e0293ee'); a('s_mov_b32 s67, 0x3e0293ee')
    a('s_mov_b32 s70, 0xfffffffe')

def load_weights(a, srcs, trs, NR=10):
    def issue(r):
        srcs(r)
        a(f's_mul_i32 s44, s3, {8*STG_BLK}')
        a(f's_add_u32 s44, s44, {(r%4)*STG_BUF}')
        a(f'v_mov_b32 v{T5}, v{T4}')
        for i in range(8):
            a(f's_add_u32 m0, s44, {i*STG_BLK}')
            a(f'global_load_lds_dwordx4 v{T5}, s[40:41]')
            if i<7: a(f'v_add_u32 v{T5}, s43, v{T5}')
    for r in range(4): issue(r)
    if ARRIVE: ARRIVE(a,32)
    for r in range(NR):
        a(f's_waitcnt vmcnt({8*min(NR-1-r,3)})')
        a('s_barrier')
        trs(r,(r%4)*STG_BUF)
        a('s_waitcnt lgkmcnt(0)')
        a('s_barrier')
        if r+4<NR: issue(r+4)

def tr_addr16(a, dst):
    a(f'v_lshrrev_b32 v{T0}, 4, v1'); a(f'v_mul_u32_u24 v{dst}, {2*STG_BLK}, v{T0}')
    a(f'v_bfe_u32 v{T0}, v1, 2, 2'); a(f'v_lshl_add_u32 v{dst}, v{T0}, 8, v{dst}')
    a(f'v_and_b32 v{T0}, 3, v1'); a(f'v_lshl_add_u32 v{dst}, v{T0}, 3, v{dst}')
    a('s_lshl_b32 s40, s3, 6'); a(f'v_add_u32 v{dst}, s40, v{dst}')
def tr_B16(a, vaddr, bufoff, blocks):
    a(f'v_add_u32 v{T3}, {bufoff}, v{vaddr}')
    for (m,tp,idx) in blocks:
        for hB in range(2):
            for half in range(2):
                off=(m*16+8*hB+half)*STG_BLK+32*tp
                a(f'ds_read_b64_tr_b16 {wr(idx+hB*4+half*2,2)}, v{T3} offset:{off}')

vG3=184; vAW3=185; vSELH=186
SELH=None
DELAY_VO=0; DELAY_QK=0; NU_MID=6
VO_GATE=True; VO_D2=None; G_D2=0; P_TIMED=None; KMOD=' sc1'; EXP=set(); EW_P=0; EW_G=0; Z_DELAY=5; PF_A=6; PF_PACE=1; W3_DELAY=12; EWP_POS='pre'
def common_consts(a, selh, nw=4):
    n,g,x,y=T0,T1,T2,T3
    a(f'v_and_b32 v{n}, 15, v1'); a(f'v_lshrrev_b32 v{g}, 4, v1')
    a(f'v_lshrrev_b32 v{x}, 2, v{n}'); a(f'v_lshlrev_b32 v{x}, 4, v{x}')
    a(f'v_lshrrev_b32 v{y}, 1, v{g}'); a(f'v_lshl_add_u32 v{x}, v{y}, 3, v{x}')
    a(f'v_bfe_u32 v{y}, v{n}, 1, 1'); a(f'v_lshl_add_u32 v{x}, v{y}, 2, v{x}')
    a(f'v_and_b32 v{y}, 1, v{g}'); a(f'v_lshl_add_u32 v{x}, v{y}, 1, v{x}')
    a(f'v_and_b32 v{y}, 1, v{n}'); a(f'v_add_u32 v{x}, v{x}, v{y}')
    a(f'v_lshlrev_b32 v{x}, 4, v{x}')
    a('s_lshl_b32 s40, s3, 10'); a('s_add_u32 s41, s40, 4096')
    a(f'v_add_u32 v{vG}, s41, v{x}')
    a(f'v_lshlrev_b32 v{vAR}, 4, v1'); a(f'v_add_u32 v{vAW}, s40, v{vAR}')
    if nw==4:
        a('s_cmp_lt_u32 s3, 2'); a('s_cselect_b32 s42, 4096, 0')
        a(f'v_add_u32 v{vG3}, s42, v{vG}'); a('s_add_u32 s42, s42, 4096'); a(f'v_add_u32 v{vAW3}, s42, v{vAW}')
    else:
        a('s_movk_i32 s43, 2048'); a('s_cmp_eq_u32 s3, 0'); a('s_cselect_b32 s42, 5120, s43')
        a(f'v_add_u32 v{vG3}, s42, v{vG}'); a('s_add_u32 s42, s42, 4096'); a(f'v_add_u32 v{vAW3}, s42, v{vAW}')
    a(f'v_mov_b32 v{vIDX}, 0x4444'); a(f'v_mov_b32 v{x}, 0xeeee'); a(f'v_cmp_lt_u32 vcc, 7, v{n}'); a(f'v_cndmask_b32 v{vIDX}, v{vIDX}, v{x}, vcc')
    a(f'v_lshrrev_b32 v{x}, 3, v{n}'); a(f'v_and_b32 v{y}, 1, v{g}'); a(f'v_cmp_eq_u32 s[40:41], v{x}, v{y}')
    a(f'v_and_b32 v{x}, 1, v{n}'); a(f'v_lshlrev_b32 v{x}, 4, v{x}'); a(f'v_mov_b32 v{y}, 0x3f80'); a(f'v_lshlrev_b32 v{x}, v{x}, v{y}')
    a(f'v_cndmask_b32 v{x}, 0, v{x}, s[40:41]')
    a(f'v_bfe_u32 v{y}, v{n}, 1, 2')
    a(f'v_cmp_gt_u32 s[42:43], 2, v{g}')
    for d in range(4):
        a(f'v_cmp_eq_u32 vcc, {d}, v{y}'); a(f'v_cndmask_b32 v{T4}, 0, v{x}, vcc')
        a(f'v_cndmask_b32 v{vSEL+d}, 0, v{T4}, s[42:43]'); a(f'v_cndmask_b32 v{selh+d}, v{T4}, 0, s[42:43]')

def g_bases(stepadd):
    return [f's_add_u32 s44, s30, {stepadd&0xffffffff}','s_and_b32 s44, s44, 3',f's_mul_i32 s44, s44, {P_SLOT}',f's_add_u32 s44, s44, {P_OFF}',
            's_add_u32 s45, s44, s18','s_add_u32 s36, s4, s45','s_addc_u32 s37, s5, 0','s_add_u32 s45, s44, s19','s_add_u32 s38, s4, s45','s_addc_u32 s39, s5, 0']
vLP=None
def lp_const(a, reg):
    a(f'v_and_b32 v{T0}, 15, v1'); a(f'v_lshlrev_b32 v{T0}, 2, v{T0}')
    a('s_lshl_b32 s40, s15, 7'); a(f's_add_u32 s40, s40, {GF_OFF}'); a(f'v_add_u32 v{reg}, s40, v{T0}')
    a(f'v_mov_b32 v{T0}, {LDS_GO}'); a(f'v_mov_b32 v{T2}, 0'); a(f'v_mov_b32 v{T3}, 0'); a(f'ds_write_b64 v{T0}, {V(T2,2)}')
    a(f'v_mov_b32 v{T4}, 0'); a(f'v_mov_b32 v{T5}, 0'); a(f'v_lshlrev_b32 v{T0}, 4, v1'); a(f'ds_write_b128 v{T0}, {V(T2,4)} offset:{LDS_ML2}')
    a('s_waitcnt lgkmcnt(0)'); a('s_barrier')
POLL_DEPTH=3
EWG_POS='preB4'
B3_BAR=False; EW_BY3=None; W3_AFTER=6
ALIGN=False
LATE_START=False
PREM_MOD=' sc1'; PREM_FIRST=False
QK_NW=3
GATE_BAR_P=True; GATE_BAR_G=False
def flag_gate(a, vflag, goaddr, dbg=False, bar=False):
    Lq=a.nl('Fq'); Lw=a.nl('Fw'); Lo=a.nl('Fo'); Lk=a.nl('Fk')
    R=[T1,T3,T4][:POLL_DEPTH]; D=len(R)
    a('s_add_u32 s40, s30, 1')
    if not bar: a(f'v_mov_b32 v{T2}, {goaddr}')
    a('s_cmp_lg_u32 s3, 0'); a(f's_cbranch_scc1 {Lo if bar else Lw}')
    a('s_mov_b64 exec, 0xffff')
    for i,r in enumerate(R):
        a(f'global_load_dword v{r}, v{vflag}, s[4:5] sc1')
        if i<D-1: a('s_nop 15')
    a.lab(Lq)
    for i,r in enumerate(R):
        a(f's_waitcnt vmcnt({D-1})')
        a(f'v_cmp_gt_u32 vcc, s40, v{r}'); a(f's_cbranch_vccz {Lk}')
        a(f'global_load_dword v{r}, v{vflag}, s[4:5] sc1')
    a('s_add_u32 s100, s100, 1'); a('s_cmp_lt_u32 s100, 0x1000000'); a(f's_cbranch_scc1 {Lq}'); a('s_endpgm')
    a.lab(Lk)
    if bar:
        a('s_mov_b64 exec, -1')
        a.lab(Lo)
        a('s_barrier')
        return
    a(f'v_mov_b32 v{T0}, s40'); a(f'ds_write_b32 v{T2}, v{T0}')
    a('s_mov_b64 exec, -1')
    a(f's_branch {Lo}')
    a.lab(Lw)
    a(f'ds_read_b32 v{T1}, v{T2}'); a('s_waitcnt lgkmcnt(0)'); a(f'v_cmp_gt_u32 vcc, s40, v{T1}'); a.retry('s_cbranch_vccnz',Lw)
    a.lab(Lo)

def G_phase(a, selh, delay=0, nw=4, mid=None, L=36, R=80, D=56, lp=None, gate=True, d2o=None):
    nl=3 if nw==4 else 4
    offs=[-4096,0] if nw==4 else [-4096,-1024,2048]
    lds=[0,4096] if nw==4 else [0,3072,6144]
    Lskip=a.nl('Gs')
    def loads(dst,base):
        for i,o in enumerate(offs): a(f'global_load_dwordx4 {V(dst+4*i,4)}, v{vG}, s[{base}:{base+1}] offset:{o} sc1')
        a(f'global_load_dwordx4 {V(dst+4*(nl-1),4)}, v{vG3}, s[{base}:{base+1}] sc1')
    def check(src):
        regs=[src+2*i for i in range(2*nl)]
        a(f'v_max3_u32 v{T0}, v{regs[0]}, v{regs[1]}, v{regs[2]}'); k=3
        while k+1<len(regs): a(f'v_max3_u32 v{T0}, v{T0}, v{regs[k]}, v{regs[k+1]}'); k+=2
        if k<len(regs): a(f'v_max_u32 v{T0}, v{T0}, v{regs[k]}')
        a(f'v_cmp_eq_u32 vcc, -1, v{T0}')
    if nw==3: a('s_cmp_eq_u32 s3, 3'); a(f's_cbranch_scc1 {Lskip}')
    if gate: flag_gate(a,lp,LDS_GO,bar=(GATE_BAR_G and nw==4))
    stamp(a,12)
    def loads2(dst,base):
        for i,o in enumerate(offs): a(f'global_load_dwordx4 {V(dst+4*i,4)}, v{vG}, s[{base}:{base+1}] offset:{o} sc1')
        a(f'global_load_dwordx4 {V(dst+4*(nl-1),4)}, v{vG3}, s[{base}:{base+1}] sc1')
    d2=min(delay,G_D2 if d2o is None else d2o)
    Lnd=a.nl('nd')
    if not gate and nw==4 and delay-d2>0: a('s_cmp_eq_u32 s3, 3'); a(f's_cbranch_scc1 {Lnd}')
    for _ in range(delay-d2): a('s_sleep 1')
    a.lab(Lnd)
    loads2(L,36)
    for _ in range(d2): a('s_sleep 1')
    loads2(R,38); a(f's_waitcnt vmcnt({nl})')
    Ll=a.nl('Gl'); Llo=a.nl('Glo')
    a.lab(Ll)
    check(L); a(f's_cbranch_vccz {Llo}')
    loads(L,36); a('s_waitcnt vmcnt(0)'); a('s_add_u32 s100, s100, 1'); a('s_cmp_lt_u32 s100, 0x1000000'); a(f's_cbranch_scc1 {Ll}'); a('s_endpgm')
    a.lab(Llo)
    for i in range(nl):
        for nu in range(2): a(f'v_mfma_f32_16x16x32_bf16 {V(D+8*i+4*nu,4)}, {V(L+4*i,4)}, {V(vSEL if nu==0 else selh,4)}, 0')
    a('s_waitcnt vmcnt(0)')
    Lr=a.nl('Gr'); Lro=a.nl('Gro')
    a.lab(Lr)
    if STAMPS==True: a('s_add_u32 s97, s97, 1')
    check(R); a(f's_cbranch_vccz {Lro}')
    loads(R,38); a('s_waitcnt vmcnt(0)'); a('s_add_u32 s100, s100, 1'); a('s_cmp_lt_u32 s100, 0x1000000'); a(f's_cbranch_scc1 {Lr}'); a('s_endpgm')
    a.lab(Lro)
    stamp(a,0)
    def fin_i(i):
        for q in range(4): a(f'v_cvt_pk_bf16_f32 v{L+4*i+q}, v{D+8*i+2*q}, v{D+8*i+2*q+1}')
        if i<nl-1: a(f'ds_write_b128 v{vAW}, {V(L+4*i,4)} offset:{lds[i]}')
        else: a(f'ds_write_b128 v{vAW3}, {V(L+4*i,4)}')
    for i in range(nl):
        for nu in range(2): a(f'v_mfma_f32_16x16x32_bf16 {V(D+8*i+4*nu,4)}, {V(R+4*i,4)}, {V(vSEL if nu==0 else selh,4)}, {V(D+8*i+4*nu,4)}')
        if i>=2: fin_i(i-2)
    fin_i(nl-2); fin_i(nl-1)
    a('s_waitcnt lgkmcnt(0)')
    a.lab(Lskip)
    a('s_barrier')
    stamp(a,1)
    for t in range(10):
        a(f'ds_read_b128 {V(AF+4*t,4)}, v{vAR} offset:{t*1024}')
GREM=80; GDD=56

def half_sum_pack(t0, t1, out):
    L=[]
    for i in range(4): L.append(f'v_permlane32_swap_b32 v{t0+i}, v{t1+i}')
    L.append(f'v_pk_add_f32 {V(t0,2)}, {V(t0,2)}, {V(t1,2)}')
    L.append(f'v_pk_add_f32 {V(t0+2,2)}, {V(t0+2,2)}, {V(t1+2,2)}')
    if out is not None:
        L.append(f'v_cvt_pk_bf16_f32 v{out}, v{t0}, v{t0+1}')
        L.append(f'v_cvt_pk_bf16_f32 v{out+1}, v{t0+2}, v{t0+3}')
    return L

def slot_base(dst, off, slotsz, stepreg, add=0, tmp='s44'):
    L=[]
    if add: L+= [f's_add_u32 {tmp}, {stepreg}, {add&0xffffffff}', f's_and_b32 {tmp}, {tmp}, 3']
    else: L.append(f's_and_b32 {tmp}, {stepreg}, 3')
    L+=[f's_mul_i32 {tmp}, {tmp}, {slotsz}', f's_add_u32 {tmp}, {tmp}, {off}', f's_add_u32 s{dst}, s4, {tmp}', f's_addc_u32 s{dst+1}, s5, 0']
    return L
def poll_flag(a, offreg_s):
    Lw=a.nl('pf')
    a(f'v_mov_b32 v{T0}, {offreg_s}')
    a.lab(Lw)
    a(f'global_load_dword v{T1}, v{T0}, s[4:5] sc1'); a('s_waitcnt vmcnt(0)')
    a(f'v_cmp_eq_u32 vcc, 0, v{T1}')
    a.retry('s_cbranch_vccnz',Lw)
def emit(a,L):
    for x in L: a(x)

STAMPS=False
ARRIVE=None
SYNC=None
EVSTEP=30
def stamp(a,i):
    if not STAMPS: return
    if STAMPS=='ev':
        L=a.nl('ev')
        a(f's_cmp_lg_u32 s30, {EVSTEP}'); a(f's_cbranch_scc1 {L} ; @fwd')
        a('s_memrealtime s[82:83]'); a('s_waitcnt lgkmcnt(0)'); a(f's_mov_b32 s{84+i}, s82')
        a(f'{L}: ; @end')
        return
    a('s_memtime s[82:83]'); a('s_waitcnt lgkmcnt(0)'); a('s_sub_u32 s99, s82, s98'); a(f's_add_u32 s{84+i}, s{84+i}, s99'); a('s_mov_b32 s98, s82')
def stamp_init(a):
    if not STAMPS: return
    for i in range(14): a(f's_mov_b32 s{84+i}, 0')
    a('s_memtime s[82:83]'); a('s_waitcnt lgkmcnt(0)'); a('s_mov_b32 s98, s82')
def stamp_dump(a, cond_regs, base):
    if not STAMPS: return
    L=a.nl('sd')
    if STAMPS=='ev':
        a('s_lshl_b32 s40, s15, 4'); a('s_add_u32 s40, s40, s14'); a('s_lshl_b32 s40, s40, 2'); a('s_add_u32 s40, s40, s3'); a('s_lshl_b32 s40, s40, 6')
        a(f's_add_u32 s40, s40, {base if base==FL_END else FL_END+8192}')
    else:
        a('s_or_b32 s40, s15, s14'); a('s_cmp_lg_u32 s40, 0'); a(f's_cbranch_scc1 {L}')
        a('s_lshl_b32 s40, s3, 6'); a(f's_add_u32 s40, s40, {base}')
    a('v_mov_b32 v30, s40')
    for i in range(14):
        a(f'v_mov_b32 v31, s{84+i}'); a(f'global_store_dword v30, v31, s[4:5] offset:{4*i}')
    if STAMPS=='ev': a('v_mov_b32 v31, s81'); a('global_store_dword v30, v31, s[4:5] offset:56')
    a.lab(L)

CSC=0x3e0293ee
def softmax_part1(a, D, S, vBI, vMW, EX):
    m,l=EX,EX+2; u=T4
    a(f'v_pk_add_f32 {V(D,2)}, {V(D,2)}, {V(vBI,2)}'); a(f'v_pk_add_f32 {V(D+2,2)}, {V(D+2,2)}, {V(vBI,2)}')
    a(f'v_max3_f32 v{m}, v{D}, v{D+1}, v{D+2}'); a(f'v_max_f32 v{m}, v{m}, v{D+3}')
    a(f'v_mov_b32 v{u}, v{m}'); a(f'v_permlane16_swap_b32 v{m}, v{u}'); a(f'v_max_f32 v{m}, v{m}, v{u}')
    a(f'v_mov_b32 v{u}, v{m}'); a(f'v_permlane32_swap_b32 v{m}, v{u}'); a(f'v_max_f32 v{m}, v{m}, v{u}')
    a(f'v_pk_mul_f32 {V(T2,2)}, {V(m,2)}, s[66:67] op_sel_hi:[0,1]')
    a(f'v_pk_fma_f32 {V(S,2)}, {V(D,2)}, s[66:67], {V(T2,2)} neg_lo:[0,0,1] neg_hi:[0,0,1]')
    a(f'v_pk_fma_f32 {V(S+2,2)}, {V(D+2,2)}, s[66:67], {V(T2,2)} neg_lo:[0,0,1] neg_hi:[0,0,1]')
    for i in range(4): a(f'v_exp_f32 v{S+i}, v{S+i}')
    a(f'v_pk_add_f32 {V(T2,2)}, {V(S,2)}, {V(S+2,2)}'); a(f'v_add_f32 v{l}, v{T2}, v{T3}')
    a(f'v_mov_b32 v{u}, v{l}'); a(f'v_permlane16_swap_b32 v{l}, v{u}'); a(f'v_add_f32 v{l}, v{l}, v{u}')
    a(f'v_mov_b32 v{u}, v{l}'); a(f'v_permlane32_swap_b32 v{l}, v{u}'); a(f'v_add_f32 v{l}, v{l}, v{u}')
    a(f'ds_write_b128 v{vMW}, {V(EX,4)}')

def gen_QK(a, safe=False, nsteps=NSTEP, prof=None):
    ST=' sc1' if safe else ''
    vFW=10; vFR=11; vKX=12; vPS=13; vKM=23; vMW=24; vMR=25
    vSL=26; vSH=27; vNI=28; vPF=14; vZC=15; SEN2=132; ZC=164
    KX=112; vR=180; SELH=186; DUM=128
    SEN=112
    FF=56
    SD=36; SE=40; ML=44; EX=160
    GLx=36
    n,g,x,y=T0,T1,T2,T3
    a.c('================ QK role ================')
    masks(a)
    a('s_load_dwordx2 s[8:9], s[0:1], %d'%KA['Wq']); a('s_load_dwordx2 s[10:11], s[0:1], %d'%KA['Wk'])
    a('s_waitcnt lgkmcnt(0)')
    a(f'v_lshrrev_b32 v{T4}, 4, v1'); a(f'v_lshlrev_b32 v{T4}, 13, v{T4}'); a(f'v_and_b32 v{T5}, 15, v1'); a(f'v_lshl_add_u32 v{T4}, v{T5}, 4, v{T4}')
    a('s_cmp_lt_u32 s3, 2'); a('s_cselect_b32 s12, s8, s10'); a('s_cselect_b32 s13, s9, s11')
    a('s_and_b32 s40, s3, 1'); a('s_lshl_b32 s40, s40, 18')
    a('s_lshl_b32 s41, s16, 8'); a('s_add_u32 s40, s40, s41')
    a('s_add_u32 s12, s12, s40'); a('s_addc_u32 s13, s13, 0')
    a('s_mov_b32 s43, 32768')
    def srcs(r):
        a(f's_add_u32 s40, s12, {r*64*8192}'); a('s_addc_u32 s41, s13, 0')
    tr_addr16(a,vFW)
    def trs(r,bufoff):
        tr_B16(a,vFW,bufoff,[(0,0,(0*10+r)*8),(0,1,(1*10+r)*8),(1,0,(2*10+r)*8),(1,1,(3*10+r)*8)])
    load_weights(a,srcs,trs)
    if SYNC: SYNC(a)
    common_consts(a,SELH,QK_NW); lp_const(a,29)
    a('s_mul_i32 s18, s15, 10240'); a('s_sub_u32 s19, 1, s15'); a('s_mul_i32 s19, s19, 10240'); a('s_add_u32 s19, s19, 20480')
    a(f'v_and_b32 v{n}, 15, v1'); a(f'v_lshrrev_b32 v{g}, 4, v1')
    a(f'v_lshrrev_b32 v{x}, 5, v1'); a(f'v_lshlrev_b32 v{x}, 4, v{x}'); a(f'v_add_u32 v{x}, v{x}, v{n}')
    a('s_lshl_b32 s40, s3, 5'); a(f'v_add_u32 v{x}, s40, v{x}'); a(f'v_lshlrev_b32 v{x}, 5, v{x}')
    a(f'v_and_b32 v{y}, 1, v{g}'); a(f'v_lshl_add_u32 v{x}, v{y}, 3, v{x}'); a(f'v_add_u32 v{vFW}, {LDS_F}, v{x}')
    a(f'v_bfe_u32 v{x}, v1, 2, 2'); a(f'v_lshl_add_u32 v{x}, v{g}, 3, v{x}'); a(f'v_lshlrev_b32 v{x}, 5, v{x}')
    a(f'v_and_b32 v{y}, 3, v1'); a(f'v_lshl_add_u32 v{x}, v{y}, 3, v{x}'); a(f'v_add_u32 v{vFR}, {LDS_F}, v{x}')
    a('s_sub_u32 s40, s3, 1'); a('s_and_b32 s40, s40, 1'); a('s_lshl_b32 s40, s40, 8'); a('s_add_u32 s40, s40, 4096')
    a(f'v_lshlrev_b32 v{x}, 9, v{g}'); a(f'v_lshl_add_u32 v{x}, v{n}, 4, v{x}'); a(f'v_add_u32 v{vKX}, s40, v{x}')
    a(f'v_lshlrev_b32 v{x}, 3, v{g}'); a(f'v_add_u32 v{x}, v{x}, v{n}'); a(f'v_lshlrev_b32 v{x}, 4, v{x}')
    a('s_sub_u32 s40, s3, 1'); a('s_and_b32 s40, s40, 1'); a('s_lshl_b32 s40, s40, 3')
    a('s_lshl_b32 s41, s14, 9'); a('s_add_u32 s40, s40, s41'); a('s_lshl_b32 s41, s15, 13'); a('s_add_u32 s40, s40, s41')
    a(f'v_add_u32 v{vPS}, s40, v{x}')
    a(f'v_and_b32 v{x}, 1, v{g}'); a(f'v_lshlrev_b32 v{x}, 3, v{x}'); a(f'v_lshl_add_u32 v{x}, v{n}, 4, v{x}')
    a('s_lshl_b32 s41, s14, 7'); a('s_lshl_b32 s42, s15, 11'); a('s_add_u32 s41, s41, s42'); a(f's_add_u32 s41, s41, {PM_REL}')
    a(f'v_add_u32 v{x}, s41, v{x}')
    a('s_cmp_eq_u32 s3, 0'); a('s_cselect_b64 vcc, -1, 0'); a(f'v_cndmask_b32 v{vPS}, v{vPS}, v{x}, vcc')
    a('s_lshl_b32 s40, s14, 7'); a('s_lshl_b32 s42, s15, 11'); a('s_add_u32 s40, s40, s42'); a(f's_add_u32 s40, s40, {PM_REL}'); a(f'v_and_b32 v{y}, 7, v1'); a(f'v_lshlrev_b32 v{y}, 4, v{y}'); a(f'v_add_u32 v{vR}, s40, v{y}')
    a('s_lshl_b32 s40, s14, 9'); a('s_lshl_b32 s42, s15, 13'); a('s_add_u32 s40, s40, s42'); a(f'v_and_b32 v{y}, 31, v1'); a(f'v_lshlrev_b32 v{y}, 4, v{y}'); a(f'v_add_u32 v{vR+1}, s40, v{y}')
    a(f'v_lshlrev_b32 v{x}, 7, v{g}'); a(f'v_lshl_add_u32 v{x}, v{n}, 4, v{x}'); a(f'v_subrev_u32 v{vKM}, 128, v{x}')
    a(f'v_lshlrev_b32 v{x}, 4, v{n}'); a(f'v_add_u32 v{vMR}, {LDS_ML2}, v{x}'); a('s_lshl_b32 s40, s3, 8'); a(f'v_add_u32 v{vMW}, s40, v{vMR}')
    a(f'v_lshlrev_b32 v{vPF}, 6, v1')
    a('s_lshl_b32 s40, s15, 8'); a('s_lshl_b32 s41, s14, 2'); a('s_add_u32 s40, s40, s41'); a(f's_add_u32 s40, s40, {PF_OFF}'); a('v_mov_b32 v21, s40')
    a(f'v_mul_u32_u24 v{x}, 12288, v{g}'); a(f'v_lshl_add_u32 v{x}, v{n}, 4, v{x}')
    a('s_mul_i32 s40, s15, 196608'); a('s_mul_i32 s41, s14, 768'); a('s_add_u32 s40, s40, s41'); a('s_mul_i32 s41, s3, 49152'); a('s_add_u32 s40, s40, s41')
    a(f'v_add_u32 v{vZC}, s40, v{x}')
    a('s_movk_i32 s41, 256'); a('s_cmp_lt_u32 s3, 2'); a('s_cselect_b32 s40, 512, s41'); a(f'v_add_u32 v{vZC+1}, s40, v{vZC}')
    for i in range(4): a(f'v_mov_b32 v{SEN2+i}, -1')
    a('s_cmp_eq_u32 s3, 0'); a('s_cselect_b32 s40, -1, 0'); a('s_mov_b32 s41, 0')
    a(f'v_mov_b32 v{x}, 0xff800000'); a(f'v_cndmask_b32 v26, 0, v{x}, s[40:41]'); a('v_mov_b32 v27, v26')
    for i in range(4): a(f'v_mov_b32 v{SEN+i}, -1')
    a('s_cmp_eq_u32 s3, 0'); a('s_cselect_b32 s78, s62, s60'); a('s_cselect_b32 s79, s63, s61')
    def km_flag(add):
        a(f's_add_u32 s46, s30, {add&0xffffffff}'); a('s_lshl_b32 s46, s46, 5'); a('s_add_u32 s46, s46, s16'); a('s_lshl_b32 s46, s46, 2'); a(f's_add_u32 s46, s46, {KMF_OFF}')
        a(f'v_mov_b32 v{T0}, s46'); a(f'v_mov_b32 v{T1}, 1')
        a(f'global_store_dword v{T0}, v{T1}, s[4:5] sc1')
    def km_store():
        for t in range(4):
            a(f'ds_read_b64_tr_b16 {V(FF+4*t,2)}, v{vFR} offset:{t*1024}'); a(f'ds_read_b64_tr_b16 {V(FF+4*t+2,2)}, v{vFR} offset:{t*1024+128}')
        a('s_lshl_b32 s46, s30, 5'); a('s_add_u32 s46, s46, s16'); a('s_lshl_b32 s46, s46, 11'); a(f's_add_u32 s46, s46, {WS_KM}')
        a('s_add_u32 s56, s4, s46'); a('s_addc_u32 s57, s5, 0')
        a('s_waitcnt lgkmcnt(0)')
        a('s_mov_b64 exec, s[72:73]')
        for t in range(4): a(f'global_store_dwordx4 v{vKM}, {V(FF+4*t,4)}, s[56:57] offset:{t*512} sc1')
        a('s_mov_b64 exec, -1')
    def flags_wait(kadd, uadd=None):
        a(f's_add_u32 s45, s30, {kadd}'); a('s_min_u32 s45, s45, 63')
        a('s_lshl_b32 s46, s45, 8'); a('s_lshr_b32 s47, s16, 1'); a('s_add_u32 s47, s47, 16'); a('s_lshl_b32 s47, s47, 2'); a('s_add_u32 s46, s46, s47'); a(f's_add_u32 s46, s46, {QKF_OFF}')
        a(f'v_mov_b32 v{T2}, s46')
        Lw=a.nl('vf'); a.lab(Lw)
        a(f'global_load_dword v{T3}, v{T2}, s[4:5] sc1'); a('s_waitcnt vmcnt(0)')
        a(f'v_cmp_eq_u32 vcc, 0, v{T3}'); a.retry('s_cbranch_vccnz',Lw)
    def prefetch_U(part=None, tgt=None, pace=0):
        if tgt is not None: a(f's_add_u32 s45, s30, {tgt}'); a('s_min_u32 s45, s45, 63')
        a('s_mov_b64 exec, s[64:65]')
        a('s_lshl_b32 s46, s45, 5'); a('s_add_u32 s46, s46, s16'); a('s_lshl_b32 s46, s46, 13'); a(f's_add_u32 s46, s46, {WS_K}'); a('s_add_u32 s48, s4, s46'); a('s_addc_u32 s49, s5, 0')
        for i in range(4):
            a(f'global_load_dword v{DUM}, v{vPF}, s[48:49] offset:{i*2048 if i<2 else i*2048-4096} sc1')
            if i==1: a('s_add_u32 s48, s48, 4096'); a('s_addc_u32 s49, s49, 0')
        a('s_mov_b64 exec, -1')
    def z_copy():
        emit(a,slot_base(54,Z_OFF,Z_SLOT,'s30'))
        a(f's_mul_i32 s44, s30, {ZG_STEP}'); a('s_add_u32 s56, s4, s44'); a('s_addc_u32 s57, s5, 0'); a(f's_add_u32 s56, s56, {WS_ZG}'); a('s_addc_u32 s57, s57, 0')
        Lz=a.nl('zc'); a.lab(Lz)
        a(f'global_load_dwordx4 {V(ZC,4)}, v{vZC}, s[54:55] sc1'); a(f'global_load_dwordx4 {V(ZC+4,4)}, v{vZC}, s[54:55] offset:256 sc1'); a(f'global_load_dwordx4 {V(ZC+8,4)}, v{vZC+1}, s[54:55] sc1')
        a('s_waitcnt vmcnt(0)')
        a(f'v_max3_u32 v{T0}, v{ZC}, v{ZC+2}, v{ZC+4}'); a(f'v_max3_u32 v{T0}, v{T0}, v{ZC+6}, v{ZC+8}'); a(f'v_max_u32 v{T0}, v{T0}, v{ZC+10}')
        a(f'v_cmp_eq_u32 vcc, -1, v{T0}'); a.retry('s_cbranch_vccnz',Lz)
        a(f'global_store_dwordx4 v{vZC}, {V(ZC,4)}, s[56:57] sc1'); a(f'global_store_dwordx4 v{vZC}, {V(ZC+4,4)}, s[56:57] offset:256 sc1'); a(f'global_store_dwordx4 v{vZC+1}, {V(ZC+8,4)}, s[56:57] sc1')
    def z_reset():
        emit(a,slot_base(54,Z_OFF,Z_SLOT,'s30',-1))
        a(f'global_store_dwordx4 v{vZC}, {V(SEN2,4)}, s[54:55]{ST}'); a(f'global_store_dwordx4 v{vZC}, {V(SEN2,4)}, s[54:55] offset:256{ST}'); a(f'global_store_dwordx4 v{vZC+1}, {V(SEN2,4)}, s[54:55]{ST}')
    def z_flag(add):
        a(f's_add_u32 s46, s30, {add&0xffffffff}'); a('s_lshl_b32 s46, s46, 5'); a('s_add_u32 s46, s46, s16'); a('s_lshl_b32 s46, s46, 2'); a(f's_add_u32 s46, s46, {ZF_OFF}')
        a(f'v_mov_b32 v{T0}, s46'); a(f'v_mov_b32 v{T1}, 1')
        a(f'global_store_dword v{T0}, v{T1}, s[4:5] sc1')
    a('s_mov_b32 s30, 0')
    if not LATE_START: flags_wait(0); flags_wait(1)
    if prof: a('s_memtime s[80:81]'); a('s_memrealtime s[24:25]'); a('s_waitcnt lgkmcnt(0)')
    stamp_init(a)
    Lstep=a.nl('QKstep'); Llast=a.nl('QKlast')
    def step(first):
        if prof:
            Lpp=a.nl('pp'); a('s_or_b32 s40, s16, s3'); a('s_cmp_lg_u32 s40, 0'); a(f's_cbranch_scc1 {Lpp}'); a('s_and_b32 s40, s30, 7'); a('s_cmp_lg_u32 s40, 0'); a(f's_cbranch_scc1 {Lpp}')
            a('s_memrealtime s[82:83]'); a('s_waitcnt lgkmcnt(0)'); a('s_lshr_b32 s40, s30, 3'); a('s_lshl_b32 s40, s40, 2'); a(f's_add_u32 s40, s40, {FL_END+0xA000}')
            a('v_mov_b32 v30, s40'); a('v_mov_b32 v31, s82'); a('global_store_dword v30, v31, s[4:5]'); a.lab(Lpp)
        Lnkx=a.nl('nkx')
        def kx_loads():
            a('s_lshl_b32 s46, s30, 5'); a('s_add_u32 s46, s46, s16'); a('s_lshl_b32 s46, s46, 13'); a(f's_add_u32 s46, s46, {WS_K}'); a('s_add_u32 s48, s4, s46'); a('s_addc_u32 s49, s5, 0')
            for t in range(4): a(f'global_load_dwordx4 {V(KX+4*t,4)}, v{vKX}, s[48:49] offset:{t*2048-4096}{KMOD}')
        a('s_sub_u32 s46, s3, 1'); a('s_cmp_gt_u32 s46, 1'); a(f's_cbranch_scc1 {Lnkx}')
        if LATE_START and not first:
            Lk1=a.nl('k1'); a('s_cmp_lg_u32 s30, 1'); a(f's_cbranch_scc1 {Lk1}'); flags_wait(0); a.lab(Lk1)
        if not first: kx_loads()
        a.lab(Lnkx)
        emit(a,g_bases(-1)+slot_base(52,PP_OFF,PP_SLOT,'s30')+[f'v_mov_b32 v{ACC+i}, 0' for i in range(16)]+['s_add_u32 s40, s30, 1','v_mov_b32 v22, s40',f'v_mov_b32 v{EX+1}, s40',f'v_mov_b32 v{EX+3}, s40'])
        stamp(a,11)
        G_phase(a,SELH,DELAY_QK,nw=QK_NW,L=36,R=144,D=56,lp=29)
        def mf(tl,t): return f'v_smfmac_f32_16x16x64_bf16 {V(ACC+4*tl,4)}, {V(AF+4*t,4)}, {wr((tl*10+t)*8,8)}, v{vIDX}'
        for t in range(5):
            a(f's_waitcnt lgkmcnt({9-t})')
            for tl in range(4): a(mf(tl,t))
        a('s_waitcnt lgkmcnt(0)')
        for t in range(5,10):
            for tl in (0,1): a(mf(tl,t))
        ep=half_sum_pack(ACC,ACC+4,GLx)+[f'ds_write_b64 v{vFW}, {V(GLx,2)}']
        seq=[mf(tl,t) for t in range(5,10) for tl in (2,3)]
        for i,m in enumerate(seq):
            a(m)
            if i>=3 and ep: a(ep.pop(0))
            if i>=5 and ep: a(ep.pop(0))
        emit(a,ep)
        emit(a,half_sum_pack(ACC+8,ACC+12,GLx+2)); a(f'ds_write_b64 v{vFW}, {V(GLx+2,2)} offset:16')
        a('s_waitcnt lgkmcnt(0)'); stamp(a,2); a('s_barrier'); stamp(a,3)
        if not first: a(f's_cmp_eq_u32 s30, {nsteps-1}'); a(f's_cbranch_scc1 {Llast}')
        Lw3=a.nl('w3'); Lb3=a.nl('b3'); Lx=a.nl('xs'); Lsm=a.nl('sm')
        a('s_cmp_eq_u32 s3, 3'); a(f's_cbranch_scc1 {Lw3}')
        for t in range(4):
            a(f'ds_read_b64_tr_b16 {V(FF+4*t,2)}, v{vFR} offset:{t*1024}'); a(f'ds_read_b64_tr_b16 {V(FF+4*t+2,2)}, v{vFR} offset:{t*1024+128}')
        a('s_cmp_lg_u32 s3, 0'); a(f's_cbranch_scc1 {Lx}')
        for t in range(4):
            a(f's_waitcnt lgkmcnt({6-2*t})')
            a(f'v_mfma_f32_16x16x32_bf16 {V(SD,4)}, {V(FF+4*t,4)}, {V(FF+4*t,4)}, {"0" if t==0 else V(SD,4)}')
        a(f's_branch {Lsm} ; @in')
        a.lab(Lx)
        if first:
            flags_wait(0); kx_loads(); a('s_waitcnt vmcnt(0)')
        for t in range(4):
            a(f's_waitcnt lgkmcnt({6-2*t})')
            a(f'v_mfma_f32_16x16x32_bf16 {V(SD,4)}, {V(KX+4*t,4)}, {V(FF+4*t,4)}, {"0" if t==0 else V(SD,4)}')
        a.lab(Lsm)
        if EWP_POS=='pre0':
            Lne0=a.nl('ne0'); a('s_cmp_lg_u32 s3, 2'); a(f's_cbranch_scc1 {Lne0} ; @fwd'); a('s_mov_b64 exec, 1'); a(f'global_store_dword v21, v22, s[4:5]{ST}'); a('s_mov_b64 exec, -1'); a(f'{Lne0}: ; @end')
        softmax_part1(a,SD,SE,26,vMW,EX)
        if EWP_POS=='pre' and not (B3_BAR and EW_BY3 is not None):
            Lne1=a.nl('ne1'); a('s_cmp_lg_u32 s3, 2'); a(f's_cbranch_scc1 {Lne1} ; @fwd'); a('s_mov_b64 exec, 1'); a(f'global_store_dword v21, v22, s[4:5]{ST}'); a('s_mov_b64 exec, -1'); a(f'{Lne1}: ; @end')
        stamp(a,4)
        Lsh=a.nl('sh'); Lxw=a.nl('xw')
        if B3_BAR:
            a('s_waitcnt lgkmcnt(0)'); a('s_barrier')
            for k in range(3): a(f'ds_read_b128 {V(ML+4*k,4)}, v{vMR} offset:{k*256}')
            if EW_BY3 is None: a('s_waitcnt lgkmcnt(0)')
            else: a('s_waitcnt lgkmcnt(0)')
        else:
            a.lab(Lxw)
            for k in range(3): a(f'ds_read_b128 {V(ML+4*k,4)}, v{vMR} offset:{k*256}')
            a('s_waitcnt lgkmcnt(0)')
            a(f'v_min3_u32 v{T0}, v{ML+1}, v{ML+3}, v{ML+5}'); a(f'v_min3_u32 v{T0}, v{T0}, v{ML+7}, v{ML+9}'); a(f'v_min_u32 v{T0}, v{T0}, v{ML+11}')
            a(f'v_cmp_gt_u32 vcc, v22, v{T0}'); a.retry('s_cbranch_vccnz',Lxw)
        stamp(a,5)
        if EWP_POS=='post':
            Lne=a.nl('ne'); a('s_cmp_lg_u32 s3, 2'); a(f's_cbranch_scc1 {Lne} ; @fwd'); a('s_mov_b64 exec, 1'); a(f'global_store_dword v21, v22, s[4:5]{ST}'); a('s_mov_b64 exec, -1'); a(f'{Lne}: ; @end')
        nM,l=T1,T4
        a(f'v_max3_f32 v{T0}, v{ML}, v{ML+4}, v{ML+8}')
        a(f'v_mul_f32 v{nM}, s66, v{T0}')
        for k in range(3): a(f'v_fma_f32 v{ML+4*k}, v{ML+4*k}, s66, -v{nM}')
        a(f'v_fma_f32 v{T2}, v{EX}, s66, -v{nM}')
        for k in range(3): a(f'v_exp_f32 v{ML+4*k}, v{ML+4*k}')
        a(f'v_exp_f32 v{T2}, v{T2}')
        a(f'v_mul_f32 v{l}, v{ML}, v{ML+2}'); a(f'v_fmac_f32 v{l}, v{ML+4}, v{ML+6}'); a(f'v_fmac_f32 v{l}, v{ML+8}, v{ML+10}')
        a(f'v_rcp_f32 v{l}, v{l}')
        a(f'v_mul_f32 v{T2}, v{T2}, v{l}')
        a(f'v_pk_mul_f32 {V(SE,2)}, {V(SE,2)}, {V(T2,2)} op_sel_hi:[1,0]'); a(f'v_pk_mul_f32 {V(SE+2,2)}, {V(SE+2,2)}, {V(T2,2)} op_sel_hi:[1,0]')
        a(f'v_cvt_pk_bf16_f32 v{T0}, v{SE}, v{SE+1}'); a(f'v_cvt_pk_bf16_f32 v{T1}, v{SE+2}, v{SE+3}')
        a(f'v_min_u32 v{T0}, s70, v{T0}')
        a('s_mov_b64 exec, s[78:79]')
        a(f'global_store_dwordx2 v{vPS}, {V(T0,2)}, s[52:53]{ST}')
        a('s_mov_b64 exec, -1')
        if STAMPS=='ev':
            stamp(a,7); a('s_waitcnt vmcnt(0)'); stamp(a,8)
        a(f's_branch {Lsh}')
        a.lab(Lw3)
        Lnz=a.nl('nz'); a('s_cmp_eq_u32 s30, 0'); a(f's_cbranch_scc1 {Lnz}'); a('s_waitcnt vmcnt(0)'); z_flag(-1); a.lab(Lnz)
        if B3_BAR:
            if EW_BY3 is not None:
                for _ in range(EW_BY3): a('s_sleep 1')
                a('s_mov_b64 exec, 1'); a(f'global_store_dword v21, v22, s[4:5]{ST}'); a('s_mov_b64 exec, -1')
            a('s_barrier')
            for _ in range(W3_AFTER): a('s_sleep 1')
        else:
            for _ in range(W3_DELAY): a('s_sleep 1')
        km_store()
        emit(a,slot_base(58,PP_OFF,PP_SLOT,'s30',-1))
        a(f'global_store_dwordx4 v{vR}, {V(SEN,4)}, s[58:59]{ST}')
        a(f'global_store_dwordx4 v{vR+1}, {V(SEN,4)}, s[58:59]{ST}')
        flags_wait(2)
        km_flag(0)
        a.lab(Lsh)
        stamp(a,6)
        if 'noZC' not in EXP: z_copy()
        z_reset()
        stamp(a,10)
        a('s_add_u32 s30, s30, 1')
    if LATE_START: step(True)
    if ALIGN: a('.p2align 6')
    a.lab(Lstep)
    step(False)
    a(f's_branch {Lstep}')
    a.lab(Llast)
    Ld=a.nl('d'); Ld2=a.nl('d2'); a('s_cmp_lg_u32 s3, 3'); a(f's_cbranch_scc1 {Ld}')
    a('s_waitcnt vmcnt(0)'); z_flag(-1)
    km_store(); a('s_waitcnt vmcnt(0)'); km_flag(0)
    a.lab(Ld)
    z_copy(); a('s_waitcnt vmcnt(0)'); a('s_barrier')
    a('s_cmp_lg_u32 s3, 3'); a(f's_cbranch_scc1 {Ld2}'); z_flag(0); a.lab(Ld2)
    if prof: prof(a)
    stamp_dump(a,None,FL_END)
    a('s_waitcnt vmcnt(0)')
    a('s_endpgm')

def vo_weight_load(a, vtmp, perm_e=False):
    a('s_load_dwordx2 s[8:9], s[0:1], %d'%KA['Wv']); a('s_load_dwordx2 s[10:11], s[0:1], %d'%KA['Wo'])
    a('s_waitcnt lgkmcnt(0)')
    a('s_lshl_b32 s40, s3, 18'); a('s_lshl_b32 s41, s16, 8'); a('s_add_u32 s40, s40, s41')
    a('s_add_u32 s8, s8, s40'); a('s_addc_u32 s9, s9, 0')
    a('s_mul_i32 s40, s16, 163840'); a('s_mul_i32 s41, s3, 40960'); a('s_add_u32 s40, s40, s41')
    a('s_add_u32 s10, s10, s40'); a('s_addc_u32 s11, s11, 0')
    def srcs(r):
        if r<5:
            a(f's_add_u32 s40, s8, {r*128*8192}'); a('s_addc_u32 s41, s9, 0'); a('s_mov_b32 s43, 32768')
            a(f'v_lshrrev_b32 v{T4}, 4, v1'); a(f'v_lshlrev_b32 v{T4}, 13, v{T4}')
        else:
            a(f's_add_u32 s40, s10, {(r-5)*256}'); a('s_addc_u32 s41, s11, 0'); a('s_mov_b32 s43, 5120')
            a(f'v_lshrrev_b32 v{T4}, 4, v1'); a(f'v_mul_u32_u24 v{T4}, 1280, v{T4}')
        a(f'v_and_b32 v{T5}, 15, v1'); a(f'v_lshl_add_u32 v{T4}, v{T5}, 4, v{T4}')
    tr_addr16(a,vtmp)
    def trs(r,bufoff):
        if r<5: bl=[(m,tp,(tp*10+2*r+m)*8) for m in range(2) for tp in range(2)]
        else:
            cb=r-5; bl=[(m,tp,160+((2*cb+tp)*2+m)*8) for m in range(2) for tp in range(2)]
        tr_B16(a,vtmp,bufoff,bl)
    load_weights(a,srcs,trs)

LDS_U0=40960; LDS_U1=40960+49152
U_STAG=False; STAG_V=(1,3,5,7,9,11,13,15,17,19); STAG_Z=(2,4,6,8,10,12)
UMOD=' sc1'; U_POS_V=(); U_POS_Z=(0,1,2,3); U_INLINE=True; U_SPLIT=0; U_PACE=0
def gen_VO(a, safe=False, nsteps=NSTEP, prof=None):
    ST=' sc1' if safe else ''
    vTW=10; vTR=11; vPFL=12; vZS=13; vZS2=14; SELH=186
    vL16=15; vPM=16; vZ=17; vZ2=18; vUR=19; vUR1=20; vPX=21; vRW=22; vRR=23; vP=24; vPRm=25; vR=26; vUF=28
    vGF=30-30+190
    LDS_T=LDS_F
    A2=36; ZA=56; ZP=46; ACCV=96
    UF=124; ZF=80; PXF=72; PMF=176; RA=96; SEN=180; GLx=36
    n,g,x,y=T0,T1,T2,T3
    a.c('================ VO role ================')
    masks(a)
    vo_weight_load(a,vTW)
    if SYNC: SYNC(a)
    common_consts(a,SELH,4); lp_const(a,29)
    a('s_mul_i32 s18, s15, 10240'); a('s_sub_u32 s19, 1, s15'); a('s_mul_i32 s19, s19, 10240'); a('s_add_u32 s19, s19, 20480')
    a(f'v_and_b32 v{n}, 15, v1'); a(f'v_lshrrev_b32 v{g}, 4, v1')
    a('s_lshr_b32 s40, s3, 1'); a('s_lshl_b32 s40, s40, 5'); a('s_and_b32 s41, s3, 1'); a('s_lshl_b32 s41, s41, 4'); a('s_add_u32 s40, s40, s41')
    a(f'v_lshrrev_b32 v{x}, 5, v1'); a(f'v_lshlrev_b32 v{x}, 3, v{x}'); a(f'v_add_u32 v{x}, s40, v{x}')
    a(f'v_lshrrev_b32 v{y}, 2, v{n}'); a(f'v_lshl_add_u32 v{x}, v{y}, 1, v{x}'); a(f'v_and_b32 v{y}, 1, v{n}'); a(f'v_add_u32 v{x}, v{x}, v{y}')
    a(f'v_lshlrev_b32 v{x}, 5, v{x}'); a(f'v_bfe_u32 v{y}, v{n}, 1, 1'); a(f'v_lshl_add_u32 v{x}, v{y}, 4, v{x}')
    a(f'v_and_b32 v{y}, 1, v{g}'); a(f'v_lshl_add_u32 v{x}, v{y}, 3, v{x}'); a(f'v_add_u32 v{vTW}, {LDS_T}, v{x}')
    a(f'v_bfe_u32 v{x}, v1, 2, 2'); a(f'v_lshl_add_u32 v{x}, v{g}, 3, v{x}'); a(f'v_lshlrev_b32 v{x}, 5, v{x}')
    a(f'v_and_b32 v{y}, 3, v1'); a(f'v_lshl_add_u32 v{x}, v{y}, 3, v{x}'); a(f'v_add_u32 v{vTR}, {LDS_T}, v{x}')
    a(f'v_lshrrev_b32 v{x}, 5, v1'); a('s_lshl_b32 s40, s3, 1'); a(f'v_add_u32 v{x}, s40, v{x}'); a(f'v_mul_u32_u24 v{x}, 12288, v{x}')
    a('s_mul_i32 s40, s15, 196608'); a('s_mul_i32 s41, s14, 768'); a('s_add_u32 s40, s40, s41'); a(f'v_add_u32 v{x}, s40, v{x}')
    a(f'v_lshl_add_u32 v{x}, v{n}, 4, v{x}'); a(f'v_and_b32 v{y}, 1, v{g}'); a(f'v_lshl_add_u32 v{vZS}, v{y}, 3, v{x}'); a(f'v_add_u32 v{vZS2}, 98304, v{vZS}')
    a(f'v_and_b32 v{x}, 15, v1'); a(f'v_lshlrev_b32 v{x}, 2, v{x}'); a('s_lshl_b32 s40, s15, 8'); a(f's_add_u32 s40, s40, {PF_OFF}'); a(f'v_add_u32 v{vPFL}, s40, v{x}')
    a(f'v_lshlrev_b32 v{vL16}, 4, v1')
    a('s_lshl_b32 s40, s15, 13'); a('s_lshl_b32 s41, s3, 11'); a('s_add_u32 s40, s40, s41'); a(f'v_add_u32 v{vPX}, s40, v{vL16}')
    a('s_lshl_b32 s40, s15, 11'); a('s_lshl_b32 s41, s3, 9'); a('s_add_u32 s40, s40, s41'); a(f's_add_u32 s40, s40, {PM_REL}')
    a(f'v_lshlrev_b32 v{x}, 7, v{g}'); a(f'v_lshl_add_u32 v{x}, v{n}, 4, v{x}'); a(f'v_add_u32 v{vPM}, s40, v{x}')
    a('s_mul_i32 s40, s15, 196608'); a('s_mul_i32 s41, s14, 12288'); a('s_add_u32 s40, s40, s41'); a('s_mul_i32 s41, s3, 3072'); a('s_add_u32 s40, s40, s41')
    a(f'v_mul_u32_u24 v{x}, 768, v{g}'); a(f'v_lshl_add_u32 v{x}, v{n}, 4, v{x}'); a(f'v_add_u32 v{vZ}, s40, v{x}')
    a('s_movk_i32 s41, 256'); a('s_cmp_lt_u32 s14, 8'); a('s_cselect_b32 s40, 512, s41'); a(f'v_add_u32 v{vZ2}, s40, v{vZ}')
    a('s_mul_i32 s41, s3, 12288'); a(f's_add_u32 s41, s41, {LDS_U0}'); a(f'v_add_u32 v{vUR}, s41, v{vL16}'); a(f'v_add_u32 v{vUR1}, 49152, v{vUR}')
    a('s_mul_i32 s40, s3, 1536'); a(f's_add_u32 s40, s40, {LDS_R}'); a(f'v_add_u32 v{vRW}, s40, v{vL16}')
    a('s_cmp_lt_u32 s14, 8'); a('s_cselect_b32 s40, 3, 2'); a('s_mov_b32 s77, s40')
    a(f'v_cmp_gt_u32 vcc, s40, v{g}'); a(f'v_cndmask_b32 v{y}, 0, v{g}, vcc')
    a(f'v_lshlrev_b32 v{y}, 4, v{y}'); a(f'v_add_u32 v{y}, s14, v{y}'); a(f'v_lshlrev_b32 v{y}, 4, v{y}'); a(f'v_add_u32 v{y}, v{y}, v{n}'); a(f'v_lshlrev_b32 v{y}, 4, v{y}')
    a(f'v_add_u32 v{vR}, s18, v{y}'); a(f'v_add_u32 v{vR+1}, 20480, v{vR}')
    a('s_lshl_b32 s40, s15, 7'); a('s_lshl_b32 s41, s14, 2'); a('s_add_u32 s40, s40, s41'); a(f's_add_u32 s40, s40, {GF_OFF}'); a(f'v_mov_b32 v{vGF}, s40')
    a(f'v_and_b32 v{x}, 15, v1'); a(f'v_lshlrev_b32 v{x}, 2, v{x}'); a('s_lshl_b32 s40, s15, 6'); a(f's_add_u32 s40, s40, {UF_OFF}'); a(f'v_add_u32 v{vUF}, s40, v{x}')
    a(f'v_lshrrev_b32 v{n}, 5, v0'); a(f'v_bfe_u32 v{g}, v0, 1, 4'); a(f'v_and_b32 v{x}, 1, v0')
    a(f'v_lshlrev_b32 v{y}, 5, v{n}'); a(f'v_lshl_add_u32 v{y}, v{x}, 4, v{y}'); a(f'v_add_u32 v{y}, v{y}, v{g}'); a(f'v_lshlrev_b32 v{y}, 4, v{y}'); a(f'v_add_u32 v{vRR}, {LDS_R}, v{y}')
    a(f'v_lshlrev_b32 v{y}, 4, v{n}'); a(f'v_add_u32 v{y}, s14, v{y}'); a(f'v_lshlrev_b32 v{y}, 4, v{y}'); a(f'v_add_u32 v{y}, v{y}, v{g}'); a(f'v_lshlrev_b32 v{y}, 4, v{y}')
    a(f'v_lshl_add_u32 v{y}, v{x}, 3, v{y}'); a(f'v_add_u32 v{vP}, s18, v{y}'); a(f'v_add_u32 v{vPRm}, 20480, v{vP}')
    for i in range(4): a(f'v_mov_b32 v{PMF+i}, 0')
    for i in range(4): a(f'v_mov_b32 v{SEN+i}, -1')
    a('s_cmp_eq_u32 s3, 0'); a('s_cselect_b32 s74, -1, 0'); a('s_cselect_b32 s75, -1, 0')
    a('s_cmp_eq_u32 s3, 1'); a('s_cselect_b32 s40, 1, 0'); a('s_cmp_lt_u32 s14, 8'); a('s_cselect_b32 s41, 1, 0'); a('s_and_b32 s40, s40, s41')
    a('s_cmp_eq_u32 s40, 1'); a('s_cselect_b32 s74, -1, s74')
    a('s_or_b32 s76, s74, s75')
    a('s_mul_i32 s33, s15, 786432'); a('s_mul_i32 s40, s14, 49152'); a('s_add_u32 s33, s33, s40'); a('s_mul_i32 s40, s3, 12288'); a('s_add_u32 s33, s33, s40'); a(f's_add_u32 s71, s40, {LDS_U0}')
    a('s_load_dwordx2 s[8:9], s[0:1], %d'%KA['mem0'])
    a(f's_add_u32 s34, s4, {P_OFF+3*P_SLOT}'); a('s_addc_u32 s35, s5, 0')
    a('s_waitcnt lgkmcnt(0)')
    Lskip=a.nl('Pinit'); Lz=a.nl('Pz')
    a('s_cmp_eq_u32 s76, 0'); a(f's_cbranch_scc1 {Lskip}')
    a('s_mov_b64 exec, s[74:75]')
    a(f'v_subrev_u32 v{T0}, s18, v{vP}'); a(f'v_lshrrev_b32 v{T0}, 4, v{T0}'); a(f'v_lshlrev_b32 v{T0}, 1, v{T0}')
    a(f'v_and_b32 v{T1}, 1, v0'); a(f'v_mul_u32_u24 v{T1}, 5120, v{T1}'); a(f'v_add_u32 v{T0}, v{T0}, v{T1}')
    a(f'v_mov_b32 v{T2}, 0'); a(f'v_mov_b32 v{T3}, 0')
    a('s_cmp_lg_u32 s15, 0'); a(f's_cbranch_scc1 {Lz}')
    a(f'global_load_ushort v{T2}, v{T0}, s[8:9]'); a(f'global_load_ushort v{T4}, v{T0}, s[8:9] offset:1280')
    a(f'global_load_ushort v{T3}, v{T0}, s[8:9] offset:2560'); a(f'global_load_ushort v{T5}, v{T0}, s[8:9] offset:3840')
    a('s_waitcnt vmcnt(0)')
    a(f'v_lshl_or_b32 v{T2}, v{T4}, 16, v{T2}'); a(f'v_lshl_or_b32 v{T3}, v{T5}, 16, v{T3}')
    a(f'v_min_u32 v{T2}, s70, v{T2}')
    a.lab(Lz)
    a(f'global_store_dwordx2 v{vP}, {V(T2,2)}, s[34:35]{ST}')
    a(f'global_store_dwordx2 v{vPRm}, {V(T2,2)}, s[34:35] sc1')
    a(f'v_mov_b32 v{T4}, 1'); a(f'global_store_dword v{vGF}, v{T4}, s[4:5]{ST}')
    a('s_mov_b64 exec, -1')
    a.lab(Lskip)
    def uflag(add):
        a(f's_add_u32 s45, s30, {add}'); a('s_min_u32 s45, s45, 63'); a('s_lshl_b32 s46, s45, 7'); a(f'v_add_u32 v{T0}, s46, v{vUF}')
        Lw=a.nl('uf'); a.lab(Lw)
        a(f'global_load_dword v{T1}, v{T0}, s[4:5] sc1'); a('s_waitcnt vmcnt(0)'); a(f'v_cmp_eq_u32 vcc, 0, v{T1}'); a.retry('s_cbranch_vccnz',Lw)
    def pre(add):
        return [f's_add_u32 s45, s30, {add}','s_min_u32 s45, s45, 63',f's_mul_i32 s44, s45, {U_SEG}','s_add_u32 s44, s44, s33','s_add_u32 s28, s4, s44','s_addc_u32 s29, s5, 0',f's_add_u32 s28, s28, {WS_U}','s_addc_u32 s29, s29, 0',
                's_and_b32 s46, s45, 1','s_mul_i32 s46, s46, 49152','s_add_u32 s32, s46, s71']
    def dma_group(w=None):
        if 'noU' in EXP: return []
        L=[]
        Lsk=a.nl('dw')
        if w is not None: L+=[f's_cmp_lg_u32 s3, {w}',f's_cbranch_scc1 {Lsk} ; @fwd']
        L+=['s_mov_b32 m0, s32',f'global_load_lds_dwordx4 v{vL16}, s[28:29]{UMOD}',f'global_load_lds_dwordx4 v{vL16}, s[28:29] offset:1024{UMOD}']
        Ln=a.nl('dg')
        L+=['s_cmp_lt_u32 s77, 3',f's_cbranch_scc1 {Ln} ; @fwd',f'global_load_lds_dwordx4 v{vL16}, s[28:29] offset:2048{UMOD}',f'{Ln}: ; @end','s_add_u32 s28, s28, 3072','s_addc_u32 s29, s29, 0','s_add_u32 s32, s32, 3072']
        if w is not None: L+=[f'{Lsk}: ; @end']
        return L
    def guard0(L):
        if not LATE_START: return L
        Lg=a.nl('g0'); return ['s_cmp_eq_u32 s30, 0',f's_cbranch_scc1 {Lg} ; @fwd']+L+[f'{Lg}: ; @end']
    a('s_mov_b32 s30, 0')
    if not LATE_START:
        uflag(0); emit(a,pre(0))
        for _ in range(4): emit(a,dma_group())
        uflag(1)
    stamp_init(a)
    Lstep=a.nl('VOstep'); Llast=a.nl('VOlast')
    def step(first):
        emit(a,g_bases(-1)+[f'v_mov_b32 v{ACCV+i}, 0' for i in range(8)]+slot_base(54,Z_OFF,Z_SLOT,'s30')+slot_base(52,PP_OFF,PP_SLOT,'s30')+slot_base(34,P_OFF,P_SLOT,'s30')+slot_base(26,P_OFF,P_SLOT,'s30',-2)+['s_add_u32 s40, s30, 2',f'v_mov_b32 v{vGF+1}, s40']+pre(1))
        stamp(a,11)
        G_phase(a,SELH,DELAY_VO,nw=4,L=36,R=80,D=56,lp=29,gate=VO_GATE,d2o=VO_D2)
        vm=[]
        for t in range(10):
            vm.append(f's_waitcnt lgkmcnt({9-t})')
            for tl in (0,1): vm.append(f'v_smfmac_f32_16x16x64_bf16 {V(ACCV+4*tl,4)}, {V(AF+4*t,4)}, {wr((tl*10+t)*8,8)}, v{vIDX}')
        nm=0
        for m in vm:
            a(m)
            if m.startswith('v_smfmac'):
                nm+=1
                if nm%2==0:
                    t=nm//2-1
                    for i in range(4): a(f'v_mov_b32 v{AF+4*t+i}, 0')
                if U_STAG:
                    if nm in STAG_V: emit(a,dma_group(STAG_V.index(nm)%4))
                elif nm in U_POS_V: emit(a,[] if first else dma_group())
        emit(a,half_sum_pack(ACCV,ACCV+4,44))
        a(f'ds_write_b64 v{vTW}, {V(44,2)}')
        a('s_waitcnt lgkmcnt(0)'); stamp(a,2); a('s_barrier'); stamp(a,3)
        for t2 in range(2):
            a(f'ds_read_b64_tr_b16 {V(A2+4*t2,2)}, v{vTR} offset:{t2*1024}'); a(f'ds_read_b64_tr_b16 {V(A2+4*t2+2,2)}, v{vTR} offset:{t2*1024+128}')
        a('s_waitcnt lgkmcnt(0)')
        def zfin(cb):
            z0=ZA+8*cb
            L=half_sum_pack(z0,z0+4,ZP+2*cb)
            L+=[f'v_min_u32 v{ZP+2*cb}, s70, v{ZP+2*cb}']
            L+=[f'global_store_dwordx2 v{vZS2 if cb%2 else vZS}, {V(ZP+2*cb,2)}, s[54:55] offset:{256*(cb//2)}{ST}']
            return L
        pend=[]
        for cb in range(5):
            z0=ZA+8*cb
            for t2 in range(2):
                for dl in range(2):
                    u=2*cb+dl
                    a(f'v_smfmac_f32_16x16x64_bf16 {V(z0+4*dl,4)}, {V(A2+4*t2,4)}, {wr(160+(u*2+t2)*8,8)}, v{vIDX}')
                    for _ in range(3):
                        if pend and not (t2==0 and dl==0): a(pend.pop(0))
                    zi=4*cb+2*t2+dl+1
                    if U_STAG and zi in STAG_Z: emit(a,dma_group((len(STAG_V)+STAG_Z.index(zi))%4))
            emit(a,pend); pend=zfin(cb)
            if not U_STAG and cb in U_POS_Z: emit(a,[] if first else dma_group())
        emit(a,pend)
        stamp(a,4)
        if not first: a(f's_cmp_eq_u32 s30, {nsteps-1}'); a(f's_cbranch_scc1 {Llast}')
        if first:
            uflag(0); emit(a,pre(0))
            for _ in range(4): emit(a,dma_group())
            a('s_waitcnt vmcnt(0)'); a('s_barrier')
        Lb1=a.nl('ub1'); Lb2=a.nl('ub2')
        a('s_bitcmp1_b32 s30, 0'); a(f's_cbranch_scc1 {Lb1}')
        for j in range(4):
            for k in range(3): a(f'ds_read_b128 {V(UF+(k*4+j)*4,4)}, v{vUR} offset:{j*3072+k*1024}')
        a(f's_branch {Lb2}')
        a.lab(Lb1)
        for j in range(4):
            for k in range(3): a(f'ds_read_b128 {V(UF+(k*4+j)*4,4)}, v{vUR1} offset:{j*3072+k*1024}')
        a.lab(Lb2)
        zl=[f'global_load_dwordx4 {V(ZF,4)}, v{vZ}, s[54:55] sc1', f'global_load_dwordx4 {V(ZF+4,4)}, v{vZ}, s[54:55] offset:256 sc1', f'global_load_dwordx4 {V(ZF+8,4)}, v{vZ2}, s[54:55] sc1']
        for i in range(12): a(f'v_mov_b32 v{RA+i}, 0')
        stamp(a,6)
        flag_gate(a,vPFL,LDS_GO+4,True,bar=GATE_BAR_P)
        stamp(a,5)
        if EWG_POS=='gate':
            Lg3=a.nl('g3'); a('s_cmp_lg_u32 s3, 3'); a(f's_cbranch_scc1 {Lg3}'); a('s_mov_b64 exec, 1'); a(f'global_store_dword v{vGF}, v{vGF+1}, s[4:5]{ST}'); a('s_mov_b64 exec, -1'); a.lab(Lg3)
        Lp=a.nl('Sp'); Lp1=a.nl('Sp1')
        def ploads():
            a(f'global_load_dwordx4 {V(PXF,4)}, v{vPX}, s[52:53] sc1')
            a(f'global_load_dwordx4 {V(PXF+4,4)}, v{vPX}, s[52:53] offset:1024 sc1')
            a('s_mov_b64 exec, s[60:61]')
            a(f'global_load_dwordx4 {V(PMF,4)}, v{vPM}, s[52:53] sc1')
            a('s_mov_b64 exec, -1')
        ploads(); emit(a,zl)
        a('s_waitcnt vmcnt(3) lgkmcnt(0)')
        a(f's_branch {Lp1}')
        a.lab(Lp)
        ploads(); a('s_waitcnt vmcnt(0)')
        a.lab(Lp1)
        stamp(a,8)
        a(f'v_max3_u32 v{T0}, v{PXF}, v{PXF+2}, v{PXF+4}'); a(f'v_max3_u32 v{T0}, v{T0}, v{PXF+6}, v{PMF}'); a(f'v_max_u32 v{T0}, v{T0}, v{PMF+2}')
        a(f'v_cmp_eq_u32 vcc, -1, v{T0}'); a.retry('s_cbranch_vccnz',Lp)
        for q in range(2):
            for k in range(3): a(f'v_smfmac_f32_16x16x64_bf16 {V(RA+4*k,4)}, {V(PXF+4*q,4)}, {V(UF+(k*4+2*q)*4,8)}, v{vIDX}')
        a('s_waitcnt vmcnt(0)')
        Lzp=a.nl('Zp'); Lzo=a.nl('Zo')
        a.lab(Lzp)
        a(f'v_max3_u32 v{T0}, v{ZF}, v{ZF+2}, v{ZF+4}'); a(f'v_max3_u32 v{T0}, v{T0}, v{ZF+6}, v{ZF+8}'); a(f'v_max_u32 v{T0}, v{T0}, v{ZF+10}')
        a(f'v_cmp_eq_u32 vcc, -1, v{T0}'); a(f's_cbranch_vccz {Lzo}')
        emit(a,zl); a('s_waitcnt vmcnt(0)'); a('s_add_u32 s100, s100, 1'); a('s_cmp_lt_u32 s100, 0x1000000'); a(f's_cbranch_scc1 {Lzp}'); a('s_endpgm')
        a.lab(Lzo)
        for k in range(3): a(f'v_mfma_f32_16x16x32_bf16 {V(RA+4*k,4)}, {V(PMF,4)}, {V(ZF+4*k,4)}, {V(RA+4*k,4)}')
        stamp(a,7)
        emit(a,half_sum_pack(RA,RA+4,None))
        a(f'ds_write_b128 v{vRW}, {V(RA,4)}')
        for i in range(4): a(f'v_mov_b32 v{RA+4+i}, v{RA+8+i}')
        emit(a,half_sum_pack(RA+8,RA+4,None))
        a('s_mov_b64 exec, s[64:65]'); a(f'ds_write_b128 v{vRW}, {V(RA+8,4)} offset:1024'); a('s_mov_b64 exec, -1')
        if EWG_POS=='preB4':
            Lew=a.nl('ew'); a('s_cmp_lg_u32 s3, 2'); a(f's_cbranch_scc1 {Lew} ; @fwd'); a('s_mov_b64 exec, 1'); a(f'global_store_dword v{vGF}, v{vGF+1}, s[4:5]{ST}'); a('s_mov_b64 exec, -1'); a(f'{Lew}: ; @end')
        a('s_waitcnt lgkmcnt(0)'); stamp(a,9); a('s_barrier')
        Lnf2=a.nl('nfin'); Lnx=a.nl('nx')
        a('s_cmp_eq_u32 s76, 0'); a(f's_cbranch_scc1 {Lnf2}')
        a('s_mov_b64 exec, s[74:75]')
        for w in range(4): a(f'ds_read_b128 {V(GLx+4*w,4)}, v{vRR} offset:{w*1536}')
        a('s_waitcnt lgkmcnt(2)')
        a(f'v_pk_add_f32 {V(GLx,2)}, {V(GLx,2)}, {V(GLx+4,2)}'); a(f'v_pk_add_f32 {V(GLx+2,2)}, {V(GLx+2,2)}, {V(GLx+6,2)}')
        a('s_waitcnt lgkmcnt(0)')
        a(f'v_pk_add_f32 {V(GLx+8,2)}, {V(GLx+8,2)}, {V(GLx+12,2)}'); a(f'v_pk_add_f32 {V(GLx+10,2)}, {V(GLx+10,2)}, {V(GLx+14,2)}')
        a(f'v_pk_add_f32 {V(GLx,2)}, {V(GLx,2)}, {V(GLx+8,2)}'); a(f'v_pk_add_f32 {V(GLx+2,2)}, {V(GLx+2,2)}, {V(GLx+10,2)}')
        a(f'v_cvt_pk_bf16_f32 v{T0}, v{GLx}, v{GLx+1}'); a(f'v_cvt_pk_bf16_f32 v{T1}, v{GLx+2}, v{GLx+3}')
        a(f'v_min_u32 v{T0}, s70, v{T0}')
        if PREM_FIRST:
            a(f'global_store_dwordx2 v{vPRm}, {V(T0,2)}, s[34:35]{PREM_MOD}'); a(f'global_store_dwordx2 v{vP}, {V(T0,2)}, s[34:35]{ST}')
        else:
            a(f'global_store_dwordx2 v{vP}, {V(T0,2)}, s[34:35]{ST}'); a(f'global_store_dwordx2 v{vPRm}, {V(T0,2)}, s[34:35]{PREM_MOD}')
        a('s_mov_b64 exec, -1')
        a(f's_branch {Lnx}')
        a.lab(Lnf2)
        a('s_cmp_lg_u32 s3, 3'); a(f's_cbranch_scc1 {Lnx}')
        if EWG_POS=='postB4': a('s_mov_b64 exec, 1'); a(f'global_store_dword v{vGF}, v{vGF+1}, s[4:5]{ST}'); a('s_mov_b64 exec, -1')
        a(f'global_store_dwordx4 v{vR+1}, {V(SEN,4)}, s[26:27] sc1'); a(f'global_store_dwordx4 v{vR}, {V(SEN,4)}, s[26:27]{ST}')
        uflag(2)
        a.lab(Lnx)
        if first:
            uflag(1); emit(a,pre(1))
            for _ in range(4): emit(a,dma_group())
        stamp(a,10)
        a('s_add_u32 s30, s30, 1')
    if LATE_START: step(True)
    if ALIGN: a('.p2align 6')
    a.lab(Lstep)
    step(False)
    a(f's_branch {Lstep}')
    a.lab(Llast)
    stamp_dump(a,None,FL_END+1024)
    a('s_waitcnt vmcnt(0)')
    a('s_endpgm')
```
